```python
import torch

def _softmax(x, axis=-1):
    return torch.softmax(x, dim=axis)

def _gelu(x):
    return torch.nn.functional.gelu(x, approximate='tanh')

def _silu(x):
    return torch.nn.functional.silu(x)

def _sigmoid(x):
    return torch.sigmoid(x)

def _layernorm(x, axis=-1, eps=1e-05):
    m = x.mean(dim=axis, keepdim=True)
    v = x.var(dim=axis, keepdim=True, unbiased=False)
    return (x - m) / torch.sqrt(v + eps)

def _scatter_add(tgt, idx, src, axis=0):
    return tgt.clone().index_add_(axis, idx, src)

def _segment_sum(src, seg, n):
    out = torch.zeros((n,) + src.shape[1:], dtype=src.dtype)
    return out.index_add_(0, seg, src)

def _pad(x, pw):
    flat = tuple((v for pair in reversed(pw) for v in pair))
    return torch.nn.functional.pad(x, flat)
kernel_name = 'sequential_preLN__ssm_conv_s4__mixer_gmlp__prompt'

def setup_inputs():

    _w = lambda a: (lambda t: t.to(torch.bfloat16) if t.is_floating_point() else t)(torch.as_tensor(a))

    def _A_setup():
        B, L, D, N = (1, 2048, 576, 128)
        A_re = -(lambda _x: torch.exp(torch.as_tensor(_x)))((lambda *s: torch.randn(*s, dtype=torch.bfloat16) * 6.4)(D, N))
        A_im = torch.pi * (lambda *s: torch.randn(*s, dtype=torch.bfloat16) * 0.05)(D, N)
        B_re = (lambda *s: torch.randn(*s, dtype=torch.bfloat16) * 0.05)(D, N)
        B_im = (lambda *s: torch.randn(*s, dtype=torch.bfloat16) * 0.05)(D, N)
        C_re = (lambda *s: torch.randn(*s, dtype=torch.bfloat16) * 0.05)(D, N)
        C_im = (lambda *s: torch.randn(*s, dtype=torch.bfloat16) * 0.05)(D, N)
        log_dt = (lambda *s: torch.randn(*s, dtype=torch.bfloat16) * 0.05)(D) * 0.5 - 4.0
        Dskip = (lambda *s: torch.randn(*s, dtype=torch.bfloat16) * 0.05)(D)
        return {'u': _w((lambda *s: torch.randn(*s, dtype=torch.bfloat16) * 0.05)(B, L, D)), 'A_re': _w(A_re), 'A_im': _w(A_im), 'B_re': _w(B_re), 'B_im': _w(B_im), 'C_re': _w(C_re), 'C_im': _w(C_im), 'log_dt': _w(log_dt), 'Dskip': _w(Dskip)}
    _A_in = _A_setup()

    def _B_setup():
        B, S, D, F = (1, 2048, 576, 4608)
        Fh = F // 2
        return {'x': _w((lambda *s: torch.randn(*s, dtype=torch.bfloat16) * 0.05)(B, S, D)), 'w_in': _w((lambda *s: torch.randn(*s, dtype=torch.bfloat16) * 0.4)(D, 2 * Fh)), 'w_sp': _w(0.01 * (lambda *s: torch.randn(*s, dtype=torch.bfloat16) * 0.4)(S, S)), 'b_sp': _w(1.0 + 0.01 * (lambda *s: torch.randn(*s, dtype=torch.bfloat16) * 0.05)(S)), 'w_out': _w((lambda *s: torch.randn(*s, dtype=torch.bfloat16) * 0.05)(Fh, D))}
    _B_in = _B_setup()
    return {'A_u': _A_in['u'], 'A_A_re': _A_in['A_re'], 'A_A_im': _A_in['A_im'], 'A_B_re': _A_in['B_re'], 'A_B_im': _A_in['B_im'], 'A_C_re': _A_in['C_re'], 'A_C_im': _A_in['C_im'], 'A_log_dt': _A_in['log_dt'], 'A_Dskip': _A_in['Dskip'], 'B_x': _B_in['x'], 'B_w_in': _B_in['w_in'], 'B_w_sp': _B_in['w_sp'], 'B_b_sp': _B_in['b_sp'], 'B_w_out': _B_in['w_out']}

def reference(A_u, A_A_re, A_A_im, A_B_re, A_B_im, A_C_re, A_C_im, A_log_dt, A_Dskip, B_x, B_w_in, B_w_sp, B_b_sp, B_w_out):

    def _A_ref(u, A_re, A_im, B_re, B_im, C_re, C_im, log_dt, Dskip):
        Bsz, L, D = u.shape
        dt = torch.exp(log_dt)[:, None]
        A = A_re + 1j * A_im
        Bc = B_re + 1j * B_im
        Cc = C_re + 1j * C_im
        logdA = dt * A
        dB = dt * Bc
        l = (lambda x, dt: x.to(dt))(torch.arange(L), A_re.dtype)
        P = torch.exp(logdA[:, :, None] * l[None, None, :])
        K = torch.einsum('dn,dnl,dn->dl', Cc, P, dB).real
        L2 = 2 * L
        Kp = _pad(K, ((0, 0), (0, L)))
        up = (lambda x, *d: x.permute(*d))(u, 0, 2, 1)
        up = _pad(up, ((0, 0), (0, 0), (0, L)))
        Kf = (lambda x, axes=(-2, -1): torch.fft.rfft2(x.float(), dim=axes))(Kp[:, None, :], axes=(-2, -1))
        Uf = (lambda x, axes=(-2, -1): torch.fft.rfft2(x.float(), dim=axes))(up[:, :, None, :], axes=(-2, -1))
        Yf = Uf * Kf[None, :, :, :]
        y = (lambda x, s, axes=(-2, -1): torch.fft.irfft2(x, s=s, dim=axes).to(torch.bfloat16))(Yf, (1, L2), axes=(-2, -1))[:, :, 0, :L]
        y = (lambda x, *d: x.permute(*d))(y, 0, 2, 1) + u * Dskip[None, None, :]
        return y

    def _B_ref(x, w_in, w_sp, b_sp, w_out):
        B, S, D = x.shape
        F = w_in.shape[-1]
        Fh = F // 2
        z = _gelu(torch.einsum('bsd,df->bsf', x, w_in))
        z1 = z[..., :Fh].clone()
        z2 = _layernorm(z[..., Fh:], axis=-1)
        g = torch.einsum('ts,bsf->btf', w_sp, z2) + b_sp[None, :, None]
        return torch.einsum('bsf,fd->bsd', z1 * g, w_out)
    x = A_u
    h = x + _A_ref(_layernorm(x, axis=-1), A_A_re, A_A_im, A_B_re, A_B_im, A_C_re, A_C_im, A_log_dt, A_Dskip)
    h2 = h + _B_ref(_layernorm(h, axis=-1), B_w_in, B_w_sp, B_b_sp, B_w_out)
    return h2
```

```python
import struct

def f2u(x):
    return struct.unpack('<I', struct.pack('<f', x))[0]

def fhex(x):
    return "0x%08x" % f2u(x)

class Kernel:
    def __init__(self, name, vgpr=256, sgpr=102, accum=None, agpr=0):
        self.name = name
        self.lines = []
        self.vgpr = vgpr
        self.sgpr = sgpr
        self.agpr = agpr
        self._lab = 0
    def __call__(self, s):
        for l in s.split('\n'):
            l = l.strip()
            if not l: continue
            if l.endswith(':'):
                self.lines.append(l)
            else:
                self.lines.append('    ' + l)
    def c(self, s):
        self.lines.append('    ; ' + s)
    def label(self, base='L'):
        self._lab += 1
        return f"{base}_{self.name}_{self._lab}"
    def nop(self, n):
        while n > 0:
            k = min(n, 16)
            self(f"s_nop {k-1}")
            n -= k
    def srd(self, d, base, nbytes, off=0):
        if off:
            self(f"s_add_u32 s{d}, s{base}, 0x{off:x}")
            self(f"s_addc_u32 s{d+1}, s{base+1}, 0")
        else:
            self(f"s_mov_b32 s{d}, s{base}")
            self(f"s_mov_b32 s{d+1}, s{base+1}")
        self(f"s_mov_b32 s{d+2}, 0x{nbytes:x}")
        self(f"s_mov_b32 s{d+3}, 0x00020000")
    def text(self):
        out = [f".globl {self.name}", ".p2align 8", f".type {self.name},@function", f"{self.name}:"]
        out += self.lines
        out += getattr(self, 'tail', [])
        return '\n'.join(out) + '\n'
    def desc(self):
        acc = (self.vgpr + 3)//4*4
        nfv = acc + self.agpr if self.agpr else self.vgpr
        return f""".amdhsa_kernel {self.name}
  .amdhsa_next_free_vgpr {nfv}
  .amdhsa_next_free_sgpr {self.sgpr}
  .amdhsa_accum_offset {acc}
  .amdhsa_group_segment_fixed_size 0
  .amdhsa_kernarg_size 136
  .amdhsa_user_sgpr_count 2
  .amdhsa_user_sgpr_kernarg_segment_ptr 1
  .amdhsa_system_sgpr_workgroup_id_x 1
  .amdhsa_float_denorm_mode_32 3
.end_amdhsa_kernel
"""

HEADER = open('sequential_preLN__ssm_conv_s4__mixer_gmlp__prompt.s.ref').read().split('; Override launch')[0]

def build_file(kernels, launches):
    s = HEADER
    for (name, grid, block, lds) in launches:
        s += f"; @launch kernel={name} grid=({grid},1,1) block=({block},1,1) lds={lds}\n"
    s += '.amdgcn_target "amdgcn-amd-amdhsa--gfx950"\n.text\n'
    for k in kernels:
        s += k.text()
    s += '.section .rodata,"a"\n'
    for k in kernels:
        s += '.p2align 6\n' + k.desc()
    return s

KA = dict(x=0, Are=8, Aim=16, Bre=24, Bim=32, Cre=40, Cim=48, logdt=56, Dskip=64, Bx=72,
          win=80, wsp=88, bsp=96, wout=104, out=112, dbg=120, ws=128)
```

```python
import sys, math
sys.path.insert(0, 'work')
from asmlib import *

L, D, N, F, FH = 2048, 576, 128, 4608, 2304
MB = 1 << 20
WS_U, WS_KF, WS_H, WS_X2, WS_Z, WS_Z2, WS_ZG = 0, 4*MB, 12*MB, 16*MB, 20*MB, 40*MB, 52*MB
LOG2E = math.log2(math.e)

def rbf(k, dst, src):
    k(f"v_cvt_pk_bf16_f32 v{dst}, v{src}, v{src}")
    k(f"v_lshlrev_b32 v{dst}, 16, v{dst}")

def wave_sum(k, v, t, s0):
    for ctl in ["quad_perm:[1,0,3,2]", "quad_perm:[2,3,0,1]", "row_half_mirror", "row_mirror"]:
        k.nop(2)
        k(f"v_add_f32_dpp v{t}, v{v}, v{v} {ctl} row_mask:0xf bank_mask:0xf")
        k(f"v_mov_b32 v{v}, v{t}")
    k.nop(2)
    for i in range(4):
        k(f"v_readlane_b32 s{s0+i}, v{v}, {16*i}")
    k.nop(4)
    k(f"v_mov_b32 v{v}, s{s0}")
    for i in range(1, 4):
        k(f"v_add_f32 v{v}, s{s0+i}, v{v}")

def ln_kernel(name, in_slot, in_off, in_bytes, in_stride, in_col, C, out_off, out_stride):
    k = Kernel(name, vgpr=64, sgpr=40)
    ne = C // 64
    done = k.label('done')
    k(f"s_cmp_ge_u32 s2, {L//4}")
    k(f"s_cbranch_scc1 {done}")
    k(f"s_load_dwordx2 s[4:5], s[0:1], {KA[in_slot]}")
    k(f"s_load_dwordx2 s[6:7], s[0:1], {KA['ws']}")
    k("s_waitcnt lgkmcnt(0)")
    k.srd(8, 4, in_bytes, in_off)
    k.srd(12, 6, L*out_stride, out_off)
    k("v_lshrrev_b32 v1, 6, v0")
    k("v_and_b32 v2, 63, v0")
    k("s_lshl_b32 s3, s2, 2")
    k("v_add_u32 v1, s3, v1")
    k(f"s_mov_b32 s16, {in_stride}")
    k("v_mul_lo_u32 v3, v1, s16")
    k(f"v_lshl_add_u32 v3, v2, 1, v3")
    k(f"v_add_u32 v3, {in_col*2}, v3")
    k(f"s_mov_b32 s16, {out_stride}")
    k("v_mul_lo_u32 v4, v1, s16")
    k(f"v_lshl_add_u32 v4, v2, 1, v4")
    X = 16
    for i in range(ne):
        off = i*128
        if off < 4096:
            k(f"buffer_load_ushort v{X+i}, v3, s[8:11], 0 offen offset:{off}")
        else:
            k(f"s_mov_b32 s17, {off}")
            k(f"buffer_load_ushort v{X+i}, v3, s[8:11], s17 offen")
    k("s_waitcnt vmcnt(0)")
    for i in range(ne):
        k(f"v_lshlrev_b32 v{X+i}, 16, v{X+i}")
    k(f"v_mov_b32 v5, v{X}")
    for i in range(1, ne):
        k(f"v_add_f32 v5, v5, v{X+i}")
    wave_sum(k, 5, 6, 20)
    k(f"v_mul_f32 v5, {fhex(1.0/C)}, v5")
    k("v_mov_b32 v7, 0")
    for i in range(ne):
        k(f"v_sub_f32 v6, v{X+i}, v5")
        k(f"v_fmac_f32 v7, v6, v6")
    wave_sum(k, 7, 6, 20)
    k(f"v_mul_f32 v7, {fhex(1.0/C)}, v7")
    rbf(k, 5, 5)
    rbf(k, 7, 7)
    k(f"v_add_f32 v7, {fhex(1e-5)}, v7")
    rbf(k, 7, 7)
    k("v_sqrt_f32 v7, v7")
    k.nop(1)
    rbf(k, 7, 7)
    k("v_rcp_f32 v8, v7")
    k.nop(1)
    for i in range(ne):
        k(f"v_sub_f32 v6, v{X+i}, v5")
        rbf(k, 6, 6)
        k("v_mul_f32 v9, v6, v8")
        k("v_fma_f32 v10, -v9, v7, v6")
        k("v_fma_f32 v9, v10, v8, v9")
        k(f"v_cvt_pk_bf16_f32 v{X+i}, v9, v9")
    for i in range(ne):
        off = i*128
        if off < 4096:
            k(f"buffer_store_short v{X+i}, v4, s[12:15], 0 offen offset:{off}")
        else:
            k(f"s_mov_b32 s17, {off}")
            k(f"buffer_store_short v{X+i}, v4, s[12:15], s17 offen")
    k(f"{done}:")
    k("s_endpgm")
    return k

def kgen_kernel():
    k = Kernel('kgen_kernel', vgpr=40, sgpr=64)
    done = k.label('done')
    k(f"s_cmp_ge_u32 s2, {D*8}")
    k(f"s_cbranch_scc1 {done}")
    k(f"s_load_dwordx16 s[16:31], s[0:1], 0")
    k(f"s_load_dwordx2 s[6:7], s[0:1], {KA['ws']}")
    k("s_waitcnt lgkmcnt(0)")
    k("s_lshr_b32 s3, s2, 3")
    k("s_and_b32 s4, s2, 7")
    k("v_and_b32 v1, 127, v0")
    k("v_lshlrev_b32 v1, 1, v1")
    k("s_lshl_b32 s5, s3, 8")
    k("v_add_u32 v1, s5, v1")
    for i in range(6):
        k.srd(32, 18+2*i, D*N*2)
        k(f"buffer_load_ushort v{10+i}, v1, s[32:35], 0 offen")
        k("s_waitcnt vmcnt(0)")
    k.srd(32, 30, D*2)
    k("s_lshl_b32 s5, s3, 1")
    k("v_mov_b32 v2, s5")
    k(f"buffer_load_ushort v16, v2, s[32:35], 0 offen")
    k("s_waitcnt vmcnt(0)")
    for i in range(7):
        k(f"v_lshlrev_b32 v{10+i}, 16, v{10+i}")
    Lhi = struct.unpack('<f', struct.pack('<f', LOG2E))[0]
    Llo = LOG2E - Lhi
    k(f"s_mov_b32 s8, {fhex(Lhi)}")
    k(f"s_mov_b32 s9, {fhex(Llo)}")
    k("v_mul_f32 v17, s8, v16")
    k("v_fma_f32 v18, v16, s8, -v17")
    k("v_fma_f32 v18, v16, s9, v18")
    k("v_exp_f32 v17, v17")
    k(f"v_mul_f32 v18, {fhex(math.log(2.0))}, v18")
    k("v_fma_f32 v17, v17, v18, v17")
    rbf(k, 17, 17)
    k("v_mul_f32 v20, v17, v10")
    k("v_mul_f32 v21, v17, v11")
    k("v_mul_f32 v12, v17, v12")
    k("v_mul_f32 v13, v17, v13")
    k("v_mul_f32 v22, v14, v12")
    k("v_fma_f32 v22, -v15, v13, v22")
    k("v_mul_f32 v23, v14, v13")
    k("v_fma_f32 v23, v15, v12, v23")
    k("v_and_b32 v1, 127, v0")
    k("v_lshlrev_b32 v1, 4, v1")
    k("ds_write_b128 v1, v[20:23]")
    k("s_waitcnt lgkmcnt(0)")
    k("s_barrier")
    k("s_lshl_b32 s5, s4, 8")
    k("v_add_u32 v2, s5, v0")
    k("v_cvt_f32_u32 v3, v2")
    rbf(k, 3, 3)
    k("v_mov_b32 v4, 0")
    k("v_mov_b32 v5, 0")
    k("s_mov_b32 s10, 0")
    lp = k.label('loop')
    k(f"{lp}:")
    k("ds_read_b128 v[20:23], v5")
    k("s_waitcnt lgkmcnt(0)")
    k("v_mul_f32 v6, v20, v3")
    k(f"v_mul_f32 v6, {fhex(LOG2E)}, v6")
    k("v_exp_f32 v6, v6")
    k("v_mul_f32 v7, v21, v3")
    k(f"v_mul_f32 v7, {fhex(1.0/(2*math.pi))}, v7")
    k("v_fract_f32 v7, v7")
    k("v_sin_f32 v8, v7")
    k("v_cos_f32 v9, v7")
    k.nop(1)
    k("v_mul_f32 v9, v22, v9")
    k("v_fma_f32 v9, -v23, v8, v9")
    k("v_fmac_f32 v4, v6, v9")
    k("v_add_u32 v5, 16, v5")
    k("s_add_u32 s10, s10, 1")
    k("s_cmp_lt_u32 s10, 128")
    k(f"s_cbranch_scc1 {lp}")
    k.srd(32, 6, D*L*4, WS_KF)
    k("s_lshl_b32 s5, s3, 13")
    k("v_lshlrev_b32 v2, 2, v2")
    k("v_add_u32 v2, s5, v2")
    k("buffer_store_dword v4, v2, s[32:35], 0 offen")
    k(f"{done}:")
    k("s_endpgm")
    return k

def conv_kernel(kbf16=False):
    k = Kernel('conv_kernel', vgpr=40, sgpr=64)
    done = k.label('done')
    k(f"s_cmp_ge_u32 s2, {D*8}")
    k(f"s_cbranch_scc1 {done}")
    k(f"s_load_dwordx2 s[4:5], s[0:1], {KA['x']}")
    k(f"s_load_dwordx2 s[6:7], s[0:1], {KA['ws']}")
    k(f"s_load_dwordx2 s[8:9], s[0:1], {KA['Dskip']}")
    k("s_waitcnt lgkmcnt(0)")
    k("s_lshr_b32 s3, s2, 3")
    k("s_and_b32 s10, s2, 7")
    k.srd(12, 4, L*D*2)
    k.srd(16, 6, L*D*2, WS_U)
    k.srd(20, 6, D*L*4, WS_KF)
    k.srd(24, 6, L*D*2, WS_H)
    k.srd(28, 8, D*2)
    KOFF, UOFF = 0, (256+2048)*4
    k("v_lshlrev_b32 v1, 2, v0")
    k("v_mov_b32 v2, 0")
    k("ds_write_b32 v1, v2")
    k("s_lshl_b32 s11, s3, 13")
    k("v_add_u32 v3, s11, v1")
    for i in range(8):
        k(f"s_mov_b32 s33, {i*1024}")
        k(f"buffer_load_dword v{10+i}, v3, s[20:23], s33 offen")
    k(f"s_mov_b32 s32, {D*2}")
    k("v_mul_lo_u32 v4, v0, s32")
    k("s_lshl_b32 s11, s3, 1")
    k("v_add_u32 v4, s11, v4")
    for i in range(8):
        k(f"s_mov_b32 s33, {i*256*D*2}")
        k(f"buffer_load_ushort v{20+i}, v4, s[16:19], s33 offen")
    k("s_waitcnt vmcnt(0)")
    for i in range(8):
        if kbf16:
            rbf(k, 10+i, 10+i)
        k(f"ds_write_b32 v1, v{10+i} offset:{KOFF + 1024 + i*1024}")
        k(f"v_lshlrev_b32 v{20+i}, 16, v{20+i}")
        k(f"ds_write_b32 v1, v{20+i} offset:{UOFF + i*1024}")
    k("s_waitcnt lgkmcnt(0)")
    k("s_barrier")
    k("s_lshl_b32 s11, s10, 8")
    k("v_add_u32 v5, s11, v0")
    k("v_lshlrev_b32 v6, 2, v5")
    k(f"v_add_u32 v6, {KOFF+1024}, v6")
    k(f"v_mov_b32 v7, {UOFF}")
    k("v_mov_b32 v8, 0")
    k("s_add_u32 s34, s11, 256")
    k("s_mov_b32 s35, 0")
    lp = k.label('loop')
    k(f"{lp}:")
    k("ds_read_b32 v9, v6")
    k("ds_read_b32 v10, v7")
    k("v_subrev_u32 v6, 4, v6")
    k("v_add_u32 v7, 4, v7")
    k("s_waitcnt lgkmcnt(0)")
    k("v_fmac_f32 v8, v9, v10")
    k("s_add_u32 s35, s35, 1")
    k("s_cmp_lt_u32 s35, s34")
    k(f"s_cbranch_scc1 {lp}")
    k("v_mul_lo_u32 v4, v5, s32")
    k("s_lshl_b32 s11, s3, 1")
    k("v_add_u32 v4, s11, v4")
    k("v_mov_b32 v11, s11")
    k("buffer_load_ushort v12, v4, s[12:15], 0 offen")
    k("buffer_load_ushort v13, v4, s[16:19], 0 offen")
    k("buffer_load_ushort v14, v11, s[28:31], 0 offen")
    k("s_waitcnt vmcnt(0)")
    for r in (12, 13, 14):
        k(f"v_lshlrev_b32 v{r}, 16, v{r}")
    rbf(k, 8, 8)
    k("v_mul_f32 v13, v13, v14")
    rbf(k, 13, 13)
    k("v_add_f32 v8, v8, v13")
    rbf(k, 8, 8)
    k("v_add_f32 v8, v8, v12")
    k("v_cvt_pk_bf16_f32 v8, v8, v8")
    k("buffer_store_short v8, v4, s[24:27], 0 offen")
    k(f"{done}:")
    k("s_endpgm")
    return k, (256+2048+2048)*4

def gemm_kernel(name, M, Nn, K, a_slot, a_off, b_slot, b_off, epi):
    k = Kernel(name, vgpr=64, sgpr=64)
    done = k.label('done')
    tiles = (M//32)*(Nn//32)
    k(f"s_cmp_ge_u32 s2, {tiles}")
    k(f"s_cbranch_scc1 {done}")
    k(f"s_load_dwordx2 s[4:5], s[0:1], {KA[a_slot]}")
    k(f"s_load_dwordx2 s[6:7], s[0:1], {KA[b_slot]}")
    k(f"s_load_dwordx2 s[8:9], s[0:1], {KA['ws']}")
    k(f"s_load_dwordx2 s[10:11], s[0:1], {KA['out']}")
    k(f"s_load_dwordx2 s[36:37], s[0:1], {KA['bsp']}")
    k("s_waitcnt lgkmcnt(0)")
    k.srd(12, 4, M*K*2, a_off)
    k.srd(16, 6, K*Nn*2, b_off)
    k("s_and_b32 s3, s2, 63")
    k("s_lshr_b32 s20, s2, 6")
    k("s_lshl_b32 s3, s3, 5")
    k("s_lshl_b32 s20, s20, 5")
    k("v_and_b32 v1, 31, v0")
    k("v_lshrrev_b32 v2, 5, v0")
    k("v_add_u32 v3, s3, v1")
    k(f"s_mov_b32 s21, {K*2}")
    k("v_mul_lo_u32 v3, v3, s21")
    k("v_lshl_add_u32 v3, v2, 4, v3")
    k(f"s_mov_b32 s21, {Nn*2*8}")
    k("v_mul_lo_u32 v4, v2, s21")
    k("v_add_u32 v5, s20, v1")
    k("v_lshl_add_u32 v4, v5, 1, v4")
    for r in range(16):
        k(f"v_mov_b32 v{32+r}, 0")
    for j in range(8):
        k(f"s_mov_b32 s{40+j}, {j*Nn*2}")
    k("s_mov_b32 s22, 0")
    lp = k.label('loop')
    k(f"{lp}:")
    k("buffer_load_dwordx4 v[8:11], v3, s[12:15], 0 offen")
    for j in range(8):
        k(f"buffer_load_ushort v{16 + j}, v4, s[16:19], s{40+j} offen")
    k("s_waitcnt vmcnt(0)")
    for j in range(4):
        k(f"v_lshl_or_b32 v{12+j}, v{17+2*j}, 16, v{16+2*j}")
    k("v_add_u32 v3, 32, v3")
    k(f"v_add_u32 v4, {16*Nn*2}, v4")
    k("v_mfma_f32_32x32x16_bf16 v[32:47], v[8:11], v[12:15], v[32:47]")
    k("s_add_u32 s22, s22, 16")
    k(f"s_cmp_lt_u32 s22, {K}")
    k(f"s_cbranch_scc1 {lp}")
    k.nop(20)
    k("v_lshlrev_b32 v6, 2, v2")
    k("v_add_u32 v6, s3, v6")
    def addr(dst, stride_elems, r, coloff=0):
        k(f"v_add_u32 v{dst}, {(r&3)+8*(r>>2)}, v6")
        k(f"s_mov_b32 s21, {stride_elems}")
        k(f"v_mul_lo_u32 v{dst}, v{dst}, s21")
        k(f"v_add_u32 v{dst}, v{dst}, v5")
        k(f"v_lshlrev_b32 v{dst}, 1, v{dst}")
    if epi == 'gelu':
        k.srd(24, 8, L*F*2, WS_Z)
        c1 = -2.0*LOG2E*math.sqrt(2.0/math.pi)
        c2 = c1*0.044715
        for r in range(16):
            a = 32+r
            rbf(k, a, a)
            k(f"v_mul_f32 v8, v{a}, v{a}")
            k(f"v_mov_b32 v9, {fhex(c1)}")
            k(f"v_fmac_f32 v9, {fhex(c2)}, v8")
            k(f"v_mul_f32 v9, v9, v{a}")
            k("v_exp_f32 v9, v9")
            k.nop(1)
            k("v_add_f32 v9, 1.0, v9")
            k("v_rcp_f32 v9, v9")
            k.nop(1)
            k(f"v_mul_f32 v9, v9, v{a}")
            k("v_cvt_pk_bf16_f32 v9, v9, v9")
            addr(10, F, r)
            k("buffer_store_short v9, v10, s[24:27], 0 offen")
            k("s_waitcnt vmcnt(0)")
    elif epi == 'gate':
        k.srd(24, 8, L*F*2, WS_Z)
        k.srd(28, 8, L*FH*2, WS_ZG)
        k.srd(32, 36, L*2)
        for r in range(16):
            a = 32+r
            rbf(k, a, a)
            addr(10, F, r)
            k("buffer_load_ushort v8, v10, s[24:27], 0 offen")
            k(f"v_add_u32 v11, {(r&3)+8*(r>>2)}, v6")
            k("v_lshlrev_b32 v11, 1, v11")
            k("buffer_load_ushort v9, v11, s[32:35], 0 offen")
            k("s_waitcnt vmcnt(0)")
            k("v_lshlrev_b32 v8, 16, v8")
            k("v_lshlrev_b32 v9, 16, v9")
            k(f"v_add_f32 v9, v9, v{a}")
            rbf(k, 9, 9)
            k("v_mul_f32 v9, v9, v8")
            k("v_cvt_pk_bf16_f32 v9, v9, v9")
            addr(10, FH, r)
            k("buffer_store_short v9, v10, s[28:31], 0 offen")
            k("s_waitcnt vmcnt(0)")
    elif epi == 'res':
        k.srd(24, 8, L*D*2, WS_H)
        k.srd(28, 10, L*D*2)
        for r in range(16):
            a = 32+r
            rbf(k, a, a)
            addr(10, D, r)
            k("buffer_load_ushort v8, v10, s[24:27], 0 offen")
            k("s_waitcnt vmcnt(0)")
            k("v_lshlrev_b32 v8, 16, v8")
            k(f"v_add_f32 v9, v8, v{a}")
            k("v_cvt_pk_bf16_f32 v9, v9, v9")
            k("buffer_store_short v9, v10, s[28:31], 0 offen")
            k("s_waitcnt vmcnt(0)")
    k(f"{done}:")
    k("s_endpgm")
    return k, tiles

def empty_kernel():
    k = Kernel('empty_kernel', vgpr=8, sgpr=16)
    k("s_endpgm")
    return k

def main(out, kbf16=False, n_empty=0):
    ln1 = ln_kernel('ln1_kernel', 'x', 0, L*D*2, D*2, 0, D, WS_U, D*2)
    kg = kgen_kernel()
    cv, cv_lds = conv_kernel(kbf16)
    ln2 = ln_kernel('ln2_kernel', 'ws', WS_H, L*D*2, D*2, 0, D, WS_X2, D*2)
    g1, t1 = gemm_kernel('gemm1_kernel', L, F, D, 'ws', WS_X2, 'win', 0, 'gelu')
    ln3 = ln_kernel('ln3_kernel', 'ws', WS_Z, L*F*2, F*2, FH, FH, WS_Z2, FH*2)
    g2, t2 = gemm_kernel('gemm2_kernel', L, FH, L, 'wsp', 0, 'ws', WS_Z2, 'gate')
    g3, t3 = gemm_kernel('gemm3_kernel', L, D, FH, 'ws', WS_ZG, 'wout', 0, 'res')
    ks = [ln1, kg, cv, ln2, g1, ln3, g2, g3]
    launches = [('ln1_kernel', 512, 256, 0), ('kgen_kernel', D*8, 256, 2048), ('conv_kernel', D*8, 256, cv_lds),
                ('ln2_kernel', 512, 256, 0), ('gemm1_kernel', t1, 64, 0), ('ln3_kernel', 512, 256, 0),
                ('gemm2_kernel', t2, 64, 0), ('gemm3_kernel', t3, 64, 0)]
    if n_empty:
        ks.append(empty_kernel())
        launches += [('empty_kernel', 256, 256, 0)]*n_empty
    open(out, 'w').write(build_file(ks, launches))

if __name__ == '__main__':
    main('sequential_preLN__ssm_conv_s4__mixer_gmlp__prompt.s')
    main('v0_kbf16.s', kbf16=True)
    main('v0_e20.s', n_empty=20)
```

```python
import sys, math
sys.path.insert(0, 'work')
from asmlib import *

L, D, N, F, FH = 2048, 576, 128, 4608, 2304
MB = 1 << 20
WS_U, WS_KF, WS_H, WS_X2, WS_Z, WS_Z2, WS_ZG = 0, 4*MB, 12*MB, 16*MB, 20*MB, 40*MB, 52*MB
LOG2E = math.log2(math.e)

def rbf(k, dst, src):
    k(f"v_cvt_pk_bf16_f32 v{dst}, v{src}, v{src}")
    k(f"v_lshlrev_b32 v{dst}, 16, v{dst}")

def wave_sum(k, v, t, s0):
    for ctl in ["quad_perm:[1,0,3,2]", "quad_perm:[2,3,0,1]", "row_half_mirror", "row_mirror"]:
        k.nop(2)
        k(f"v_add_f32_dpp v{t}, v{v}, v{v} {ctl} row_mask:0xf bank_mask:0xf")
        k(f"v_mov_b32 v{v}, v{t}")
    k.nop(2)
    for i in range(4):
        k(f"v_readlane_b32 s{s0+i}, v{v}, {16*i}")
    k.nop(4)
    k(f"v_mov_b32 v{v}, s{s0}")
    for i in range(1, 4):
        k(f"v_add_f32 v{v}, s{s0+i}, v{v}")

def ln_kernel(name, in_slot, in_off, in_bytes, in_stride, in_col, C, out_off, out_stride):
    k = Kernel(name, vgpr=64, sgpr=40)
    ne = C // 64
    done = k.label('done')
    k(f"s_cmp_ge_u32 s2, {L//4}")
    k(f"s_cbranch_scc1 {done}")
    k(f"s_load_dwordx2 s[4:5], s[0:1], {KA[in_slot]}")
    k(f"s_load_dwordx2 s[6:7], s[0:1], {KA['ws']}")
    k("s_waitcnt lgkmcnt(0)")
    k.srd(8, 4, in_bytes, in_off)
    k.srd(12, 6, L*out_stride, out_off)
    k("v_lshrrev_b32 v1, 6, v0")
    k("v_and_b32 v2, 63, v0")
    k("s_lshl_b32 s3, s2, 2")
    k("v_add_u32 v1, s3, v1")
    k(f"s_mov_b32 s16, {in_stride}")
    k("v_mul_lo_u32 v3, v1, s16")
    k(f"v_lshl_add_u32 v3, v2, 1, v3")
    k(f"v_add_u32 v3, {in_col*2}, v3")
    k(f"s_mov_b32 s16, {out_stride}")
    k("v_mul_lo_u32 v4, v1, s16")
    k(f"v_lshl_add_u32 v4, v2, 1, v4")
    X = 16
    for i in range(ne):
        off = i*128
        if off < 4096:
            k(f"buffer_load_ushort v{X+i}, v3, s[8:11], 0 offen offset:{off}")
        else:
            k(f"s_mov_b32 s17, {off}")
            k(f"buffer_load_ushort v{X+i}, v3, s[8:11], s17 offen")
    k("s_waitcnt vmcnt(0)")
    for i in range(ne):
        k(f"v_lshlrev_b32 v{X+i}, 16, v{X+i}")
    k(f"v_mov_b32 v5, v{X}")
    for i in range(1, ne):
        k(f"v_add_f32 v5, v5, v{X+i}")
    wave_sum(k, 5, 6, 20)
    k(f"v_mul_f32 v5, {fhex(1.0/C)}, v5")
    k("v_mov_b32 v7, 0")
    for i in range(ne):
        k(f"v_sub_f32 v6, v{X+i}, v5")
        k(f"v_fmac_f32 v7, v6, v6")
    wave_sum(k, 7, 6, 20)
    k(f"v_mul_f32 v7, {fhex(1.0/C)}, v7")
    rbf(k, 5, 5)
    rbf(k, 7, 7)
    k(f"v_add_f32 v7, {fhex(1e-5)}, v7")
    rbf(k, 7, 7)
    k("v_sqrt_f32 v7, v7")
    k.nop(1)
    rbf(k, 7, 7)
    k("v_rcp_f32 v8, v7")
    k.nop(1)
    for i in range(ne):
        k(f"v_sub_f32 v6, v{X+i}, v5")
        rbf(k, 6, 6)
        k("v_mul_f32 v9, v6, v8")
        k("v_fma_f32 v10, -v9, v7, v6")
        k("v_fma_f32 v9, v10, v8, v9")
        k(f"v_cvt_pk_bf16_f32 v{X+i}, v9, v9")
    for i in range(ne):
        off = i*128
        if off < 4096:
            k(f"buffer_store_short v{X+i}, v4, s[12:15], 0 offen offset:{off}")
        else:
            k(f"s_mov_b32 s17, {off}")
            k(f"buffer_store_short v{X+i}, v4, s[12:15], s17 offen")
    k(f"{done}:")
    k("s_endpgm")
    return k

def kgen_kernel():
    k = Kernel('kgen_kernel', vgpr=40, sgpr=64)
    done = k.label('done')
    k(f"s_cmp_ge_u32 s2, {D*8}")
    k(f"s_cbranch_scc1 {done}")
    k(f"s_load_dwordx16 s[16:31], s[0:1], 0")
    k(f"s_load_dwordx2 s[6:7], s[0:1], {KA['ws']}")
    k("s_waitcnt lgkmcnt(0)")
    k("s_lshr_b32 s3, s2, 3")
    k("s_and_b32 s4, s2, 7")
    k("v_and_b32 v1, 127, v0")
    k("v_lshlrev_b32 v1, 1, v1")
    k("s_lshl_b32 s5, s3, 8")
    k("v_add_u32 v1, s5, v1")
    for i in range(6):
        k.srd(32, 18+2*i, D*N*2)
        k(f"buffer_load_ushort v{10+i}, v1, s[32:35], 0 offen")
        k("s_waitcnt vmcnt(0)")
    k.srd(32, 30, D*2)
    k("s_lshl_b32 s5, s3, 1")
    k("v_mov_b32 v2, s5")
    k(f"buffer_load_ushort v16, v2, s[32:35], 0 offen")
    k("s_waitcnt vmcnt(0)")
    for i in range(7):
        k(f"v_lshlrev_b32 v{10+i}, 16, v{10+i}")
    Lhi = struct.unpack('<f', struct.pack('<f', LOG2E))[0]
    Llo = LOG2E - Lhi
    k(f"s_mov_b32 s8, {fhex(Lhi)}")
    k(f"s_mov_b32 s9, {fhex(Llo)}")
    k("v_mul_f32 v17, s8, v16")
    k("v_fma_f32 v18, v16, s8, -v17")
    k("v_fma_f32 v18, v16, s9, v18")
    k("v_exp_f32 v17, v17")
    k(f"v_mul_f32 v18, {fhex(math.log(2.0))}, v18")
    k("v_fma_f32 v17, v17, v18, v17")
    rbf(k, 17, 17)
    k("v_mul_f32 v20, v17, v10")
    k("v_mul_f32 v21, v17, v11")
    k("v_mul_f32 v12, v17, v12")
    k("v_mul_f32 v13, v17, v13")
    k("v_mul_f32 v22, v14, v12")
    k("v_fma_f32 v22, -v15, v13, v22")
    k("v_mul_f32 v23, v14, v13")
    k("v_fma_f32 v23, v15, v12, v23")
    k("v_and_b32 v1, 127, v0")
    k("v_lshlrev_b32 v1, 4, v1")
    k("ds_write_b128 v1, v[20:23]")
    k("s_waitcnt lgkmcnt(0)")
    k("s_barrier")
    k("s_lshl_b32 s5, s4, 8")
    k("v_add_u32 v2, s5, v0")
    k("v_cvt_f32_u32 v3, v2")
    rbf(k, 3, 3)
    k("v_mov_b32 v4, 0")
    k("v_mov_b32 v5, 0")
    k("s_mov_b32 s10, 0")
    lp = k.label('loop')
    k(f"{lp}:")
    k("ds_read_b128 v[20:23], v5")
    k("s_waitcnt lgkmcnt(0)")
    k("v_mul_f32 v6, v20, v3")
    k(f"v_mul_f32 v6, {fhex(LOG2E)}, v6")
    k("v_exp_f32 v6, v6")
    k("v_mul_f32 v7, v21, v3")
    k(f"v_mul_f32 v7, {fhex(1.0/(2*math.pi))}, v7")
    k("v_fract_f32 v7, v7")
    k("v_sin_f32 v8, v7")
    k("v_cos_f32 v9, v7")
    k.nop(1)
    k("v_mul_f32 v9, v22, v9")
    k("v_fma_f32 v9, -v23, v8, v9")
    k("v_fmac_f32 v4, v6, v9")
    k("v_add_u32 v5, 16, v5")
    k("s_add_u32 s10, s10, 1")
    k("s_cmp_lt_u32 s10, 128")
    k(f"s_cbranch_scc1 {lp}")
    k.srd(32, 6, D*L*4, WS_KF)
    k("s_lshl_b32 s5, s3, 13")
    k("v_lshlrev_b32 v2, 2, v2")
    k("v_add_u32 v2, s5, v2")
    k("buffer_store_dword v4, v2, s[32:35], 0 offen")
    k(f"{done}:")
    k("s_endpgm")
    return k

def conv_kernel(kbf16=False):
    k = Kernel('conv_kernel', vgpr=40, sgpr=64)
    done = k.label('done')
    k(f"s_cmp_ge_u32 s2, {D*8}")
    k(f"s_cbranch_scc1 {done}")
    k(f"s_load_dwordx2 s[4:5], s[0:1], {KA['x']}")
    k(f"s_load_dwordx2 s[6:7], s[0:1], {KA['ws']}")
    k(f"s_load_dwordx2 s[8:9], s[0:1], {KA['Dskip']}")
    k("s_waitcnt lgkmcnt(0)")
    k("s_lshr_b32 s3, s2, 3")
    k("s_and_b32 s10, s2, 7")
    k.srd(12, 4, L*D*2)
    k.srd(16, 6, L*D*2, WS_U)
    k.srd(20, 6, D*L*4, WS_KF)
    k.srd(24, 6, L*D*2, WS_H)
    k.srd(28, 8, D*2)
    KOFF, UOFF = 0, (256+2048)*4
    k("v_lshlrev_b32 v1, 2, v0")
    k("v_mov_b32 v2, 0")
    k("ds_write_b32 v1, v2")
    k("s_lshl_b32 s11, s3, 13")
    k("v_add_u32 v3, s11, v1")
    for i in range(8):
        k(f"s_mov_b32 s33, {i*1024}")
        k(f"buffer_load_dword v{10+i}, v3, s[20:23], s33 offen")
    k(f"s_mov_b32 s32, {D*2}")
    k("v_mul_lo_u32 v4, v0, s32")
    k("s_lshl_b32 s11, s3, 1")
    k("v_add_u32 v4, s11, v4")
    for i in range(8):
        k(f"s_mov_b32 s33, {i*256*D*2}")
        k(f"buffer_load_ushort v{20+i}, v4, s[16:19], s33 offen")
    k("s_waitcnt vmcnt(0)")
    for i in range(8):
        if kbf16:
            rbf(k, 10+i, 10+i)
        k(f"ds_write_b32 v1, v{10+i} offset:{KOFF + 1024 + i*1024}")
        k(f"v_lshlrev_b32 v{20+i}, 16, v{20+i}")
        k(f"ds_write_b32 v1, v{20+i} offset:{UOFF + i*1024}")
    k("s_waitcnt lgkmcnt(0)")
    k("s_barrier")
    k("s_lshl_b32 s11, s10, 8")
    k("v_add_u32 v5, s11, v0")
    k("v_lshlrev_b32 v6, 2, v5")
    k(f"v_add_u32 v6, {KOFF+1024}, v6")
    k(f"v_mov_b32 v7, {UOFF}")
    k("v_mov_b32 v8, 0")
    k("s_add_u32 s34, s11, 256")
    k("s_mov_b32 s35, 0")
    lp = k.label('loop')
    k(f"{lp}:")
    k("ds_read_b32 v9, v6")
    k("ds_read_b32 v10, v7")
    k("v_subrev_u32 v6, 4, v6")
    k("v_add_u32 v7, 4, v7")
    k("s_waitcnt lgkmcnt(0)")
    k("v_fmac_f32 v8, v9, v10")
    k("s_add_u32 s35, s35, 1")
    k("s_cmp_lt_u32 s35, s34")
    k(f"s_cbranch_scc1 {lp}")
    k("v_mul_lo_u32 v4, v5, s32")
    k("s_lshl_b32 s11, s3, 1")
    k("v_add_u32 v4, s11, v4")
    k("v_mov_b32 v11, s11")
    k("buffer_load_ushort v12, v4, s[12:15], 0 offen")
    k("buffer_load_ushort v13, v4, s[16:19], 0 offen")
    k("buffer_load_ushort v14, v11, s[28:31], 0 offen")
    k("s_waitcnt vmcnt(0)")
    for r in (12, 13, 14):
        k(f"v_lshlrev_b32 v{r}, 16, v{r}")
    rbf(k, 8, 8)
    k("v_mul_f32 v13, v13, v14")
    rbf(k, 13, 13)
    k("v_add_f32 v8, v8, v13")
    rbf(k, 8, 8)
    k("v_add_f32 v8, v8, v12")
    k("v_cvt_pk_bf16_f32 v8, v8, v8")
    k("buffer_store_short v8, v4, s[24:27], 0 offen")
    k(f"{done}:")
    k("s_endpgm")
    return k, (256+2048+2048)*4

def gemm_kernel(name, M, Nn, K, a_slot, a_off, b_slot, b_off, epi):
    k = Kernel(name, vgpr=64, sgpr=64)
    done = k.label('done')
    tiles = (M//32)*(Nn//32)
    k(f"s_cmp_ge_u32 s2, {tiles}")
    k(f"s_cbranch_scc1 {done}")
    k(f"s_load_dwordx2 s[4:5], s[0:1], {KA[a_slot]}")
    k(f"s_load_dwordx2 s[6:7], s[0:1], {KA[b_slot]}")
    k(f"s_load_dwordx2 s[8:9], s[0:1], {KA['ws']}")
    k(f"s_load_dwordx2 s[10:11], s[0:1], {KA['out']}")
    k(f"s_load_dwordx2 s[36:37], s[0:1], {KA['bsp']}")
    k("s_waitcnt lgkmcnt(0)")
    k.srd(12, 4, M*K*2, a_off)
    k.srd(16, 6, K*Nn*2, b_off)
    k("s_and_b32 s3, s2, 63")
    k("s_lshr_b32 s20, s2, 6")
    k("s_lshl_b32 s3, s3, 5")
    k("s_lshl_b32 s20, s20, 5")
    k("v_and_b32 v1, 31, v0")
    k("v_lshrrev_b32 v2, 5, v0")
    k("v_add_u32 v3, s3, v1")
    k(f"s_mov_b32 s21, {K*2}")
    k("v_mul_lo_u32 v3, v3, s21")
    k("v_lshl_add_u32 v3, v2, 4, v3")
    k(f"s_mov_b32 s21, {Nn*2*8}")
    k("v_mul_lo_u32 v4, v2, s21")
    k("v_add_u32 v5, s20, v1")
    k("v_lshl_add_u32 v4, v5, 1, v4")
    for r in range(16):
        k(f"v_mov_b32 v{32+r}, 0")
    for j in range(8):
        k(f"s_mov_b32 s{40+j}, {j*Nn*2}")
    k("s_mov_b32 s22, 0")
    lp = k.label('loop')
    k(f"{lp}:")
    k("buffer_load_dwordx4 v[8:11], v3, s[12:15], 0 offen")
    for j in range(8):
        k(f"buffer_load_ushort v{16 + j}, v4, s[16:19], s{40+j} offen")
    k("s_waitcnt vmcnt(0)")
    for j in range(4):
        k(f"v_lshl_or_b32 v{12+j}, v{17+2*j}, 16, v{16+2*j}")
    k("v_add_u32 v3, 32, v3")
    k(f"v_add_u32 v4, {16*Nn*2}, v4")
    k("v_mfma_f32_32x32x16_bf16 v[32:47], v[8:11], v[12:15], v[32:47]")
    k("s_add_u32 s22, s22, 16")
    k(f"s_cmp_lt_u32 s22, {K}")
    k(f"s_cbranch_scc1 {lp}")
    k.nop(20)
    k("v_lshlrev_b32 v6, 2, v2")
    k("v_add_u32 v6, s3, v6")
    def addr(dst, stride_elems, r, coloff=0):
        k(f"v_add_u32 v{dst}, {(r&3)+8*(r>>2)}, v6")
        k(f"s_mov_b32 s21, {stride_elems}")
        k(f"v_mul_lo_u32 v{dst}, v{dst}, s21")
        k(f"v_add_u32 v{dst}, v{dst}, v5")
        k(f"v_lshlrev_b32 v{dst}, 1, v{dst}")
    if epi == 'gelu':
        k.srd(24, 8, L*F*2, WS_Z)
        c1 = -2.0*LOG2E*math.sqrt(2.0/math.pi)
        c2 = c1*0.044715
        for r in range(16):
            a = 32+r
            rbf(k, a, a)
            k(f"v_mul_f32 v8, v{a}, v{a}")
            k(f"v_mov_b32 v9, {fhex(c1)}")
            k(f"v_fmac_f32 v9, {fhex(c2)}, v8")
            k(f"v_mul_f32 v9, v9, v{a}")
            k("v_exp_f32 v9, v9")
            k.nop(1)
            k("v_add_f32 v9, 1.0, v9")
            k("v_rcp_f32 v9, v9")
            k.nop(1)
            k(f"v_mul_f32 v9, v9, v{a}")
            k("v_cvt_pk_bf16_f32 v9, v9, v9")
            addr(10, F, r)
            k("buffer_store_short v9, v10, s[24:27], 0 offen")
            k("s_waitcnt vmcnt(0)")
    elif epi == 'gate':
        k.srd(24, 8, L*F*2, WS_Z)
        k.srd(28, 8, L*FH*2, WS_ZG)
        k.srd(32, 36, L*2)
        for r in range(16):
            a = 32+r
            rbf(k, a, a)
            addr(10, F, r)
            k("buffer_load_ushort v8, v10, s[24:27], 0 offen")
            k(f"v_add_u32 v11, {(r&3)+8*(r>>2)}, v6")
            k("v_lshlrev_b32 v11, 1, v11")
            k("buffer_load_ushort v9, v11, s[32:35], 0 offen")
            k("s_waitcnt vmcnt(0)")
            k("v_lshlrev_b32 v8, 16, v8")
            k("v_lshlrev_b32 v9, 16, v9")
            k(f"v_add_f32 v9, v9, v{a}")
            rbf(k, 9, 9)
            k("v_mul_f32 v9, v9, v8")
            k("v_cvt_pk_bf16_f32 v9, v9, v9")
            addr(10, FH, r)
            k("buffer_store_short v9, v10, s[28:31], 0 offen")
            k("s_waitcnt vmcnt(0)")
    elif epi == 'res':
        k.srd(24, 8, L*D*2, WS_H)
        k.srd(28, 10, L*D*2)
        for r in range(16):
            a = 32+r
            rbf(k, a, a)
            addr(10, D, r)
            k("buffer_load_ushort v8, v10, s[24:27], 0 offen")
            k("s_waitcnt vmcnt(0)")
            k("v_lshlrev_b32 v8, 16, v8")
            k(f"v_add_f32 v9, v8, v{a}")
            k("v_cvt_pk_bf16_f32 v9, v9, v9")
            k("buffer_store_short v9, v10, s[28:31], 0 offen")
            k("s_waitcnt vmcnt(0)")
    k(f"{done}:")
    k("s_endpgm")
    return k, tiles

def empty_kernel():
    k = Kernel('empty_kernel', vgpr=8, sgpr=16)
    k("s_endpgm")
    return k

def main(out, kbf16=False, n_empty=0, front=False):
    ln1 = ln_kernel('ln1_kernel', 'x', 0, L*D*2, D*2, 0, D, WS_U, D*2)
    kg = kgen_kernel()
    cv, cv_lds = conv_kernel(kbf16)
    ln2 = ln_kernel('ln2_kernel', 'ws', WS_H, L*D*2, D*2, 0, D, WS_X2, D*2)
    g1, t1 = gemm_kernel('gemm1_kernel', L, F, D, 'ws', WS_X2, 'win', 0, 'gelu')
    ln3 = ln_kernel('ln3_kernel', 'ws', WS_Z, L*F*2, F*2, FH, FH, WS_Z2, FH*2)
    g2, t2 = gemm_kernel('gemm2_kernel', L, FH, L, 'wsp', 0, 'ws', WS_Z2, 'gate')
    g3, t3 = gemm_kernel('gemm3_kernel', L, D, FH, 'ws', WS_ZG, 'wout', 0, 'res')
    ks = [ln1, kg, cv, ln2, g1, ln3, g2, g3]
    launches = [('ln1_kernel', 512, 256, 0), ('kgen_kernel', D*8, 256, 2048), ('conv_kernel', D*8, 256, cv_lds),
                ('ln2_kernel', 512, 256, 0), ('gemm1_kernel', t1, 64, 0), ('ln3_kernel', 512, 256, 0),
                ('gemm2_kernel', t2, 64, 0), ('gemm3_kernel', t3, 64, 0)]
    if n_empty:
        ks.append(empty_kernel())
        if front:
            launches = [('empty_kernel', 256, 256, 0)]*n_empty + launches
        else:
            launches += [('empty_kernel', 256, 256, 0)]*n_empty
    open(out, 'w').write(build_file(ks, launches))

if __name__ == '__main__':
    main('sequential_preLN__ssm_conv_s4__mixer_gmlp__prompt.s')
    main('v0_kbf16.s', kbf16=True)
    main('v0_e20.s', n_empty=20)
    main('v0_f20.s', n_empty=20, front=True)
    main('v0_f40.s', n_empty=40, front=True)
```

```python
import sys, math
sys.path.insert(0, 'work')
from asmlib import *

L, D, N, F, FH = 2048, 576, 128, 4608, 2304
MB = 1 << 20
LOG2E = math.log2(math.e)
WS_STAMP = 0
WS_U, WS_KF = 1*MB, 4*MB
WS_H, WS_X2 = 12*MB, 16*MB
WS_WINT, WS_WOUTT = 20*MB, 26*MB
WS_STAT = 30*MB
WS_Z2T, WS_ZG = 40*MB, 52*MB
WS_XT, WS_HT, WS_KH = 64*MB, 68*MB, 72*MB
WS_SIZE = 128*MB

GC1 = -2.0*LOG2E*math.sqrt(2.0/math.pi)
GC2 = GC1*0.044715

class Cfg:
    def __init__(self, p_tiles0, p_tiles1, nq_per_wave, p_rows, nslot, p_map, q_map, swap):
        self.cls = [p_tiles0, p_tiles1]
        self.nq = nq_per_wave
        self.p_rows = p_rows
        self.q_rows = 64*nq_per_wave
        ntp = len(p_tiles0) + len(p_tiles1)
        self.P_SLOT = ntp*2048
        self.Q_SLOT = self.q_rows*128
        self.NS = nslot
        self.P_BASE = 0
        self.Q_BASE = nslot*self.P_SLOT
        self.LDS = nslot*(self.P_SLOT + self.Q_SLOT)
        self.p_map = p_map
        self.q_map = q_map
        self.swap = swap

def loader_voffs(k, V, ninstr, tmap, stride):
    k("v_lshrrev_b32 v3, 3, v2")
    k("v_and_b32 v4, 7, v2")
    k("v_lshrrev_b32 v5, 4, v2")
    k("v_xor_b32 v4, v4, v5")
    k("v_lshlrev_b32 v4, 4, v4")
    k("v_xor_b32 v5, 64, v4")
    k("v_lshrrev_b32 v6, 2, v3")
    k("v_lshlrev_b32 v6, 3, v6")
    k("v_and_b32 v7, 3, v3")
    k("v_add_u32 v6, v6, v7")
    k(f"v_mul_u32_u24 v6, {stride}, v6")
    k(f"v_mul_u32_u24 v3, {stride}, v3")
    k("v_add_u32 v8, v6, v4")
    k("v_add_u32 v9, v6, v5")
    k("v_add_u32 v10, v3, v4")
    k("v_add_u32 v11, v3, v5")
    for j in range(ninstr):
        base, e = tmap[j >> 1]
        if e is None:
            src = 10 + (j & 1); c = base + 8*(j & 1)
        else:
            src = 8 + (j & 1); c = base + 16*(j & 1) + 4*e
        if c == 0:
            k(f"v_mov_b32 v{V+j}, v{src}")
        else:
            k(f"v_add_u32 v{V+j}, 0x{c*stride:x}, v{src}")

def emit_loader(k, ninstr, tmap, lds_base, slot_bytes, NS, phases, SRD=16):
    V = 16; V2 = 48
    G = sum(p['nst'] for p in phases)
    inflight = min(NS - 1, 63 // ninstr)
    phases[0]['setup'](k)
    loader_voffs(k, V, ninstr, tmap, phases[0]['stride'])
    switch_at = {}
    g = 0
    for pi, p in enumerate(phases[:-1]):
        g += p['nst']; switch_at[g] = pi + 1
    assert len(phases) <= 2
    def issue(slot):
        for j in range(ninstr):
            k(f"s_mov_b32 m0, {lds_base + slot*slot_bytes + j*1024}")
            k("s_nop 0")
            k(f"buffer_load_dwordx4 v{V+j}, s[{SRD}:{SRD+3}], s44 offen lds")
        k("s_add_u32 s44, s44, 128")
    def switch(pi):
        phases[pi]['setup'](k)
        for j in range(ninstr):
            k(f"v_mov_b32 v{V+j}, v{V2+j}")
    issued = 0
    for s in range(min(inflight, NS)):
        issue(s); issued += 1
        if s == 0 and len(phases) > 1:
            loader_voffs(k, V2, ninstr, tmap, phases[1]['stride'])
    k(f"s_waitcnt vmcnt({(inflight-1)*ninstr})")
    while issued < NS:
        assert issued not in switch_at
        issue(issued); issued += 1
        if issued < NS:
            k(f"s_waitcnt vmcnt({(inflight-1)*ninstr})")
    k("s_barrier")
    W = min((NS-2)*ninstr, 63)
    nsteady = G - NS
    nloop = nsteady // NS
    rem = nsteady - nloop*NS
    if nloop:
        k(f"s_mov_b32 s43, 0")
        lp = k.label('lpl')
        k(f"{lp}:")
        for sl in range(NS):
            k(f"s_waitcnt vmcnt({W})")
            k("s_barrier")
            for gs, pi in switch_at.items():
                if gs >= NS and gs < NS + nloop*NS and (gs % NS) == sl:
                    it = (gs - NS)//NS
                    sk = k.label('sk')
                    k(f"s_cmp_lg_u32 s43, {it}")
                    k(f"s_cbranch_scc1 {sk}")
                    switch(pi)
                    k(f"{sk}:")
            issue(sl)
        k("s_add_u32 s43, s43, 1")
        k(f"s_cmp_lg_u32 s43, {nloop}")
        k(f"s_cbranch_scc1 {lp}")
    for r in range(rem):
        gs = NS + nloop*NS + r
        k(f"s_waitcnt vmcnt({W})")
        k("s_barrier")
        if gs in switch_at:
            switch(switch_at[gs])
        issue(gs % NS)
    for r in range(NS):
        k(f"s_waitcnt vmcnt({min(max(NS-2-r, 0)*ninstr, 63)})")
        k("s_barrier")
    k("s_endpgm")

class Comp:
    def __init__(self, k, cfg, ci, S0, S1, va=6):
        self.k, self.cfg, self.ci = k, cfg, ci
        self.nm = len(cfg.cls[ci]); self.nq = cfg.nq
        self.S = [S0, S1]
        self.va = va
    def reads(self, si, slot, ks):
        c = self.cfg; S = self.S[si]; out = []
        vp = self.va + ks; vq = self.va + 2 + ks
        for n in range(self.nq):
            out.append(f"ds_read_b128 v[{S+4*n}:{S+4*n+3}], v{vq} offset:{slot*c.Q_SLOT + n*2048}")
        for m in range(self.nm):
            r = S + 4*self.nq + 4*m
            out.append(f"ds_read_b128 v[{r}:{r+3}], v{vp} offset:{slot*c.P_SLOT + m*2048}")
        return out
    def mfmas(self, si, ACC, zero=False):
        S = self.S[si]; out = []
        for m in range(self.nm):
            for n in range(self.nq):
                a = ACC + (m*self.nq + n)*4
                p = S + 4*self.nq + 4*m; q = S + 4*n
                x, y = (q, p) if self.cfg.swap else (p, q)
                c = "0" if zero else f"v[{a}:{a+3}]"
                out.append(f"v_mfma_f32_16x16x32_bf16 v[{a}:{a+3}], v[{x}:{x+3}], v[{y}:{y+3}], {c}")
        return out
    def interleave(self, ms, rs, extra=None, per=2):
        k = self.k
        for i, m in enumerate(ms):
            k(m)
            if i < len(rs):
                k(rs[i])
            if extra:
                for _ in range(per):
                    if extra: k(extra.pop(0))
        for r in rs[len(ms):]:
            k(r)
    def stage(self, slot, ACC, nslot_next, zero=False, extra=None, per=2, last=False):
        k = self.k
        self.interleave(self.mfmas(0, ACC, zero), self.reads(1, slot, 1), extra, per)
        k("s_waitcnt lgkmcnt(0)")
        k("s_barrier")
        self.interleave(self.mfmas(1, ACC), [] if last else self.reads(0, nslot_next, 0), extra, per)
        if not last:
            k("s_waitcnt lgkmcnt(0)")

def comp_addrs(k, cfg, va=6):
    k("v_and_b32 v3, 15, v2")
    k("v_lshrrev_b32 v4, 4, v2")
    k("v_lshrrev_b32 v5, 1, v3")
    k("v_xor_b32 v5, v5, v4")
    k("v_lshlrev_b32 v5, 4, v5")
    k("v_lshl_add_u32 v5, v3, 7, v5")
    k("s_and_b32 s40, s15, 3")
    k("s_lshr_b32 s41, s15, 2")
    k(f"s_mul_i32 s42, s41, {cfg.cls[1][0]*2048}")
    k(f"v_add_u32 v{va}, s42, v5")
    k(f"v_xor_b32 v{va+1}, 64, v{va}")
    k(f"s_mul_i32 s42, s40, {cfg.nq*2048}")
    k(f"s_add_u32 s42, s42, {cfg.Q_BASE}")
    k(f"v_add_u32 v{va+2}, s42, v5")
    k(f"v_xor_b32 v{va+3}, 64, v{va+2}")

def gelu_ops(x, t0, t1):
    return [f"v_mul_f32 v{t0}, v{x}, v{x}",
            f"v_fmaak_f32 v{t0}, v{t0}, v{t1}, {fhex(GC1)}",
            f"v_mul_f32 v{t0}, v{t0}, v{x}",
            f"v_exp_f32 v{t0}, v{t0}",
            f"v_add_f32 v{t0}, 1.0, v{t0}",
            f"v_rcp_f32 v{t0}, v{t0}",
            f"v_mul_f32 v{x}, v{x}, v{t0}"]

def gelu_stream(regs, temps, cgc2):
    out = []
    nt = len(temps)
    for i in range(0, len(regs), nt):
        grp = regs[i:i+nt]
        seqs = [gelu_ops(x, temps[j], cgc2) for j, x in enumerate(grp)]
        for step in range(7):
            for s in seqs:
                out.append(s[step])
            if len(grp) == 1:
                out.append("s_nop 0")
    return out
```

```python
import sys, math
sys.path.insert(0, 'work')
from gcore import *
import gen_v0 as v0
rbf = v0.rbf

WS_ST1 = 31*MB
KR_PITCH = 4224
INV2PI = 1.0/(2*math.pi)

HI_LIST = list(range(8)) + [256, 258, 260, 262, 512, 516, 768, 772, 1024, 1280, 1536, 1792, 2048]

def transpose_body(k, src_base, R, Cc, dst_off, id_sgpr, PITCH=144):
    tc = Cc//64
    k(f"s_mov_b32 s10, {(1<<32)//tc + 1}")
    k(f"s_mul_hi_u32 s11, s{id_sgpr}, s10")
    k(f"s_mul_i32 s12, s11, {tc}")
    k(f"s_sub_u32 s12, s{id_sgpr}, s12")
    k.srd(16, src_base, R*Cc*2)
    k.srd(20, 6, R*Cc*2, dst_off)
    k("v_lshrrev_b32 v1, 3, v0")
    k("v_and_b32 v2, 7, v0")
    k("s_lshl_b32 s13, s11, 6")
    k("v_add_u32 v3, s13, v1")
    k(f"v_mul_u32_u24 v3, {Cc*2}, v3")
    k("s_lshl_b32 s13, s12, 7")
    k("v_lshl_add_u32 v3, v2, 4, v3")
    k("v_add_u32 v3, s13, v3")
    k(f"s_mov_b32 s14, {32*Cc*2}")
    k("buffer_load_dwordx4 v[8:11], v3, s[16:19], 0 offen")
    k("buffer_load_dwordx4 v[12:15], v3, s[16:19], s14 offen")
    k(f"v_mul_u32_u24 v4, {8*PITCH}, v2")
    k("v_lshl_add_u32 v4, v1, 1, v4")
    k(f"v_mul_u32_u24 v5, {PITCH}, v1")
    k("v_lshl_add_u32 v5, v2, 4, v5")
    k("s_lshl_b32 s13, s12, 6")
    k("v_add_u32 v3, s13, v1")
    k(f"v_mul_u32_u24 v3, {R*2}, v3")
    k("s_lshl_b32 s13, s11, 7")
    k("v_lshl_add_u32 v3, v2, 4, v3")
    k("v_add_u32 v3, s13, v3")
    k(f"s_mov_b32 s14, {32*R*2}")
    for half in range(2):
        k(f"s_waitcnt vmcnt({1-half})")
        for j in range(8):
            r = 8 + 4*half + j//2
            op = "ds_write_b16_d16_hi" if j & 1 else "ds_write_b16"
            k(f"{op} v4, v{r} offset:{j*PITCH + half*64}")
    k("s_waitcnt lgkmcnt(0)")
    k("s_barrier")
    k("ds_read_b128 v[8:11], v5")
    k(f"ds_read_b128 v[12:15], v5 offset:{32*PITCH}")
    k("s_waitcnt lgkmcnt(1)")
    k("buffer_store_dwordx4 v[8:11], v3, s[20:23], 0 offen")
    k("s_waitcnt lgkmcnt(0)")
    k("buffer_store_dwordx4 v[12:15], v3, s[20:23], s14 offen")
    k("s_endpgm")

def cexp(k, dr, di, lr2, li_rev, mult, t):
    k(f"v_mul_f32 v{t}, {fhex(float(mult))}, v{lr2}")
    k(f"v_mul_f32 v{di}, {fhex(float(mult))}, v{li_rev}")
    k(f"v_exp_f32 v{t}, v{t}")
    k(f"v_fract_f32 v{di}, v{di}")
    k(f"v_cos_f32 v{dr}, v{di}")
    k(f"v_sin_f32 v{di}, v{di}")
    k("s_nop 0")
    k(f"v_mul_f32 v{dr}, v{dr}, v{t}")
    k(f"v_mul_f32 v{di}, v{di}, v{t}")

def cmul(k, dr, di, ar, ai, br, bi):
    k(f"v_mul_f32 v{dr}, v{ar}, v{br}")
    k(f"v_mul_f32 v{di}, v{ar}, v{bi}")
    k(f"v_fma_f32 v{dr}, -v{ai}, v{bi}, v{dr}")
    k(f"v_fmac_f32 v{di}, v{ai}, v{br}")

def k1_kernel(name='k1_kernel'):
    k = Kernel(name, vgpr=72, sgpr=64)
    done = k.label('done'); lS = k.label('stats'); lT = k.label('xt'); lX = k.label('xw'); lJ = k.label('join')
    NK, NS_, NT = D, 128, 288
    k(f"s_cmp_ge_u32 s2, {NK+NS_+NT}")
    k(f"s_cbranch_scc1 {done}")
    k("s_load_dwordx16 s[16:31], s[0:1], 0")
    k(f"s_load_dwordx2 s[6:7], s[0:1], {KA['ws']}")
    k(f"s_cmp_ge_u32 s2, {NK+NS_}")
    k(f"s_cbranch_scc1 {lT}")
    k(f"s_cmp_ge_u32 s2, {NK}")
    k(f"s_cbranch_scc1 {lS}")
    XP = 528
    XA, YB = 0, 21*XP
    TB = 0
    k("v_and_b32 v1, 127, v0")
    k("v_lshlrev_b32 v2, 1, v1")
    k("s_lshl_b32 s3, s2, 8")
    k("v_add_u32 v2, s3, v2")
    k("s_lshl_b32 s3, s2, 1")
    k("v_mov_b32 v3, s3")
    k("v_lshrrev_b32 v4, 6, v0")
    k("s_waitcnt lgkmcnt(0)")
    k("v_readfirstlane_b32 s15, v4")
    for i in range(6):
        k.srd(32+4*i, 18+2*i, D*N*2)
    k.srd(56, 30, D*2)
    k("buffer_load_ushort v16, v3, s[56:59], 0 offen")
    for i in range(6):
        k(f"buffer_load_ushort v{10+i}, v2, s[{32+4*i}:{35+4*i}], 0 offen")
    G = 56
    k("v_lshlrev_b32 v5, 3, v0")
    for e in range(8):
        k(f"v_sub_u32 v6, {2047-e}, v5")
        k("v_cvt_f32_u32 v6, v6")
        k("v_cvt_pk_bf16_f32 v6, v6, v6")
        k("v_lshlrev_b32 v6, 16, v6")
        k("v_cvt_u32_f32 v6, v6")
        k("v_lshrrev_b32 v7, 8, v6")
        k("v_and_b32 v8, 7, v6")
        k("v_lshl_add_u32 v7, v7, 3, v8")
        k("v_bfe_u32 v8, v6, 3, 5")
        k("v_lshlrev_b32 v8, 1, v8")
        k(f"v_lshl_add_u32 v{G+e}, v7, 6, v8")
    k("s_waitcnt vmcnt(0)")
    for i in range(7):
        k(f"v_lshlrev_b32 v{10+i}, 16, v{10+i}")
    Lhi = struct.unpack('<f', struct.pack('<f', LOG2E))[0]
    Llo = LOG2E - Lhi
    k(f"s_mov_b32 s8, {fhex(Lhi)}")
    k(f"s_mov_b32 s9, {fhex(Llo)}")
    k("v_mul_f32 v17, s8, v16")
    k("v_fma_f32 v18, v16, s8, -v17")
    k("v_fma_f32 v18, v16, s9, v18")
    k("v_exp_f32 v17, v17")
    k(f"v_mul_f32 v18, {fhex(math.log(2.0))}, v18")
    k("v_fma_f32 v17, v17, v18, v17")
    rbf(k, 17, 17)
    k("v_mul_f32 v20, v17, v10")
    k("v_mul_f32 v21, v17, v11")
    k(f"v_mul_f32 v20, {fhex(LOG2E)}, v20")
    k(f"v_mul_f32 v21, {fhex(INV2PI)}, v21")
    k("v_lshlrev_b32 v9, 2, v1")
    k("s_cmp_ge_u32 s15, 2")
    k(f"s_cbranch_scc1 {lX}")
    cexp(k, 22, 23, 20, 21, 8, 24)
    k("v_mov_b32 v30, 0x00003f80")
    k(f"ds_write_b32 v9, v30 offset:{YB}")
    k("v_cvt_pk_bf16_f32 v30, v22, v23")
    k(f"ds_write_b32 v9, v30 offset:{YB+XP}")
    cmul(k, 24, 25, 22, 23, 22, 23)
    k("v_cvt_pk_bf16_f32 v30, v24, v25")
    k(f"ds_write_b32 v9, v30 offset:{YB+2*XP}")
    cur = {1: (22, 23), 0: (24, 25)}
    free = [(26, 27), (28, 29), (32, 33), (34, 35)]
    fi = 0
    for b in range(3, 32):
        a = cur[b & 1]
        d_ = free[fi % 4]; fi += 1
        cmul(k, d_[0], d_[1], a[0], a[1], 24, 25)
        k(f"v_cvt_pk_bf16_f32 v{30 + (b&1)}, v{d_[0]}, v{d_[1]}")
        k(f"ds_write_b32 v9, v{30 + (b&1)} offset:{YB+b*XP}")
        cur[b & 1] = d_
    k(f"s_branch {lJ}")
    k(f"{lX}:")
    k("v_mul_f32 v12, v17, v12")
    k("v_mul_f32 v13, v17, v13")
    X0 = 24
    cmul(k, X0, X0+1, 14, 15, 12, 13)
    cexp(k, 22, 23, 20, 21, 1, 40)
    cexp(k, 42, 43, 20, 21, 256, 40)
    cexp(k, 44, 45, 20, 21, 512, 40)
    cexp(k, 46, 47, 20, 21, 1024, 40)
    def putX(row, r, i_):
        k(f"v_cvt_pk_bf16_f32 v{40 + (row&1)}, v{r}, -v{i_}")
        k(f"ds_write_b32 v9, v{40 + (row&1)} offset:{XA+row*XP}")
    putX(0, X0, X0+1)
    for h in range(1, 8):
        cmul(k, X0+2*h, X0+2*h+1, X0+2*h-2, X0+2*h-1, 22, 23)
        putX(h, X0+2*h, X0+2*h+1)
    for i, h in enumerate((0, 2, 4, 6)):
        cmul(k, 48, 49, X0+2*h, X0+2*h+1, 42, 43)
        putX(8+i, 48, 49)
    for i, h in enumerate((0, 4)):
        cmul(k, 48, 49, X0+2*h, X0+2*h+1, 44, 45)
        putX(12+i, 48, 49)
        cmul(k, 50, 51, 48, 49, 42, 43)
        putX(14+i, 50, 51)
    cmul(k, 48, 49, X0, X0+1, 46, 47)
    putX(16, 48, 49)
    cmul(k, 50, 51, 48, 49, 42, 43)
    putX(17, 50, 51)
    cmul(k, 50, 51, 48, 49, 44, 45)
    putX(18, 50, 51)
    cmul(k, 52, 53, 50, 51, 42, 43)
    putX(19, 52, 53)
    cmul(k, 52, 53, 48, 49, 46, 47)
    putX(20, 52, 53)
    k(f"{lJ}:")
    k("v_and_b32 v2, 15, v0")
    k("v_bfe_u32 v3, v0, 4, 2")
    k(f"v_mul_u32_u24 v4, {XP}, v2")
    k("v_lshl_add_u32 v4, v3, 4, v4")
    k("s_lshr_b32 s3, s15, 1")
    k(f"s_mul_i32 s3, s3, {16*XP}")
    k("v_add_u32 v5, s3, v4")
    k("s_and_b32 s4, s15, 1")
    k(f"s_mul_i32 s5, s4, {16*XP}")
    k(f"s_add_u32 s5, s5, {YB}")
    k("v_add_u32 v6, s5, v4")
    k("s_waitcnt lgkmcnt(0)")
    k("s_barrier")
    for ks in range(4):
        k(f"ds_read_b128 v[{8+8*ks}:{11+8*ks}], v6 offset:{64*ks}")
        k(f"ds_read_b128 v[{12+8*ks}:{15+8*ks}], v5 offset:{64*ks}")
    for ks in range(8):
        r = 8 + 8*(ks % 4)
        k(f"s_waitcnt lgkmcnt({6 if ks < 5 else (7-ks)*2})")
        c = "0" if ks == 0 else "v[40:43]"
        k(f"v_mfma_f32_16x16x32_bf16 v[40:43], v[{r}:{r+3}], v[{r+4}:{r+7}], {c}")
        if ks < 4:
            k(f"ds_read_b128 v[{r}:{r+3}], v6 offset:{64*(ks+4)}")
            k(f"ds_read_b128 v[{r+4}:{r+7}], v5 offset:{64*(ks+4)}")
    k("s_lshr_b32 s3, s15, 1")
    k("s_lshl_b32 s3, s3, 4")
    k("v_add_u32 v7, s3, v2")
    k("v_mov_b32 v44, v7")
    k("v_lshlrev_b32 v45, 1, v7")
    k("v_subrev_u32 v45, 8, v45")
    k("v_max_i32 v44, v44, v45")
    k("v_lshlrev_b32 v45, 2, v7")
    k("v_subrev_u32 v45, 32, v45")
    k("v_max_i32 v44, v44, v45")
    k("v_lshlrev_b32 v45, 3, v7")
    k("v_subrev_u32 v45, 96, v45")
    k("v_max_i32 v44, v44, v45")
    k("v_min_i32 v44, 71, v44")
    k("v_lshlrev_b32 v44, 6, v44")
    k("v_lshl_add_u32 v44, v3, 3, v44")
    k("s_lshl_b32 s4, s4, 5")
    k("v_add_u32 v44, s4, v44")
    k("s_barrier")
    k("v_cvt_pk_bf16_f32 v46, v40, v41")
    k("v_cvt_pk_bf16_f32 v47, v42, v43")
    k(f"ds_write_b64 v44, v[46:47] offset:{TB}")
    k("s_waitcnt lgkmcnt(0)")
    k("s_barrier")
    for e in range(8):
        k(f"ds_read_u16 v{8+e}, v{G+e} offset:{TB}")
    k.srd(32, 6, D*KR_PITCH, WS_KH)
    k(f"s_mul_i32 s3, s2, {KR_PITCH}")
    k("v_lshlrev_b32 v5, 4, v0")
    k("v_mov_b32 v20, 0"); k("v_mov_b32 v21, 0"); k("v_mov_b32 v22, 0"); k("v_mov_b32 v23, 0")
    k("s_waitcnt lgkmcnt(0)")
    for j in range(4):
        k(f"v_lshl_or_b32 v{16+j}, v{9+2*j}, 16, v{8+2*j}")
    k("buffer_store_dwordx4 v[16:19], v5, s[32:35], s3 offen")
    k("v_cmp_gt_u32 vcc, 8, v0")
    k("s_and_saveexec_b64 s[4:5], vcc")
    k(f"s_cbranch_execz {done}")
    k("s_add_u32 s3, s3, 4096")
    k("buffer_store_dwordx4 v[20:23], v5, s[32:35], s3 offen")
    k("s_endpgm")
    k(f"{lS}:")
    k(f"s_sub_u32 s3, s2, {NK}")
    k("s_lshl_b32 s3, s3, 4")
    k("v_lshrrev_b32 v1, 4, v0")
    k("v_add_u32 v1, s3, v1")
    k("v_and_b32 v2, 15, v0")
    k(f"v_mul_u32_u24 v3, {D*2}, v1")
    k("v_lshl_add_u32 v3, v2, 3, v3")
    k("s_waitcnt lgkmcnt(0)")
    k.srd(32, 16, L*D*2)
    k.srd(36, 6, L*8, WS_ST1)
    for q in range(9):
        k(f"buffer_load_dwordx2 v[{8+2*q}:{9+2*q}], v3, s[32:35], 0 offen offset:{128*q}")
    X = 30
    k("v_mov_b32 v4, 0")
    for q in range(9):
        k(f"s_waitcnt vmcnt({8-q})")
        for j in range(2):
            r = 8 + 2*q + j
            k(f"v_lshlrev_b32 v{X+4*q+2*j}, 16, v{r}")
            k(f"v_and_b32 v{X+4*q+2*j+1}, 0xffff0000, v{r}")
            k(f"v_add_f32 v4, v4, v{X+4*q+2*j}")
            k(f"v_add_f32 v4, v4, v{X+4*q+2*j+1}")
    def red16(v, t):
        for ctl in ["quad_perm:[1,0,3,2]", "quad_perm:[2,3,0,1]", "row_half_mirror", "row_mirror"]:
            k.nop(2)
            k(f"v_add_f32_dpp v{v}, v{v}, v{v} {ctl} row_mask:0xf bank_mask:0xf")
    red16(4, 5)
    k(f"v_mul_f32 v4, {fhex(1.0/D)}, v4")
    k("v_mov_b32 v6, 0")
    k("v_mov_b32 v7, 0")
    for i in range(36):
        k(f"v_sub_f32 v{X+i}, v{X+i}, v4")
    for i in range(36):
        k(f"v_fmac_f32 v{6 + (i&1)}, v{X+i}, v{X+i}")
    k("v_add_f32 v6, v6, v7")
    red16(6, 5)
    k(f"v_mul_f32 v6, {fhex(1.0/D)}, v6")
    rbf(k, 4, 4)
    rbf(k, 6, 6)
    k(f"v_add_f32 v6, {fhex(1e-5)}, v6")
    rbf(k, 6, 6)
    k("v_sqrt_f32 v6, v6")
    k.nop(1)
    rbf(k, 6, 6)
    k("v_rcp_f32 v5, v6")
    k("v_lshlrev_b32 v3, 3, v1")
    k("v_cmp_eq_u32 vcc, 0, v2")
    k("s_and_saveexec_b64 s[4:5], vcc")
    k("buffer_store_dwordx2 v[4:5], v3, s[36:39], 0 offen")
    k("s_endpgm")
    k(f"{lT}:")
    k(f"s_sub_u32 s3, s2, {NK+NS_}")
    k("s_waitcnt lgkmcnt(0)")
    k("s_mov_b32 s4, s16")
    k("s_mov_b32 s5, s17")
    transpose_body(k, 4, L, D, WS_XT, 3)
    k(f"{done}:")
    k("s_endpgm")
    return k, NK+NS_+NT, (21+32)*528

CP = 4160
UB = 8*CP
UP = 160
YP = 272

def k2_kernel(name='k2_kernel'):
    k = Kernel(name, vgpr=112, sgpr=64)
    done = k.label('done'); lW1 = k.label('w1'); lW2 = k.label('w2')
    NC, N1, N2 = D, 9*72, 36*9
    k(f"s_cmp_ge_u32 s2, {NC+N1+N2}")
    k(f"s_cbranch_scc1 {done}")
    k(f"s_load_dwordx2 s[6:7], s[0:1], {KA['ws']}")
    k(f"s_load_dwordx2 s[8:9], s[0:1], {KA['Dskip']}")
    k(f"s_load_dwordx2 s[24:25], s[0:1], {KA['win']}")
    k(f"s_load_dwordx2 s[26:27], s[0:1], {KA['wout']}")
    k(f"s_cmp_ge_u32 s2, {NC+N1}")
    k(f"s_cbranch_scc1 {lW2}")
    k(f"s_cmp_ge_u32 s2, {NC}")
    k(f"s_cbranch_scc1 {lW1}")
    k("v_lshlrev_b32 v1, 4, v0")
    k("v_lshlrev_b32 v2, 6, v0")
    k("v_lshrrev_b32 v3, 6, v0")
    k("s_lshl_b32 s3, s2, 12")
    k(f"s_mul_i32 s4, s2, {KR_PITCH}")
    k("s_lshl_b32 s5, s2, 1")
    k("v_mov_b32 v4, s5")
    k("v_readfirstlane_b32 s15, v3")
    k("s_waitcnt lgkmcnt(0)")
    k.srd(28, 6, D*KR_PITCH, WS_KH)
    k.srd(32, 6, D*L*2, WS_XT)
    k.srd(36, 6, L*8, WS_ST1)
    k.srd(40, 8, D*2)
    k.srd(44, 6, D*L*2, WS_HT)
    k("buffer_load_dwordx4 v[8:11], v1, s[28:31], s4 offen")
    k("buffer_load_dwordx4 v[12:15], v1, s[28:31], s4 offen offset:16")
    k("buffer_load_dwordx4 v[16:19], v1, s[32:35], s3 offen")
    for j in range(4):
        k(f"buffer_load_dwordx4 v[{20+4*j}:{23+4*j}], v2, s[36:39], 0 offen offset:{16*j}")
    k("buffer_load_ushort v36, v4, s[40:43], 0 offen")
    for r in range(40, 44): k(f"v_mov_b32 v{r}, 0")
    k("v_cmp_gt_u32 vcc, 160, v0")
    k("s_and_saveexec_b64 s[10:11], vcc")
    k(f"ds_write_b128 v1, v[40:43] offset:{UB}")
    k("s_mov_b64 exec, s[10:11]")
    k("v_lshrrev_b32 v5, 2, v0")
    k(f"v_mul_u32_u24 v5, {CP}, v5")
    k("v_and_b32 v6, 3, v0")
    k("v_lshl_add_u32 v5, v6, 4, v5")
    k("v_cmp_gt_u32 vcc, 32, v0")
    k("s_and_saveexec_b64 s[10:11], vcc")
    k("ds_write_b128 v5, v[40:43] offset:4096")
    k("s_mov_b64 exec, s[10:11]")
    k("s_waitcnt vmcnt(6)")
    E, O, O2 = 44, 52, 60
    for j in range(6): k(f"v_mov_b32 v{E+j}, v{9+j}")
    for j in range(6): k(f"v_alignbit_b32 v{O+j}, v{9+j}, v{8+j}, 16")
    for j in range(6): k(f"v_alignbit_b32 v{O2+j}, v{10+j}, v{9+j}, 16")
    src = {0: 8, 4: 10, 2: E, 6: E+2, 1: O, 5: O+2, 3: O2, 7: O2+2}
    for c in range(8):
        k(f"ds_write_b128 v1, v[{src[c]}:{src[c]+3}] offset:{c*CP}")
    k("s_waitcnt vmcnt(0)")
    XF = 68
    UF = 76
    for j in range(4):
        k(f"v_lshlrev_b32 v{XF+2*j}, 16, v{16+j}")
        k(f"v_and_b32 v{XF+2*j+1}, 0xffff0000, v{16+j}")
    for e in range(8):
        k(f"v_sub_f32 v{UF+e}, v{XF+e}, v{20+2*e}")
    for j in range(4):
        k(f"v_cvt_pk_bf16_f32 v{40+j}, v{UF+2*j}, v{UF+2*j+1}")
    for j in range(4):
        k(f"v_lshlrev_b32 v{UF+2*j}, 16, v{40+j}")
        k(f"v_and_b32 v{UF+2*j+1}, 0xffff0000, v{40+j}")
    for e in range(8):
        k(f"v_mul_f32 v{UF+e}, v{UF+e}, v{21+2*e}")
    for j in range(4):
        k(f"v_cvt_pk_bf16_f32 v{40+j}, v{UF+2*j}, v{UF+2*j+1}")
    k("v_lshrrev_b32 v5, 3, v0")
    k(f"v_mul_u32_u24 v5, {UP}, v5")
    k("v_and_b32 v6, 7, v0")
    k("v_lshl_add_u32 v5, v6, 4, v5")
    k(f"ds_write_b128 v5, v[40:43] offset:{UB + 16*UP}")
    k("v_lshlrev_b32 v36, 16, v36")
    for j in range(4):
        k(f"v_lshlrev_b32 v{UF+2*j}, 16, v{40+j}")
        k(f"v_and_b32 v{UF+2*j+1}, 0xffff0000, v{40+j}")
    for e in range(8):
        k(f"v_mul_f32 v{UF+e}, v{UF+e}, v36")
    for j in range(4):
        k(f"v_cvt_pk_bf16_f32 v{84+j}, v{UF+2*j}, v{UF+2*j+1}")
    k("v_and_b32 v2, 15, v0")
    k("v_bfe_u32 v3, v0, 4, 2")
    k("v_and_b32 v5, 7, v2")
    k("v_sub_u32 v5, 7, v5")
    k(f"v_mul_u32_u24 v5, {CP}, v5")
    k("v_lshrrev_b32 v6, 3, v2")
    k("v_sub_u32 v6, v3, v6")
    k("v_add_u32 v6, 1, v6")
    k("v_lshl_add_u32 v5, v6, 4, v5")
    k(f"v_mul_u32_u24 v6, {UP}, v2")
    k("v_lshl_add_u32 v6, v3, 4, v6")
    k(f"v_add_u32 v6, {UB}, v6")
    k("s_waitcnt lgkmcnt(0)")
    k("s_barrier")
    ACC = 8
    AF = 40
    BF = 88
    ranges = [(0, 12), (12, 24), (24, 40), (40, 64)]
    labs = [k.label('cw') for _ in range(4)]
    ljoin = k.label('cj')
    for w in range(1, 4):
        k(f"s_cmp_eq_u32 s15, {w}")
        k(f"s_cbranch_scc1 {labs[w]}")
    def ra(phi):
        r = AF + 4*(phi % 6)
        return f"ds_read_b128 v[{r}:{r+3}], v5 offset:{32*(127-phi)}"
    def rb(kap, nt):
        r = BF + 8*(kap & 1) + 4*nt
        lam = kap >> 1
        off = (16*nt + 16 - lam)*UP + (64 if kap % 2 == 0 else 0)
        return f"ds_read_b128 v[{r}:{r+3}], v6 offset:{off}"
    for w in range(4):
        k(f"{labs[w]}:")
        k0, k1_ = ranges[w]
        def nts(kap): return [0, 1] if kap < 32 else [1]
        def loads(kap, first):
            out = []
            phis = [2*kap - 2 + mt for mt in (range(4) if first else (2, 3))]
            for nt in nts(kap): out.append(rb(kap, nt))
            for p in phis:
                if p >= 0: out.append(ra(p))
            return out
        inited = set()
        for ins in loads(k0, True): k(ins)
        for kap in range(k0, k1_):
            k("s_waitcnt lgkmcnt(0)")
            nxt = loads(kap+1, False) if kap+1 < k1_ else []
            ms = []
            for mt in range(4):
                phi = 2*kap - 2 + mt
                if phi < 0: continue
                for nt in nts(kap):
                    a = ACC + (mt*2+nt)*4
                    ar = AF + 4*(phi % 6); br = BF + 8*(kap & 1) + 4*nt
                    c = f"v[{a}:{a+3}]" if (mt, nt) in inited else "0"
                    inited.add((mt, nt))
                    ms.append(f"v_mfma_f32_16x16x32_bf16 v[{a}:{a+3}], v[{ar}:{ar+3}], v[{br}:{br+3}], {c}")
            for i_, m in enumerate(ms):
                k(m)
                if i_ < len(nxt): k(nxt[i_])
            for ins in nxt[len(ms):]: k(ins)
        k(f"v_mul_u32_u24 v7, {YP}, v2")
        k("v_lshl_add_u32 v7, v3, 4, v7")
        k("s_barrier")
        k.nop(8)
        for mt in range(4):
            for nt in range(2):
                if (mt, nt) not in inited: continue
                a = ACC + (mt*2+nt)*4
                off = w*32*YP + 16*nt*YP + 64*mt - (16*YP if w == 3 else 0)
                k(f"ds_write_b128 v7, v[{a}:{a+3}] offset:{off}")
        if w < 3: k(f"s_branch {ljoin}")
    k(f"{ljoin}:")
    k("v_lshrrev_b32 v5, 3, v0")
    k(f"v_mul_u32_u24 v5, {YP}, v5")
    k("v_and_b32 v6, 7, v0")
    k("v_lshl_add_u32 v5, v6, 5, v5")
    k("s_waitcnt lgkmcnt(0)")
    k("s_barrier")
    for w in range(3):
        k(f"ds_read_b128 v[{8+8*w}:{11+8*w}], v5 offset:{w*32*YP}")
        k(f"ds_read_b128 v[{12+8*w}:{15+8*w}], v5 offset:{w*32*YP+16}")
    for r in range(32, 40): k(f"v_mov_b32 v{r}, 0")
    sk = k.label('sk')
    k("s_cmp_lt_u32 s15, 2")
    k(f"s_cbranch_scc1 {sk}")
    k(f"ds_read_b128 v[32:35], v5 offset:{3*32*YP - 16*YP}")
    k(f"ds_read_b128 v[36:39], v5 offset:{3*32*YP - 16*YP + 16}")
    k(f"{sk}:")
    k("s_waitcnt lgkmcnt(0)")
    for e in range(8):
        k(f"v_add_f32 v{8+e}, v{8+e}, v{16+e}")
        k(f"v_add_f32 v{24+e}, v{24+e}, v{32+e}")
    for e in range(8):
        k(f"v_add_f32 v{8+e}, v{8+e}, v{24+e}")
    for j in range(4):
        k(f"v_cvt_pk_bf16_f32 v{16+j}, v{8+2*j}, v{9+2*j}")
    for j in range(4):
        k(f"v_lshlrev_b32 v{8+2*j}, 16, v{16+j}")
        k(f"v_and_b32 v{9+2*j}, 0xffff0000, v{16+j}")
        k(f"v_lshlrev_b32 v{24+2*j}, 16, v{84+j}")
        k(f"v_and_b32 v{25+2*j}, 0xffff0000, v{84+j}")
    for e in range(8):
        k(f"v_add_f32 v{8+e}, v{8+e}, v{24+e}")
    for j in range(4):
        k(f"v_cvt_pk_bf16_f32 v{16+j}, v{8+2*j}, v{9+2*j}")
    for j in range(4):
        k(f"v_lshlrev_b32 v{8+2*j}, 16, v{16+j}")
        k(f"v_and_b32 v{9+2*j}, 0xffff0000, v{16+j}")
    for e in range(8):
        k(f"v_add_f32 v{8+e}, v{8+e}, v{XF+e}")
    for j in range(4):
        k(f"v_cvt_pk_bf16_f32 v{16+j}, v{8+2*j}, v{9+2*j}")
    k("buffer_store_dwordx4 v[16:19], v1, s[44:47], s3 offen")
    k("s_endpgm")
    k(f"{lW1}:")
    k(f"s_sub_u32 s3, s2, {NC}")
    k("s_waitcnt lgkmcnt(0)")
    k.srd(32, 6, 32*L*8, WS_STAT)
    for r in range(20, 24): k(f"v_mov_b32 v{r}, -1")
    k("s_lshl_b32 s13, s3, 12")
    k("v_lshlrev_b32 v24, 4, v0")
    k("buffer_store_dwordx4 v[20:23], v24, s[32:35], s13 offen")
    transpose_body(k, 24, D, F, WS_WINT, 3)
    k(f"{lW2}:")
    k(f"s_sub_u32 s3, s2, {NC+N1}")
    k("s_waitcnt lgkmcnt(0)")
    transpose_body(k, 26, FH, D, WS_WOUTT, 3)
    k(f"{done}:")
    k("s_endpgm")
    return k, NC+N1+N2, 40960

def ht_transpose_kernel(name='htt_kernel'):
    k = Kernel(name, vgpr=40, sgpr=48)
    done = k.label('done')
    k(f"s_cmp_ge_u32 s2, 288")
    k(f"s_cbranch_scc1 {done}")
    k(f"s_load_dwordx2 s[6:7], s[0:1], {KA['ws']}")
    k("s_waitcnt lgkmcnt(0)")
    k(f"s_add_u32 s4, s6, {WS_HT}")
    k("s_addc_u32 s5, s7, 0")
    transpose_body(k, 4, D, L, WS_H, 2)
    k(f"{done}:")
    k("s_endpgm")
    return k, 288, 64*144
```

```python
import sys, math
sys.path.insert(0, 'work')
from gcore import *
import gen_v0 as v0

PAIR9 = {0: (0, 0), 1: (0, 1), 2: (32, 0), 3: (32, 1), 4: (64, None), 5: (80, 0), 6: (80, 1), 7: (112, 0), 8: (112, 1)}
PLAIN = {i: (16*i, None) for i in range(16)}
PAIR8 = {i: (32*(i//2), i & 1) for i in range(8)}
PAIR5 = {0: (0, 0), 1: (0, 1), 2: (32, 0), 3: (32, 1), 4: (64, None)}
MARK = 0xFFFFFFFF

def groups_of(tiles, tmap):
    out = []; m = 0
    while m < len(tiles):
        base, e = tmap[tiles[m]]
        if e is None:
            out.append(([m], base)); m += 1
        else:
            out.append(([m, m+1], base)); m += 2
    return out

def common_entry(k, nwg, done, decode):
    k(f"s_cmp_ge_u32 s2, {nwg}")
    k(f"s_cbranch_scc1 {done}")
    k(f"s_load_dwordx2 s[6:7], s[0:1], {KA['ws']}")
    decode(k)
    k("v_lshrrev_b32 v1, 6, v0")
    k("v_and_b32 v2, 63, v0")
    k("s_nop 0")
    k("v_readfirstlane_b32 s15, v1")

def decode_16x16(k):
    k("s_and_b32 s10, s2, 7")
    k("s_lshr_b32 s11, s2, 3")
    k("s_and_b32 s12, s10, 3")
    k("s_lshl_b32 s12, s12, 2")
    k("s_and_b32 s13, s11, 3")
    k("s_add_u32 s12, s12, s13")
    k("s_lshr_b32 s13, s10, 2")
    k("s_lshl_b32 s13, s13, 3")
    k("s_lshr_b32 s14, s11, 2")
    k("s_add_u32 s13, s13, s14")
    k("s_mov_b32 s10, s12")
    k("s_mov_b32 s11, s13")
    k("s_mul_i32 s12, s12, 144")
    k("s_lshl_b32 s13, s13, 7")

def stamp_begin(k):
    k("s_memtime s[56:57]")
    k("s_memrealtime s[48:49]")
def stamp_end(k, slotbase):
    k("s_waitcnt vmcnt(0)")
    k("s_memtime s[58:59]")
    k("s_memrealtime s[50:51]")
    k("s_waitcnt lgkmcnt(0)")
    k("s_sub_u32 s58, s58, s62")
    k("s_sub_u32 s62, s62, s60")
    k("s_sub_u32 s60, s60, s56")
    k("s_sub_u32 s50, s50, s48")
    k("v_mov_b32 v12, s60")
    k("v_mov_b32 v13, s62")
    k("v_mov_b32 v14, s58")
    k("v_mov_b32 v15, s50")
    k("s_lshl_b32 s42, s2, 4")
    k("s_add_u32 s42, s42, s15")
    k("s_lshl_b32 s42, s42, 4")
    k(f"s_add_u32 s42, s42, {slotbase}")
    k("v_mov_b32 v10, s42")
    k.srd(36, 6, 1 << 20, WS_STAMP)
    k("buffer_store_dwordx4 v[12:15], v10, s[36:39], 0 offen")

def k3_kernel(name='k3_kernel', stamps=False):
    cfg = Cfg([0,1,2,3,4], [5,6,7,8], 2, 144, 4, PLAIN, PAIR8, swap=True)
    k = Kernel(name, vgpr=160, sgpr=80)
    done = k.label('done'); lP = k.label('ldP'); lQ = k.label('ldQ'); c1 = k.label('c1')
    common_entry(k, 256, done, decode_16x16)
    if stamps: stamp_begin(k)
    k("s_waitcnt lgkmcnt(0)")
    k("s_cmp_eq_u32 s15, 8")
    k(f"s_cbranch_scc1 {lP}")
    k("s_cmp_eq_u32 s15, 9")
    k(f"s_cbranch_scc1 {lQ}")
    comp_addrs(k, cfg)
    k.srd(24, 6, FH*L*2, WS_Z2T)
    k.srd(28, 6, 32*L*8, WS_STAT)
    k("s_cmp_eq_u32 s41, 1")
    k(f"s_cbranch_scc1 {c1}")
    NST = 9
    def compute(ci):
        ACC = 16; S0 = 56; S1 = 84
        C = Comp(k, cfg, ci, S0, S1)
        nm = C.nm
        k("s_barrier")
        if stamps: k("s_memtime s[60:61]")
        for r in C.reads(0, 0, 0): k(r)
        k("s_waitcnt lgkmcnt(0)")
        C.stage(0, ACC, 1, zero=True)
        k("s_mov_b32 s43, 2")
        lp = k.label('lp')
        k(f"{lp}:")
        for i in range(4):
            C.stage((1+i) % 4, ACC, (2+i) % 4)
        k("s_sub_u32 s43, s43, 1")
        k("s_cmp_lg_u32 s43, 0")
        k(f"s_cbranch_scc1 {lp}")
        if stamps:
            k("s_memtime s[62:63]")
            k("s_waitcnt lgkmcnt(0)")
        T = S0
        k(f"v_mov_b32 v{T}, {fhex(GC2)}")
        regs = [ACC + i for i in range(nm*8)]
        k.nop(8)
        for ins in gelu_stream(regs, [T+1, T+2, T+3, T+4], T): k(ins)
        V = S1
        for n in range(2):
            for r in range(4):
                row = 4*n + r
                a0 = ACC + n*4 + r
                k(f"v_mov_b32 v{V+2*row}, v{a0}")
                k(f"v_mul_f32 v{V+2*row+1}, v{a0}, v{a0}")
                for m in range(1, nm):
                    a = ACC + (m*2+n)*4 + r
                    k(f"v_add_f32 v{V+2*row}, v{V+2*row}, v{a}")
                    k(f"v_fmac_f32 v{V+2*row+1}, v{a}, v{a}")
        masks = {3: 64, 2: 66, 1: 68, 0: 70}
        for b, sr in masks.items():
            k(f"v_and_b32 v{T+1}, {1 << b}, v3")
            k(f"v_cmp_ne_u32 s[{sr}:{sr+1}], 0, v{T+1}")
        k.nop(2)
        W = T + 8
        cnt = 16
        for b, ctl in [(3, "row_ror:8"), (2, "row_half_mirror"), (1, "quad_perm:[2,3,0,1]"), (0, "quad_perm:[1,0,3,2]")]:
            half = cnt//2; sr = masks[b]
            for j in range(half):
                k(f"v_cndmask_b32 v{W+j}, v{V+j+half}, v{V+j}, s[{sr}:{sr+1}]")
                k(f"v_cndmask_b32 v{V+j}, v{V+j}, v{V+j+half}, s[{sr}:{sr+1}]")
            k.nop(2)
            for j in range(half):
                k(f"v_add_f32_dpp v{V+j}, v{W+j}, v{V+j} {ctl} row_mask:0xf bank_mask:0xf")
            cnt = half
        k(f"v_and_b32 v{V}, 0xfffffffe, v{V}")
        k("s_lshl_b32 s42, s40, 5")
        k("s_add_u32 s42, s42, s13")
        k("s_lshl_b32 s42, s42, 3")
        k("v_lshlrev_b32 v10, 2, v2")
        k("v_add_u32 v10, s42, v10")
        k("s_lshl_b32 s43, s10, 1")
        k(f"s_add_u32 s43, s43, {ci}")
        k(f"s_lshl_b32 s43, s43, 14")
        k(f"buffer_store_dword v{V}, v10, s[28:31], s43 offen sc0 sc1")
        R = 112
        k("s_mov_b32 s45, 0x40000")
        pl = k.label('poll'); pd = k.label('pdone')
        k(f"{pl}:")
        for p in range(32):
            k(f"s_mov_b32 s44, {p << 14}")
            k(f"buffer_load_dword v{R+p}, v10, s[28:31], s44 offen sc0 sc1")
        k("s_waitcnt vmcnt(0)")
        k(f"v_and_b32 v{T+1}, v{R}, v{R+1}")
        k(f"v_or_b32 v{T+1}, v{R}, v{R+1}")
        for p in range(2, 32):
            k(f"v_or_b32 v{T+1}, v{T+1}, v{R+p}")
        k(f"v_and_b32 v{T+1}, 1, v{T+1}")
        k(f"v_cmp_ne_u32 vcc, 0, v{T+1}")
        k("s_sub_u32 s45, s45, 1")
        k("s_cmp_eq_u32 s45, 0")
        k(f"s_cbranch_scc1 {pd}")
        k.nop(4)
        k(f"s_cbranch_vccnz {pl}")
        k(f"{pd}:")
        for p in range(1, 32):
            k(f"v_add_f32 v{R}, v{R}, v{R+p}")
        k.nop(2)
        k(f"v_mov_b32_dpp v{R+1}, v{R} quad_perm:[0,0,2,2] row_mask:0xf bank_mask:0xf")
        k(f"v_mov_b32_dpp v{R+2}, v{R} quad_perm:[1,1,3,3] row_mask:0xf bank_mask:0xf")
        k(f"v_mul_f32 v{R+1}, {fhex(1.0/FH)}, v{R+1}")
        k(f"v_mul_f32 v{R+2}, {fhex(1.0/FH)}, v{R+2}")
        k(f"v_fma_f32 v{R+2}, -v{R+1}, v{R+1}, v{R+2}")
        k(f"v_max_f32 v{R+2}, 0, v{R+2}")
        v0.rbf(k, R+1, R+1)
        v0.rbf(k, R+2, R+2)
        k(f"v_add_f32 v{R+2}, {fhex(1e-5)}, v{R+2}")
        v0.rbf(k, R+2, R+2)
        k(f"v_sqrt_f32 v{R+2}, v{R+2}")
        k.nop(1)
        v0.rbf(k, R+2, R+2)
        k(f"v_rcp_f32 v{R+2}, v{R+2}")
        k.nop(1)
        k(f"v_mul_f32 v{R+1}, v{R+1}, v{R+2}")
        k.nop(2)
        for row in range(8):
            k(f"v_mov_b32_dpp v{V+2*row}, v{R+2} row_newbcast:{2*row} row_mask:0xf bank_mask:0xf")
            k(f"v_mov_b32_dpp v{V+2*row+1}, v{R+1} row_newbcast:{2*row} row_mask:0xf bank_mask:0xf")
        k("v_add_u32 v11, s12, v3")
        k("v_lshlrev_b32 v11, 12, v11")
        k("s_lshl_b32 s42, s40, 5")
        k("s_add_u32 s42, s42, s13")
        k("s_lshl_b32 s42, s42, 1")
        k("v_lshl_add_u32 v11, v4, 4, v11")
        k("v_add_u32 v11, s42, v11")
        for m in range(nm):
            O = R + 4 + 4*m
            for n in range(2):
                for r in range(4):
                    a = ACC + (m*2+n)*4 + r; row = 4*n + r
                    k(f"v_fma_f32 v{a}, v{a}, v{V+2*row}, -v{V+2*row+1}")
                for pr in range(2):
                    a = ACC + (m*2+n)*4 + 2*pr
                    k(f"v_cvt_pk_bf16_f32 v{O+2*n+pr}, v{a}, v{a+1}")
            k(f"s_mov_b32 s44, {cfg.cls[ci][m]*16*4096}")
            k(f"buffer_store_dwordx4 v[{O}:{O+3}], v11, s[24:27], s44 offen")
        if stamps: stamp_end(k, 0)
        k("s_endpgm")
    compute(0)
    k(f"{c1}:")
    compute(1)
    def setP(k):
        k.srd(16, 6, F*D*2, WS_WINT)
        k(f"s_add_u32 s44, s12, {FH}")
        k(f"s_mul_i32 s44, s44, {D*2}")
    def setQ(k):
        k.srd(16, 6, L*D*2, WS_X2)
        k(f"s_mul_i32 s44, s13, {D*2}")
    k(f"{lP}:")
    emit_loader(k, 18, cfg.p_map, cfg.P_BASE, cfg.P_SLOT, cfg.NS, [dict(nst=9, stride=D*2, setup=setP)])
    k(f"{lQ}:")
    emit_loader(k, 16, cfg.q_map, cfg.Q_BASE, cfg.Q_SLOT, cfg.NS, [dict(nst=9, stride=D*2, setup=setQ)])
    k(f"{done}:")
    k("s_endpgm")
    return k, cfg.LDS

def k4_kernel(name='k4_kernel', stamps=False):
    cfg = Cfg([0,1,2,3,4], [5,6,7,8], 2, 144, 4, PAIR9, PLAIN, swap=False)
    k = Kernel(name, vgpr=168, sgpr=80)
    done = k.label('done'); lP = k.label('ldP'); lQ = k.label('ldQ'); c1 = k.label('c1')
    k(f"s_load_dwordx2 s[4:5], s[0:1], {KA['wsp']}")
    k(f"s_load_dwordx2 s[8:9], s[0:1], {KA['bsp']}")
    common_entry(k, 256, done, decode_16x16)
    if stamps: stamp_begin(k)
    k("s_waitcnt lgkmcnt(0)")
    k("s_cmp_eq_u32 s15, 8")
    k(f"s_cbranch_scc1 {lP}")
    k("s_cmp_eq_u32 s15, 9")
    k(f"s_cbranch_scc1 {lQ}")
    comp_addrs(k, cfg)
    k.srd(28, 6, L*FH*2, WS_ZG)
    k.srd(32, 8, L*2)
    k("s_lshl_b32 s42, s40, 5")
    k("s_add_u32 s42, s42, s13")
    k("v_add_u32 v10, s42, v3")
    k("v_lshlrev_b32 v11, 1, v10")
    k("buffer_load_ushort v12, v11, s[32:35], 0 offen")
    k("buffer_load_ushort v13, v11, s[32:35], 0 offen offset:32")
    k(f"v_mul_u32_u24 v10, {FH*2}, v10")
    k("s_lshl_b32 s42, s12, 1")
    k("v_add_u32 v10, s42, v10")
    k("v_lshl_add_u32 v11, v4, 3, v10")
    k("v_lshl_add_u32 v10, v4, 4, v10")
    k("s_cmp_eq_u32 s41, 1")
    k(f"s_cbranch_scc1 {c1}")
    def compute(ci):
        A1 = 16; A2 = 56; S0 = 96; S1 = 124; T = 152
        C = Comp(k, cfg, ci, S0, S1)
        nm = C.nm
        k(f"v_mov_b32 v{T}, {fhex(GC2)}")
        k("s_barrier")
        if stamps: k("s_memtime s[60:61]")
        for r in C.reads(0, 0, 0): k(r)
        k("s_waitcnt lgkmcnt(0)")
        C.stage(0, A1, 1, zero=True)
        k("s_mov_b32 s43, 2")
        lp = k.label('lp')
        k(f"{lp}:")
        for i in range(4):
            C.stage((1+i) % 4, A1, (2+i) % 4)
        k("s_sub_u32 s43, s43, 1")
        k("s_cmp_lg_u32 s43, 0")
        k(f"s_cbranch_scc1 {lp}")
        regs = [A1 + i for i in range(nm*8)]
        ex = gelu_stream(regs, [T+1, T+2, T+3, T+4], T)
        C.stage(1, A2, 2, zero=True)
        for i in range(1, 12):
            C.stage((1+i) % 4, A2, (2+i) % 4, extra=ex, per=2 if i % 2 else 1)
        assert not ex, len(ex)
        k("s_mov_b32 s43, 5")
        lp = k.label('lp')
        k(f"{lp}:")
        for i in range(4):
            C.stage((1+i) % 4, A2, (2+i) % 4)
        k("s_sub_u32 s43, s43, 1")
        k("s_cmp_lg_u32 s43, 0")
        k(f"s_cbranch_scc1 {lp}")
        if stamps:
            k("s_memtime s[62:63]")
            k("s_waitcnt lgkmcnt(0)")
        k("s_waitcnt vmcnt(0)")
        k("v_lshlrev_b32 v12, 16, v12")
        k("v_lshlrev_b32 v13, 16, v13")
        k(f"s_mov_b32 s44, {16*FH*2}")
        k.nop(6)
        O = S0
        for gi, (ms, base) in enumerate(groups_of(cfg.cls[ci], cfg.p_map)):
            for n in range(2):
                for mi, m in enumerate(ms):
                    a = (m*2+n)*4
                    for r in range(4):
                        k(f"v_add_f32 v{A2+a+r}, v{A2+a+r}, v{12+n}")
                    for r in range(4):
                        k(f"v_mul_f32 v{A2+a+r}, v{A2+a+r}, v{A1+a+r}")
                    for pr in range(2):
                        k(f"v_cvt_pk_bf16_f32 v{O+mi*2+pr}, v{A2+a+2*pr}, v{A2+a+2*pr+1}")
                so = "s44" if n else "0"
                if len(ms) == 2:
                    k(f"buffer_store_dwordx4 v[{O}:{O+3}], v10, s[28:31], {so} offen offset:{base*2}")
                else:
                    k(f"buffer_store_dwordx2 v[{O}:{O+1}], v11, s[28:31], {so} offen offset:{base*2}")
                O += 4
        if stamps: stamp_end(k, 65536)
        k("s_endpgm")
    compute(0)
    k(f"{c1}:")
    compute(1)
    def setP1(k):
        k.srd(16, 6, F*D*2, WS_WINT)
        k(f"s_mul_i32 s44, s12, {D*2}")
    def setP2(k):
        k.srd(16, 6, FH*L*2, WS_Z2T)
        k(f"s_lshl_b32 s44, s12, 12")
    def setQ1(k):
        k.srd(16, 6, L*D*2, WS_X2)
        k(f"s_mul_i32 s44, s13, {D*2}")
    def setQ2(k):
        k.srd(16, 4, L*L*2)
        k(f"s_lshl_b32 s44, s13, 12")
    k(f"{lP}:")
    emit_loader(k, 18, cfg.p_map, cfg.P_BASE, cfg.P_SLOT, cfg.NS, [dict(nst=9, stride=D*2, setup=setP1), dict(nst=32, stride=4096, setup=setP2)])
    k(f"{lQ}:")
    emit_loader(k, 16, cfg.q_map, cfg.Q_BASE, cfg.Q_SLOT, cfg.NS, [dict(nst=9, stride=D*2, setup=setQ1), dict(nst=32, stride=4096, setup=setQ2)])
    k(f"{done}:")
    k("s_endpgm")
    return k, cfg.LDS

def decode_k5(k):
    k("s_and_b32 s10, s2, 7")
    k("s_lshr_b32 s11, s2, 3")
    k("s_and_b32 s12, s11, 7")
    k("s_lshr_b32 s13, s11, 3")
    k("s_lshl_b32 s14, s10, 2")
    k("s_add_u32 s13, s13, s14")
    k("s_mul_i32 s12, s12, 72")
    k("s_lshl_b32 s13, s13, 6")

def k5_kernel(name='k5_kernel', stamps=False):
    cfg = Cfg([0,1], [2,3,4], 1, 72, 6, PAIR5, PLAIN, swap=False)
    k = Kernel(name, vgpr=96, sgpr=80)
    done = k.label('done'); lP = k.label('ldP'); lQ = k.label('ldQ'); c1 = k.label('c1')
    k(f"s_load_dwordx2 s[4:5], s[0:1], {KA['out']}")
    common_entry(k, 256, done, decode_k5)
    if stamps: stamp_begin(k)
    k("s_waitcnt lgkmcnt(0)")
    k("s_cmp_eq_u32 s15, 8")
    k(f"s_cbranch_scc1 {lP}")
    k("s_cmp_eq_u32 s15, 9")
    k(f"s_cbranch_scc1 {lQ}")
    comp_addrs(k, cfg)
    k.srd(24, 6, L*D*2, WS_H)
    k.srd(28, 4, L*D*2)
    k("s_lshl_b32 s42, s40, 4")
    k("s_add_u32 s42, s42, s13")
    k("v_add_u32 v10, s42, v3")
    k(f"v_mul_u32_u24 v10, {D*2}, v10")
    k("s_lshl_b32 s42, s12, 1")
    k("v_add_u32 v10, s42, v10")
    k("v_lshl_add_u32 v11, v4, 3, v10")
    k("v_lshl_add_u32 v10, v4, 4, v10")
    k("v_mov_b32 v12, 0x7ffffff0")
    k("v_cmp_gt_u32 vcc, 2, v4")
    k("s_nop 1")
    k("v_cndmask_b32 v11, v12, v11, vcc")
    k("s_cmp_eq_u32 s41, 1")
    k(f"s_cbranch_scc1 {c1}")
    def compute(ci):
        ACC = 16; S0 = 32; S1 = 48; H = 64; T = 76
        C = Comp(k, cfg, ci, S0, S1)
        grp = groups_of(cfg.cls[ci], cfg.p_map)
        for gi, (ms, base) in enumerate(grp):
            if len(ms) == 2:
                k(f"buffer_load_dwordx4 v[{H+4*gi}:{H+4*gi+3}], v10, s[24:27], 0 offen offset:{base*2}")
            else:
                k(f"buffer_load_dwordx2 v[{H+4*gi}:{H+4*gi+1}], v11, s[24:27], 0 offen offset:{base*2}")
        for r in range(C.nm*4):
            k(f"v_mov_b32 v{ACC+r}, 0")
        k("s_barrier")
        if stamps: k("s_memtime s[60:61]")
        for r in C.reads(0, 0, 0): k(r)
        k("s_waitcnt lgkmcnt(0)")
        k("s_mov_b32 s43, 6")
        lp = k.label('lp')
        k(f"{lp}:")
        for i in range(6):
            C.stage(i, ACC, (i+1) % 6)
        k("s_sub_u32 s43, s43, 1")
        k("s_cmp_lg_u32 s43, 0")
        k(f"s_cbranch_scc1 {lp}")
        if stamps:
            k("s_memtime s[62:63]")
            k("s_waitcnt lgkmcnt(0)")
        k("s_waitcnt vmcnt(0)")
        k.nop(8)
        for gi, (ms, base) in enumerate(grp):
            for mi, m in enumerate(ms):
                for pr in range(2):
                    hh = H + 4*gi + 2*mi + pr
                    a = ACC + 4*m + 2*pr
                    k(f"v_cvt_pk_bf16_f32 v{T+2}, v{a}, v{a+1}")
                    k(f"v_lshlrev_b32 v{T}, 16, v{hh}")
                    k(f"v_and_b32 v{T+1}, 0xffff0000, v{hh}")
                    k(f"v_lshlrev_b32 v{a}, 16, v{T+2}")
                    k(f"v_and_b32 v{a+1}, 0xffff0000, v{T+2}")
                    k(f"v_add_f32 v{T}, v{T}, v{a}")
                    k(f"v_add_f32 v{T+1}, v{T+1}, v{a+1}")
                    k(f"v_cvt_pk_bf16_f32 v{hh}, v{T}, v{T+1}")
            if len(ms) == 2:
                k(f"buffer_store_dwordx4 v[{H+4*gi}:{H+4*gi+3}], v10, s[28:31], 0 offen offset:{base*2}")
            else:
                k(f"buffer_store_dwordx2 v[{H+4*gi}:{H+4*gi+1}], v11, s[28:31], 0 offen offset:{base*2}")
        if stamps: stamp_end(k, 131072)
        k("s_endpgm")
    compute(0)
    k(f"{c1}:")
    compute(1)
    def setP(k):
        k.srd(16, 6, D*FH*2, WS_WOUTT)
        k(f"s_mul_i32 s44, s12, {FH*2}")
    def setQ(k):
        k.srd(16, 6, L*FH*2, WS_ZG)
        k(f"s_mul_i32 s44, s13, {FH*2}")
    k(f"{lP}:")
    emit_loader(k, 9, cfg.p_map, cfg.P_BASE, cfg.P_SLOT, cfg.NS, [dict(nst=36, stride=FH*2, setup=setP)])
    k(f"{lQ}:")
    emit_loader(k, 8, cfg.q_map, cfg.Q_BASE, cfg.Q_SLOT, cfg.NS, [dict(nst=36, stride=FH*2, setup=setQ)])
    k(f"{done}:")
    k("s_endpgm")
    return k, cfg.LDS

def transpose_kernel(name, src_slot, R, Cc, dst_off, clear=None):
    k = Kernel(name, vgpr=40, sgpr=48)
    done = k.label('done')
    tr, tc = R//64, Cc//64
    k(f"s_cmp_ge_u32 s2, {tr*tc}")
    k(f"s_cbranch_scc1 {done}")
    k(f"s_load_dwordx2 s[4:5], s[0:1], {KA[src_slot]}")
    k(f"s_load_dwordx2 s[6:7], s[0:1], {KA['ws']}")
    k(f"s_mov_b32 s10, {(1<<32)//tc + 1}")
    k("s_mul_hi_u32 s11, s2, s10")
    k(f"s_mul_i32 s12, s11, {tc}")
    k("s_sub_u32 s12, s2, s12")
    k("s_waitcnt lgkmcnt(0)")
    k.srd(16, 4, R*Cc*2)
    k.srd(20, 6, R*Cc*2, dst_off)
    if clear:
        coff, cbytes = clear
        k.srd(24, 6, cbytes, coff)
        k("v_mov_b32 v20, -1"); k("v_mov_b32 v21, -1"); k("v_mov_b32 v22, -1"); k("v_mov_b32 v23, -1")
        k("s_lshl_b32 s13, s2, 12")
        k("v_lshlrev_b32 v24, 4, v0")
        k("buffer_store_dwordx4 v[20:23], v24, s[24:27], s13 offen")
    k("v_lshrrev_b32 v1, 3, v0")
    k("v_and_b32 v2, 7, v0")
    k("s_lshl_b32 s13, s11, 6")
    k("v_add_u32 v3, s13, v1")
    k(f"v_mul_u32_u24 v3, {Cc*2}, v3")
    k("s_lshl_b32 s13, s12, 7")
    k("v_lshl_add_u32 v3, v2, 4, v3")
    k("v_add_u32 v3, s13, v3")
    k(f"s_mov_b32 s14, {32*Cc*2}")
    k("buffer_load_dwordx4 v[8:11], v3, s[16:19], 0 offen")
    k("buffer_load_dwordx4 v[12:15], v3, s[16:19], s14 offen")
    PITCH = 144
    k(f"v_mul_u32_u24 v4, {8*PITCH}, v2")
    k("v_lshl_add_u32 v4, v1, 1, v4")
    k("s_waitcnt vmcnt(0)")
    for half in range(2):
        for j in range(8):
            r = 8 + 4*half + j//2
            op = "ds_write_b16_d16_hi" if j & 1 else "ds_write_b16"
            k(f"{op} v4, v{r} offset:{j*PITCH + half*64}")
    k("s_waitcnt lgkmcnt(0)")
    k("s_barrier")
    k(f"v_mul_u32_u24 v4, {PITCH}, v1")
    k("v_lshl_add_u32 v4, v2, 4, v4")
    k("ds_read_b128 v[8:11], v4")
    k(f"ds_read_b128 v[12:15], v4 offset:{32*PITCH}")
    k("s_lshl_b32 s13, s12, 6")
    k("v_add_u32 v3, s13, v1")
    k(f"v_mul_u32_u24 v3, {R*2}, v3")
    k("s_lshl_b32 s13, s11, 7")
    k("v_lshl_add_u32 v3, v2, 4, v3")
    k("v_add_u32 v3, s13, v3")
    k(f"s_mov_b32 s14, {32*R*2}")
    k("s_waitcnt lgkmcnt(0)")
    k("buffer_store_dwordx4 v[8:11], v3, s[20:23], 0 offen")
    k("buffer_store_dwordx4 v[12:15], v3, s[20:23], s14 offen")
    k(f"{done}:")
    k("s_endpgm")
    return k, tr*tc, 64*144

def main(out, stamps=False):
    import gen_a as ga
    v0.WS_U, v0.WS_KF, v0.WS_H, v0.WS_X2 = WS_U, WS_KF, WS_H, WS_X2
    k1, n1, l1 = ga.k1_kernel()
    k2, n2, l2 = ga.k2_kernel()
    ht, nh, lh = ga.ht_transpose_kernel()
    ln2 = v0.ln_kernel('ln2_kernel', 'ws', WS_H, L*D*2, D*2, 0, D, WS_X2, D*2)
    k3, lds3 = k3_kernel(stamps=stamps)
    k4, lds4 = k4_kernel(stamps=stamps)
    k5, lds5 = k5_kernel(stamps=stamps)
    ks = [k1, k2, ht, ln2, k3, k4, k5]
    launches = [('k1_kernel', n1, 256, l1), ('k2_kernel', n2, 256, l2), ('htt_kernel', nh, 256, lh),
                ('ln2_kernel', 512, 256, 0), ('k3_kernel', 256, 640, lds3), ('k4_kernel', 256, 640, lds4), ('k5_kernel', 256, 640, lds5)]
    open(out, 'w').write(build_file(ks, launches))

if __name__ == '__main__':
    main('v1.s')
    main('v1s.s', stamps=True)
```

```python
import sys, math
sys.path.insert(0, 'work')
from gcore import *
import gen_v0 as v0

PAIR9 = {0: (0, 0), 1: (0, 1), 2: (32, 0), 3: (32, 1), 4: (64, None), 5: (80, 0), 6: (80, 1), 7: (112, 0), 8: (112, 1)}
PLAIN = {i: (16*i, None) for i in range(16)}
PAIR8 = {i: (32*(i//2), i & 1) for i in range(8)}
PAIR5 = {0: (0, 0), 1: (0, 1), 2: (32, 0), 3: (32, 1), 4: (64, None)}
MARK = 0xFFFFFFFF

def groups_of(tiles, tmap):
    out = []; m = 0
    while m < len(tiles):
        base, e = tmap[tiles[m]]
        if e is None:
            out.append(([m], base)); m += 1
        else:
            out.append(([m, m+1], base)); m += 2
    return out

def common_entry(k, nwg, done, decode):
    k(f"s_cmp_ge_u32 s2, {nwg}")
    k(f"s_cbranch_scc1 {done}")
    k(f"s_load_dwordx2 s[6:7], s[0:1], {KA['ws']}")
    decode(k)
    k("v_lshrrev_b32 v1, 6, v0")
    k("v_and_b32 v2, 63, v0")
    k("s_nop 0")
    k("v_readfirstlane_b32 s15, v1")

def decode_16x16(k):
    k("s_and_b32 s10, s2, 7")
    k("s_lshr_b32 s11, s2, 3")
    k("s_and_b32 s12, s10, 3")
    k("s_lshl_b32 s12, s12, 2")
    k("s_and_b32 s13, s11, 3")
    k("s_add_u32 s12, s12, s13")
    k("s_lshr_b32 s13, s10, 2")
    k("s_lshl_b32 s13, s13, 3")
    k("s_lshr_b32 s14, s11, 2")
    k("s_add_u32 s13, s13, s14")
    k("s_mov_b32 s10, s12")
    k("s_mov_b32 s11, s13")
    k("s_mul_i32 s12, s12, 144")
    k("s_lshl_b32 s13, s13, 7")

def stamp_begin(k):
    k("s_memtime s[56:57]")
    k("s_memrealtime s[48:49]")
def stamp_end(k, slotbase):
    k("s_waitcnt vmcnt(0)")
    k("s_memtime s[58:59]")
    k("s_memrealtime s[50:51]")
    k("s_waitcnt lgkmcnt(0)")
    k("s_sub_u32 s58, s58, s62")
    k("s_sub_u32 s62, s62, s60")
    k("s_sub_u32 s60, s60, s56")
    k("s_sub_u32 s50, s50, s48")
    k("v_mov_b32 v12, s60")
    k("v_mov_b32 v13, s62")
    k("v_mov_b32 v14, s58")
    k("v_mov_b32 v15, s50")
    k("s_lshl_b32 s42, s2, 4")
    k("s_add_u32 s42, s42, s15")
    k("s_lshl_b32 s42, s42, 4")
    k(f"s_add_u32 s42, s42, {slotbase}")
    k("v_mov_b32 v10, s42")
    k.srd(36, 6, 1 << 20, WS_STAMP)
    k("buffer_store_dwordx4 v[12:15], v10, s[36:39], 0 offen")

def k3_kernel(name='k3_kernel', stamps=False):
    cfg = Cfg([0,1,2,3,4], [5,6,7,8], 2, 144, 4, PLAIN, PAIR8, swap=True)
    k = Kernel(name, vgpr=160, sgpr=80)
    done = k.label('done'); lP = k.label('ldP'); lQ = k.label('ldQ'); c1 = k.label('c1')
    common_entry(k, 256, done, decode_16x16)
    if stamps: stamp_begin(k)
    k("s_waitcnt lgkmcnt(0)")
    k("s_cmp_eq_u32 s15, 8")
    k(f"s_cbranch_scc1 {lP}")
    k("s_cmp_eq_u32 s15, 9")
    k(f"s_cbranch_scc1 {lQ}")
    comp_addrs(k, cfg)
    k.srd(24, 6, FH*L*2, WS_Z2T)
    k.srd(28, 6, 32*L*8, WS_STAT)
    k("s_cmp_eq_u32 s41, 1")
    k(f"s_cbranch_scc1 {c1}")
    NST = 9
    def compute(ci):
        ACC = 16; S0 = 56; S1 = 84
        C = Comp(k, cfg, ci, S0, S1)
        nm = C.nm
        k("s_barrier")
        if stamps: k("s_memtime s[60:61]")
        for r in C.reads(0, 0, 0): k(r)
        k("s_waitcnt lgkmcnt(0)")
        C.stage(0, ACC, 1, zero=True)
        k("s_mov_b32 s43, 2")
        lp = k.label('lp')
        k(f"{lp}:")
        for i in range(4):
            C.stage((1+i) % 4, ACC, (2+i) % 4)
        k("s_sub_u32 s43, s43, 1")
        k("s_cmp_lg_u32 s43, 0")
        k(f"s_cbranch_scc1 {lp}")
        if stamps:
            k("s_memtime s[62:63]")
            k("s_waitcnt lgkmcnt(0)")
        T = S0
        k(f"v_mov_b32 v{T}, {fhex(GC2)}")
        regs = [ACC + i for i in range(nm*8)]
        k.nop(8)
        for ins in gelu_stream(regs, [T+1, T+2, T+3, T+4], T): k(ins)
        V = S1
        for n in range(2):
            for r in range(4):
                row = 4*n + r
                a0 = ACC + n*4 + r
                k(f"v_mov_b32 v{V+2*row}, v{a0}")
                k(f"v_mul_f32 v{V+2*row+1}, v{a0}, v{a0}")
                for m in range(1, nm):
                    a = ACC + (m*2+n)*4 + r
                    k(f"v_add_f32 v{V+2*row}, v{V+2*row}, v{a}")
                    k(f"v_fmac_f32 v{V+2*row+1}, v{a}, v{a}")
        masks = {3: 64, 2: 66, 1: 68, 0: 70}
        for b, sr in masks.items():
            k(f"v_and_b32 v{T+1}, {1 << b}, v3")
            k(f"v_cmp_ne_u32 s[{sr}:{sr+1}], 0, v{T+1}")
        k.nop(2)
        W = T + 8
        cnt = 16
        for b, ctl in [(3, "row_ror:8"), (2, "row_half_mirror"), (1, "quad_perm:[2,3,0,1]"), (0, "quad_perm:[1,0,3,2]")]:
            half = cnt//2; sr = masks[b]
            for j in range(half):
                k(f"v_cndmask_b32 v{W+j}, v{V+j+half}, v{V+j}, s[{sr}:{sr+1}]")
                k(f"v_cndmask_b32 v{V+j}, v{V+j}, v{V+j+half}, s[{sr}:{sr+1}]")
            k.nop(2)
            for j in range(half):
                k(f"v_add_f32_dpp v{V+j}, v{W+j}, v{V+j} {ctl} row_mask:0xf bank_mask:0xf")
            cnt = half
        k(f"v_and_b32 v{V}, 0xfffffffe, v{V}")
        k("s_lshl_b32 s42, s40, 5")
        k("s_add_u32 s42, s42, s13")
        k("s_lshl_b32 s42, s42, 3")
        k("v_lshlrev_b32 v10, 2, v2")
        k("v_add_u32 v10, s42, v10")
        k("s_lshl_b32 s43, s10, 1")
        k(f"s_add_u32 s43, s43, {ci}")
        k(f"s_lshl_b32 s43, s43, 14")
        k(f"buffer_store_dword v{V}, v10, s[28:31], s43 offen sc0 sc1")
        R = 112
        k("s_mov_b32 s45, 0x40000")
        pl = k.label('poll'); pd = k.label('pdone')
        k(f"{pl}:")
        for p in range(32):
            k(f"s_mov_b32 s44, {p << 14}")
            k(f"buffer_load_dword v{R+p}, v10, s[28:31], s44 offen sc0 sc1")
        k("s_waitcnt vmcnt(0)")
        k(f"v_and_b32 v{T+1}, v{R}, v{R+1}")
        k(f"v_or_b32 v{T+1}, v{R}, v{R+1}")
        for p in range(2, 32):
            k(f"v_or_b32 v{T+1}, v{T+1}, v{R+p}")
        k(f"v_and_b32 v{T+1}, 1, v{T+1}")
        k(f"v_cmp_ne_u32 vcc, 0, v{T+1}")
        k("s_sub_u32 s45, s45, 1")
        k("s_cmp_eq_u32 s45, 0")
        k(f"s_cbranch_scc1 {pd}")
        k.nop(4)
        k(f"s_cbranch_vccnz {pl}")
        k(f"{pd}:")
        for p in range(1, 32):
            k(f"v_add_f32 v{R}, v{R}, v{R+p}")
        k.nop(2)
        k(f"v_mov_b32_dpp v{R+1}, v{R} quad_perm:[0,0,2,2] row_mask:0xf bank_mask:0xf")
        k(f"v_mov_b32_dpp v{R+2}, v{R} quad_perm:[1,1,3,3] row_mask:0xf bank_mask:0xf")
        k(f"v_mul_f32 v{R+1}, {fhex(1.0/FH)}, v{R+1}")
        k(f"v_mul_f32 v{R+2}, {fhex(1.0/FH)}, v{R+2}")
        k(f"v_fma_f32 v{R+2}, -v{R+1}, v{R+1}, v{R+2}")
        k(f"v_max_f32 v{R+2}, 0, v{R+2}")
        v0.rbf(k, R+1, R+1)
        v0.rbf(k, R+2, R+2)
        k(f"v_add_f32 v{R+2}, {fhex(1e-5)}, v{R+2}")
        v0.rbf(k, R+2, R+2)
        k(f"v_sqrt_f32 v{R+2}, v{R+2}")
        k.nop(1)
        v0.rbf(k, R+2, R+2)
        k(f"v_rcp_f32 v{R+2}, v{R+2}")
        k.nop(1)
        k(f"v_mul_f32 v{R+1}, v{R+1}, v{R+2}")
        k.nop(2)
        for row in range(8):
            k(f"v_mov_b32_dpp v{V+2*row}, v{R+2} row_newbcast:{2*row} row_mask:0xf bank_mask:0xf")
            k(f"v_mov_b32_dpp v{V+2*row+1}, v{R+1} row_newbcast:{2*row} row_mask:0xf bank_mask:0xf")
        k("v_add_u32 v11, s12, v3")
        k("v_lshlrev_b32 v11, 12, v11")
        k("s_lshl_b32 s42, s40, 5")
        k("s_add_u32 s42, s42, s13")
        k("s_lshl_b32 s42, s42, 1")
        k("v_lshl_add_u32 v11, v4, 4, v11")
        k("v_add_u32 v11, s42, v11")
        for m in range(nm):
            O = R + 4 + 4*m
            for n in range(2):
                for r in range(4):
                    a = ACC + (m*2+n)*4 + r; row = 4*n + r
                    k(f"v_fma_f32 v{a}, v{a}, v{V+2*row}, -v{V+2*row+1}")
                for pr in range(2):
                    a = ACC + (m*2+n)*4 + 2*pr
                    k(f"v_cvt_pk_bf16_f32 v{O+2*n+pr}, v{a}, v{a+1}")
            k(f"s_mov_b32 s44, {cfg.cls[ci][m]*16*4096}")
            k(f"buffer_store_dwordx4 v[{O}:{O+3}], v11, s[24:27], s44 offen")
        if stamps: stamp_end(k, 0)
        k("s_endpgm")
    compute(0)
    k(f"{c1}:")
    compute(1)
    def setP(k):
        k.srd(16, 6, F*D*2, WS_WINT)
        k(f"s_add_u32 s44, s12, {FH}")
        k(f"s_mul_i32 s44, s44, {D*2}")
    def setQ(k):
        k.srd(16, 6, L*D*2, WS_X2)
        k(f"s_mul_i32 s44, s13, {D*2}")
    k(f"{lP}:")
    emit_loader(k, 18, cfg.p_map, cfg.P_BASE, cfg.P_SLOT, cfg.NS, [dict(nst=9, stride=D*2, setup=setP)])
    k(f"{lQ}:")
    emit_loader(k, 16, cfg.q_map, cfg.Q_BASE, cfg.Q_SLOT, cfg.NS, [dict(nst=9, stride=D*2, setup=setQ)])
    k(f"{done}:")
    k("s_endpgm")
    return k, cfg.LDS

def k4_kernel(name='k4_kernel', stamps=False):
    cfg = Cfg([0,1,2,3,4], [5,6,7,8], 2, 144, 4, PAIR9, PLAIN, swap=False)
    k = Kernel(name, vgpr=160, sgpr=80)
    done = k.label('done'); lP = k.label('ldP'); lQ = k.label('ldQ'); c1 = k.label('c1')
    k(f"s_load_dwordx2 s[4:5], s[0:1], {KA['wsp']}")
    k(f"s_load_dwordx2 s[8:9], s[0:1], {KA['bsp']}")
    common_entry(k, 256, done, decode_16x16)
    if stamps: stamp_begin(k)
    k("s_waitcnt lgkmcnt(0)")
    k("s_cmp_eq_u32 s15, 8")
    k(f"s_cbranch_scc1 {lP}")
    k("s_cmp_eq_u32 s15, 9")
    k(f"s_cbranch_scc1 {lQ}")
    comp_addrs(k, cfg)
    k.srd(28, 6, L*FH*2, WS_ZG)
    k.srd(32, 8, L*2)
    k("s_lshl_b32 s42, s40, 5")
    k("s_add_u32 s42, s42, s13")
    k("v_add_u32 v10, s42, v3")
    k("v_lshlrev_b32 v11, 1, v10")
    k("buffer_load_ushort v12, v11, s[32:35], 0 offen")
    k("buffer_load_ushort v13, v11, s[32:35], 0 offen offset:32")
    k(f"v_mul_u32_u24 v10, {FH*2}, v10")
    k("s_lshl_b32 s42, s12, 1")
    k("v_add_u32 v10, s42, v10")
    k("v_lshl_add_u32 v11, v4, 3, v10")
    k("v_lshl_add_u32 v10, v4, 4, v10")
    k("s_cmp_eq_u32 s41, 1")
    k(f"s_cbranch_scc1 {c1}")
    def compute(ci):
        A1 = 16; A2 = 56; S0 = 96; S1 = 124; T = 152
        C = Comp(k, cfg, ci, S0, S1)
        nm = C.nm
        k(f"v_mov_b32 v{T}, {fhex(GC2)}")
        k("s_barrier")
        if stamps: k("s_memtime s[60:61]")
        for r in C.reads(0, 0, 0): k(r)
        k("s_waitcnt lgkmcnt(0)")
        C.stage(0, A1, 1, zero=True)
        k("s_mov_b32 s43, 2")
        lp = k.label('lp')
        k(f"{lp}:")
        for i in range(4):
            C.stage((1+i) % 4, A1, (2+i) % 4)
        k("s_sub_u32 s43, s43, 1")
        k("s_cmp_lg_u32 s43, 0")
        k(f"s_cbranch_scc1 {lp}")
        regs = [A1 + i for i in range(nm*8)]
        ex = gelu_stream(regs, [T+1, T+2, T+3, T+4], T)
        C.stage(1, A2, 2, zero=True)
        for i in range(1, 12):
            C.stage((1+i) % 4, A2, (2+i) % 4, extra=ex, per=2 if i % 2 else 1)
        assert not ex, len(ex)
        k("s_mov_b32 s43, 5")
        lp = k.label('lp')
        k(f"{lp}:")
        for i in range(4):
            C.stage((1+i) % 4, A2, (2+i) % 4)
        k("s_sub_u32 s43, s43, 1")
        k("s_cmp_lg_u32 s43, 0")
        k(f"s_cbranch_scc1 {lp}")
        if stamps:
            k("s_memtime s[62:63]")
            k("s_waitcnt lgkmcnt(0)")
        k("s_waitcnt vmcnt(0)")
        k("v_lshlrev_b32 v12, 16, v12")
        k("v_lshlrev_b32 v13, 16, v13")
        k(f"s_mov_b32 s44, {16*FH*2}")
        k.nop(6)
        O = S0
        for gi, (ms, base) in enumerate(groups_of(cfg.cls[ci], cfg.p_map)):
            for n in range(2):
                for mi, m in enumerate(ms):
                    a = (m*2+n)*4
                    for r in range(4):
                        k(f"v_add_f32 v{A2+a+r}, v{A2+a+r}, v{12+n}")
                    for r in range(4):
                        k(f"v_mul_f32 v{A2+a+r}, v{A2+a+r}, v{A1+a+r}")
                    for pr in range(2):
                        k(f"v_cvt_pk_bf16_f32 v{O+mi*2+pr}, v{A2+a+2*pr}, v{A2+a+2*pr+1}")
                so = "s44" if n else "0"
                if len(ms) == 2:
                    k(f"buffer_store_dwordx4 v[{O}:{O+3}], v10, s[28:31], {so} offen offset:{base*2}")
                else:
                    k(f"buffer_store_dwordx2 v[{O}:{O+1}], v11, s[28:31], {so} offen offset:{base*2}")
                O += 4
        if stamps: stamp_end(k, 65536)
        k("s_endpgm")
    compute(0)
    k(f"{c1}:")
    compute(1)
    def setP1(k):
        k.srd(16, 6, F*D*2, WS_WINT)
        k(f"s_mul_i32 s44, s12, {D*2}")
    def setP2(k):
        k.srd(16, 6, FH*L*2, WS_Z2T)
        k(f"s_lshl_b32 s44, s12, 12")
    def setQ1(k):
        k.srd(16, 6, L*D*2, WS_X2)
        k(f"s_mul_i32 s44, s13, {D*2}")
    def setQ2(k):
        k.srd(16, 4, L*L*2)
        k(f"s_lshl_b32 s44, s13, 12")
    k(f"{lP}:")
    emit_loader(k, 18, cfg.p_map, cfg.P_BASE, cfg.P_SLOT, cfg.NS, [dict(nst=9, stride=D*2, setup=setP1), dict(nst=32, stride=4096, setup=setP2)])
    k(f"{lQ}:")
    emit_loader(k, 16, cfg.q_map, cfg.Q_BASE, cfg.Q_SLOT, cfg.NS, [dict(nst=9, stride=D*2, setup=setQ1), dict(nst=32, stride=4096, setup=setQ2)])
    k(f"{done}:")
    k("s_endpgm")
    return k, cfg.LDS

def decode_k5(k):
    k("s_and_b32 s10, s2, 7")
    k("s_lshr_b32 s11, s2, 3")
    k("s_and_b32 s12, s11, 7")
    k("s_lshr_b32 s13, s11, 3")
    k("s_lshl_b32 s14, s10, 2")
    k("s_add_u32 s13, s13, s14")
    k("s_mul_i32 s12, s12, 72")
    k("s_lshl_b32 s13, s13, 6")

def k5_kernel(name='k5_kernel', stamps=False):
    cfg = Cfg([0,1], [2,3,4], 1, 72, 6, PAIR5, PLAIN, swap=False)
    k = Kernel(name, vgpr=96, sgpr=80)
    done = k.label('done'); lP = k.label('ldP'); lQ = k.label('ldQ'); c1 = k.label('c1')
    k(f"s_load_dwordx2 s[4:5], s[0:1], {KA['out']}")
    common_entry(k, 256, done, decode_k5)
    if stamps: stamp_begin(k)
    k("s_waitcnt lgkmcnt(0)")
    k("s_cmp_eq_u32 s15, 8")
    k(f"s_cbranch_scc1 {lP}")
    k("s_cmp_eq_u32 s15, 9")
    k(f"s_cbranch_scc1 {lQ}")
    comp_addrs(k, cfg)
    k.srd(24, 6, L*D*2, WS_H)
    k.srd(28, 4, L*D*2)
    k("s_lshl_b32 s42, s40, 4")
    k("s_add_u32 s42, s42, s13")
    k("v_add_u32 v10, s42, v3")
    k(f"v_mul_u32_u24 v10, {D*2}, v10")
    k("s_lshl_b32 s42, s12, 1")
    k("v_add_u32 v10, s42, v10")
    k("v_lshl_add_u32 v11, v4, 3, v10")
    k("v_lshl_add_u32 v10, v4, 4, v10")
    k("v_mov_b32 v12, 0x7ffffff0")
    k("v_cmp_gt_u32 vcc, 2, v4")
    k("s_nop 1")
    k("v_cndmask_b32 v11, v12, v11, vcc")
    k("s_cmp_eq_u32 s41, 1")
    k(f"s_cbranch_scc1 {c1}")
    def compute(ci):
        ACC = 16; S0 = 32; S1 = 48; H = 64; T = 76
        C = Comp(k, cfg, ci, S0, S1)
        grp = groups_of(cfg.cls[ci], cfg.p_map)
        for gi, (ms, base) in enumerate(grp):
            if len(ms) == 2:
                k(f"buffer_load_dwordx4 v[{H+4*gi}:{H+4*gi+3}], v10, s[24:27], 0 offen offset:{base*2}")
            else:
                k(f"buffer_load_dwordx2 v[{H+4*gi}:{H+4*gi+1}], v11, s[24:27], 0 offen offset:{base*2}")
        for r in range(C.nm*4):
            k(f"v_mov_b32 v{ACC+r}, 0")
        k("s_barrier")
        if stamps: k("s_memtime s[60:61]")
        for r in C.reads(0, 0, 0): k(r)
        k("s_waitcnt lgkmcnt(0)")
        k("s_mov_b32 s43, 6")
        lp = k.label('lp')
        k(f"{lp}:")
        for i in range(6):
            C.stage(i, ACC, (i+1) % 6)
        k("s_sub_u32 s43, s43, 1")
        k("s_cmp_lg_u32 s43, 0")
        k(f"s_cbranch_scc1 {lp}")
        if stamps:
            k("s_memtime s[62:63]")
            k("s_waitcnt lgkmcnt(0)")
        k("s_waitcnt vmcnt(0)")
        k.nop(8)
        for gi, (ms, base) in enumerate(grp):
            for mi, m in enumerate(ms):
                for pr in range(2):
                    hh = H + 4*gi + 2*mi + pr
                    a = ACC + 4*m + 2*pr
                    k(f"v_cvt_pk_bf16_f32 v{T+2}, v{a}, v{a+1}")
                    k(f"v_lshlrev_b32 v{T}, 16, v{hh}")
                    k(f"v_and_b32 v{T+1}, 0xffff0000, v{hh}")
                    k(f"v_lshlrev_b32 v{a}, 16, v{T+2}")
                    k(f"v_and_b32 v{a+1}, 0xffff0000, v{T+2}")
                    k(f"v_add_f32 v{T}, v{T}, v{a}")
                    k(f"v_add_f32 v{T+1}, v{T+1}, v{a+1}")
                    k(f"v_cvt_pk_bf16_f32 v{hh}, v{T}, v{T+1}")
            if len(ms) == 2:
                k(f"buffer_store_dwordx4 v[{H+4*gi}:{H+4*gi+3}], v10, s[28:31], 0 offen offset:{base*2}")
            else:
                k(f"buffer_store_dwordx2 v[{H+4*gi}:{H+4*gi+1}], v11, s[28:31], 0 offen offset:{base*2}")
        if stamps: stamp_end(k, 131072)
        k("s_endpgm")
    compute(0)
    k(f"{c1}:")
    compute(1)
    def setP(k):
        k.srd(16, 6, D*FH*2, WS_WOUTT)
        k(f"s_mul_i32 s44, s12, {FH*2}")
    def setQ(k):
        k.srd(16, 6, L*FH*2, WS_ZG)
        k(f"s_mul_i32 s44, s13, {FH*2}")
    k(f"{lP}:")
    emit_loader(k, 9, cfg.p_map, cfg.P_BASE, cfg.P_SLOT, cfg.NS, [dict(nst=36, stride=FH*2, setup=setP)])
    k(f"{lQ}:")
    emit_loader(k, 8, cfg.q_map, cfg.Q_BASE, cfg.Q_SLOT, cfg.NS, [dict(nst=36, stride=FH*2, setup=setQ)])
    k(f"{done}:")
    k("s_endpgm")
    return k, cfg.LDS

def transpose_kernel(name, src_slot, R, Cc, dst_off, clear=None):
    k = Kernel(name, vgpr=40, sgpr=48)
    done = k.label('done')
    tr, tc = R//64, Cc//64
    k(f"s_cmp_ge_u32 s2, {tr*tc}")
    k(f"s_cbranch_scc1 {done}")
    k(f"s_load_dwordx2 s[4:5], s[0:1], {KA[src_slot]}")
    k(f"s_load_dwordx2 s[6:7], s[0:1], {KA['ws']}")
    k(f"s_mov_b32 s10, {(1<<32)//tc + 1}")
    k("s_mul_hi_u32 s11, s2, s10")
    k(f"s_mul_i32 s12, s11, {tc}")
    k("s_sub_u32 s12, s2, s12")
    k("s_waitcnt lgkmcnt(0)")
    k.srd(16, 4, R*Cc*2)
    k.srd(20, 6, R*Cc*2, dst_off)
    if clear:
        coff, cbytes = clear
        k.srd(24, 6, cbytes, coff)
        k("v_mov_b32 v20, -1"); k("v_mov_b32 v21, -1"); k("v_mov_b32 v22, -1"); k("v_mov_b32 v23, -1")
        k("s_lshl_b32 s13, s2, 12")
        k("v_lshlrev_b32 v24, 4, v0")
        k("buffer_store_dwordx4 v[20:23], v24, s[24:27], s13 offen")
    k("v_lshrrev_b32 v1, 3, v0")
    k("v_and_b32 v2, 7, v0")
    k("s_lshl_b32 s13, s11, 6")
    k("v_add_u32 v3, s13, v1")
    k(f"v_mul_u32_u24 v3, {Cc*2}, v3")
    k("s_lshl_b32 s13, s12, 7")
    k("v_lshl_add_u32 v3, v2, 4, v3")
    k("v_add_u32 v3, s13, v3")
    k(f"s_mov_b32 s14, {32*Cc*2}")
    k("buffer_load_dwordx4 v[8:11], v3, s[16:19], 0 offen")
    k("buffer_load_dwordx4 v[12:15], v3, s[16:19], s14 offen")
    PITCH = 144
    k(f"v_mul_u32_u24 v4, {8*PITCH}, v2")
    k("v_lshl_add_u32 v4, v1, 1, v4")
    k("s_waitcnt vmcnt(0)")
    for half in range(2):
        for j in range(8):
            r = 8 + 4*half + j//2
            op = "ds_write_b16_d16_hi" if j & 1 else "ds_write_b16"
            k(f"{op} v4, v{r} offset:{j*PITCH + half*64}")
    k("s_waitcnt lgkmcnt(0)")
    k("s_barrier")
    k(f"v_mul_u32_u24 v4, {PITCH}, v1")
    k("v_lshl_add_u32 v4, v2, 4, v4")
    k("ds_read_b128 v[8:11], v4")
    k(f"ds_read_b128 v[12:15], v4 offset:{32*PITCH}")
    k("s_lshl_b32 s13, s12, 6")
    k("v_add_u32 v3, s13, v1")
    k(f"v_mul_u32_u24 v3, {R*2}, v3")
    k("s_lshl_b32 s13, s11, 7")
    k("v_lshl_add_u32 v3, v2, 4, v3")
    k("v_add_u32 v3, s13, v3")
    k(f"s_mov_b32 s14, {32*R*2}")
    k("s_waitcnt lgkmcnt(0)")
    k("buffer_store_dwordx4 v[8:11], v3, s[20:23], 0 offen")
    k("buffer_store_dwordx4 v[12:15], v3, s[20:23], s14 offen")
    k(f"{done}:")
    k("s_endpgm")
    return k, tr*tc, 64*144

def main(out, stamps=False, timeline=False):
    import gen_a as ga
    v0.WS_U, v0.WS_KF, v0.WS_H, v0.WS_X2 = WS_U, WS_KF, WS_H, WS_X2
    k1, n1, l1 = ga.k1_kernel()
    k2, n2, l2 = ga.k2_kernel()
    ht, nh, lh = ga.ht_transpose_kernel()
    ln2 = v0.ln_kernel('ln2_kernel', 'ws', WS_H, L*D*2, D*2, 0, D, WS_X2, D*2)
    k3, lds3 = k3_kernel(stamps=stamps)
    k4, lds4 = k4_kernel(stamps=stamps)
    k5, lds5 = k5_kernel(stamps=stamps)
    ks = [k1, k2, ht, ln2, k3, k4, k5]
    launches = [('k1_kernel', n1, 256, l1), ('k2_kernel', n2, 256, l2), ('htt_kernel', nh, 256, lh),
                ('ln2_kernel', 512, 256, 0), ('k3_kernel', 256, 640, lds3), ('k4_kernel', 256, 640, lds4), ('k5_kernel', 256, 640, lds5)]
    if timeline:
        import tl
        for i, kk in enumerate(ks): tl.instrument(kk, i)
        ks.append(tl.blocker_kernel())
        launches = [('blocker_kernel', 1, 64, 0)] + launches
    open(out, 'w').write(build_file(ks, launches))

if __name__ == '__main__':
    main('v1.s')
    main('v1s.s', stamps=True)
    main('v1t.s', timeline=True)
```

```python
import sys, math
sys.path.insert(0, 'work')
from gcore import *
import gen_v0 as v0
rbf = v0.rbf

WS_ST1 = 31*MB
KR_PITCH = 4224
INV2PI = 1.0/(2*math.pi)

HI_LIST = list(range(8)) + [256, 258, 260, 262, 512, 516, 768, 772, 1024, 1280, 1536, 1792, 2048]

def transpose_body(k, src_base, R, Cc, dst_off, id_sgpr, PITCH=144):
    tc = Cc//64
    k(f"s_mov_b32 s10, {(1<<32)//tc + 1}")
    k(f"s_mul_hi_u32 s11, s{id_sgpr}, s10")
    k(f"s_mul_i32 s12, s11, {tc}")
    k(f"s_sub_u32 s12, s{id_sgpr}, s12")
    k.srd(16, src_base, R*Cc*2)
    k.srd(20, 6, R*Cc*2, dst_off)
    k("v_lshrrev_b32 v1, 3, v0")
    k("v_and_b32 v2, 7, v0")
    k("s_lshl_b32 s13, s11, 6")
    k("v_add_u32 v3, s13, v1")
    k(f"v_mul_u32_u24 v3, {Cc*2}, v3")
    k("s_lshl_b32 s13, s12, 7")
    k("v_lshl_add_u32 v3, v2, 4, v3")
    k("v_add_u32 v3, s13, v3")
    k(f"s_mov_b32 s14, {32*Cc*2}")
    k("buffer_load_dwordx4 v[8:11], v3, s[16:19], 0 offen")
    k("buffer_load_dwordx4 v[12:15], v3, s[16:19], s14 offen")
    k(f"v_mul_u32_u24 v4, {8*PITCH}, v2")
    k("v_lshl_add_u32 v4, v1, 1, v4")
    k(f"v_mul_u32_u24 v5, {PITCH}, v1")
    k("v_lshl_add_u32 v5, v2, 4, v5")
    k("s_lshl_b32 s13, s12, 6")
    k("v_add_u32 v3, s13, v1")
    k(f"v_mul_u32_u24 v3, {R*2}, v3")
    k("s_lshl_b32 s13, s11, 7")
    k("v_lshl_add_u32 v3, v2, 4, v3")
    k("v_add_u32 v3, s13, v3")
    k(f"s_mov_b32 s14, {32*R*2}")
    for half in range(2):
        k(f"s_waitcnt vmcnt({1-half})")
        for j in range(8):
            r = 8 + 4*half + j//2
            op = "ds_write_b16_d16_hi" if j & 1 else "ds_write_b16"
            k(f"{op} v4, v{r} offset:{j*PITCH + half*64}")
    k("s_waitcnt lgkmcnt(0)")
    k("s_barrier")
    k("ds_read_b128 v[8:11], v5")
    k(f"ds_read_b128 v[12:15], v5 offset:{32*PITCH}")
    k("s_waitcnt lgkmcnt(1)")
    k("buffer_store_dwordx4 v[8:11], v3, s[20:23], 0 offen")
    k("s_waitcnt lgkmcnt(0)")
    k("buffer_store_dwordx4 v[12:15], v3, s[20:23], s14 offen")
    k("s_endpgm")

def cexp(k, dr, di, lr2, li_rev, mult, t):
    k(f"v_mul_f32 v{t}, {fhex(float(mult))}, v{lr2}")
    k(f"v_mul_f32 v{di}, {fhex(float(mult))}, v{li_rev}")
    k(f"v_exp_f32 v{t}, v{t}")
    k(f"v_fract_f32 v{di}, v{di}")
    k(f"v_cos_f32 v{dr}, v{di}")
    k(f"v_sin_f32 v{di}, v{di}")
    k("s_nop 0")
    k(f"v_mul_f32 v{dr}, v{dr}, v{t}")
    k(f"v_mul_f32 v{di}, v{di}, v{t}")

def cmul(k, dr, di, ar, ai, br, bi):
    k(f"v_mul_f32 v{dr}, v{ar}, v{br}")
    k(f"v_mul_f32 v{di}, v{ar}, v{bi}")
    k(f"v_fma_f32 v{dr}, -v{ai}, v{bi}, v{dr}")
    k(f"v_fmac_f32 v{di}, v{ai}, v{br}")

def k1_kernel(name='k1_kernel', prefetch=True):
    k = Kernel(name, vgpr=72, sgpr=64)
    done = k.label('done'); lS = k.label('stats'); lT = k.label('xt'); lX = k.label('xw'); lJ = k.label('join')
    NK, NS_, NT, NPF = D, 128, 288, (256 if prefetch else 0)
    lPF = k.label('pf')
    k(f"s_cmp_ge_u32 s2, {NK+NS_+NT+NPF}")
    k(f"s_cbranch_scc1 {done}")
    k(f"s_cmp_ge_u32 s2, {NK+NS_+NT}")
    k(f"s_cbranch_scc1 {lPF}")
    k("s_load_dwordx16 s[16:31], s[0:1], 0")
    k(f"s_load_dwordx2 s[6:7], s[0:1], {KA['ws']}")
    k(f"s_cmp_ge_u32 s2, {NK+NS_}")
    k(f"s_cbranch_scc1 {lT}")
    k(f"s_cmp_ge_u32 s2, {NK}")
    k(f"s_cbranch_scc1 {lS}")
    XP = 528
    XA, YB = 0, 21*XP
    TB = 0
    k("v_and_b32 v1, 127, v0")
    k("v_lshlrev_b32 v2, 1, v1")
    k("s_lshl_b32 s3, s2, 8")
    k("v_add_u32 v2, s3, v2")
    k("s_lshl_b32 s3, s2, 1")
    k("v_mov_b32 v3, s3")
    k("v_lshrrev_b32 v4, 6, v0")
    k("s_waitcnt lgkmcnt(0)")
    k("v_readfirstlane_b32 s15, v4")
    for i in range(6):
        k.srd(32+4*i, 18+2*i, D*N*2)
    k.srd(56, 30, D*2)
    k("buffer_load_ushort v16, v3, s[56:59], 0 offen")
    for i in range(6):
        k(f"buffer_load_ushort v{10+i}, v2, s[{32+4*i}:{35+4*i}], 0 offen")
    G = 56
    k("v_lshlrev_b32 v5, 3, v0")
    for e in range(8):
        k(f"v_sub_u32 v6, {2047-e}, v5")
        k("v_cvt_f32_u32 v6, v6")
        k("v_cvt_pk_bf16_f32 v6, v6, v6")
        k("v_lshlrev_b32 v6, 16, v6")
        k("v_cvt_u32_f32 v6, v6")
        k("v_lshrrev_b32 v7, 8, v6")
        k("v_and_b32 v8, 7, v6")
        k("v_lshl_add_u32 v7, v7, 3, v8")
        k("v_bfe_u32 v8, v6, 3, 5")
        k("v_lshlrev_b32 v8, 1, v8")
        k(f"v_lshl_add_u32 v{G+e}, v7, 6, v8")
    k("s_waitcnt vmcnt(0)")
    for i in range(7):
        k(f"v_lshlrev_b32 v{10+i}, 16, v{10+i}")
    Lhi = struct.unpack('<f', struct.pack('<f', LOG2E))[0]
    Llo = LOG2E - Lhi
    k(f"s_mov_b32 s8, {fhex(Lhi)}")
    k(f"s_mov_b32 s9, {fhex(Llo)}")
    k("v_mul_f32 v17, s8, v16")
    k("v_fma_f32 v18, v16, s8, -v17")
    k("v_fma_f32 v18, v16, s9, v18")
    k("v_exp_f32 v17, v17")
    k(f"v_mul_f32 v18, {fhex(math.log(2.0))}, v18")
    k("v_fma_f32 v17, v17, v18, v17")
    rbf(k, 17, 17)
    k("v_mul_f32 v20, v17, v10")
    k("v_mul_f32 v21, v17, v11")
    k(f"v_mul_f32 v20, {fhex(LOG2E)}, v20")
    k(f"v_mul_f32 v21, {fhex(INV2PI)}, v21")
    k("v_lshlrev_b32 v9, 2, v1")
    k("s_cmp_ge_u32 s15, 2")
    k(f"s_cbranch_scc1 {lX}")
    cexp(k, 22, 23, 20, 21, 8, 24)
    k("v_mov_b32 v30, 0x00003f80")
    k(f"ds_write_b32 v9, v30 offset:{YB}")
    k("v_cvt_pk_bf16_f32 v30, v22, v23")
    k(f"ds_write_b32 v9, v30 offset:{YB+XP}")
    cmul(k, 24, 25, 22, 23, 22, 23)
    k("v_cvt_pk_bf16_f32 v30, v24, v25")
    k(f"ds_write_b32 v9, v30 offset:{YB+2*XP}")
    cur = {1: (22, 23), 0: (24, 25)}
    free = [(26, 27), (28, 29), (32, 33), (34, 35)]
    fi = 0
    for b in range(3, 32):
        a = cur[b & 1]
        d_ = free[fi % 4]; fi += 1
        cmul(k, d_[0], d_[1], a[0], a[1], 24, 25)
        k(f"v_cvt_pk_bf16_f32 v{30 + (b&1)}, v{d_[0]}, v{d_[1]}")
        k(f"ds_write_b32 v9, v{30 + (b&1)} offset:{YB+b*XP}")
        cur[b & 1] = d_
    k(f"s_branch {lJ}")
    k(f"{lX}:")
    k("v_mul_f32 v12, v17, v12")
    k("v_mul_f32 v13, v17, v13")
    X0 = 24
    cmul(k, X0, X0+1, 14, 15, 12, 13)
    cexp(k, 22, 23, 20, 21, 1, 40)
    cexp(k, 42, 43, 20, 21, 256, 40)
    cexp(k, 44, 45, 20, 21, 512, 40)
    cexp(k, 46, 47, 20, 21, 1024, 40)
    def putX(row, r, i_):
        k(f"v_cvt_pk_bf16_f32 v{40 + (row&1)}, v{r}, -v{i_}")
        k(f"ds_write_b32 v9, v{40 + (row&1)} offset:{XA+row*XP}")
    putX(0, X0, X0+1)
    for h in range(1, 8):
        cmul(k, X0+2*h, X0+2*h+1, X0+2*h-2, X0+2*h-1, 22, 23)
        putX(h, X0+2*h, X0+2*h+1)
    for i, h in enumerate((0, 2, 4, 6)):
        cmul(k, 48, 49, X0+2*h, X0+2*h+1, 42, 43)
        putX(8+i, 48, 49)
    for i, h in enumerate((0, 4)):
        cmul(k, 48, 49, X0+2*h, X0+2*h+1, 44, 45)
        putX(12+i, 48, 49)
        cmul(k, 50, 51, 48, 49, 42, 43)
        putX(14+i, 50, 51)
    cmul(k, 48, 49, X0, X0+1, 46, 47)
    putX(16, 48, 49)
    cmul(k, 50, 51, 48, 49, 42, 43)
    putX(17, 50, 51)
    cmul(k, 50, 51, 48, 49, 44, 45)
    putX(18, 50, 51)
    cmul(k, 52, 53, 50, 51, 42, 43)
    putX(19, 52, 53)
    cmul(k, 52, 53, 48, 49, 46, 47)
    putX(20, 52, 53)
    k(f"{lJ}:")
    k("v_and_b32 v2, 15, v0")
    k("v_bfe_u32 v3, v0, 4, 2")
    k(f"v_mul_u32_u24 v4, {XP}, v2")
    k("v_lshl_add_u32 v4, v3, 4, v4")
    k("s_lshr_b32 s3, s15, 1")
    k(f"s_mul_i32 s3, s3, {16*XP}")
    k("v_add_u32 v5, s3, v4")
    k("s_and_b32 s4, s15, 1")
    k(f"s_mul_i32 s5, s4, {16*XP}")
    k(f"s_add_u32 s5, s5, {YB}")
    k("v_add_u32 v6, s5, v4")
    k("s_waitcnt lgkmcnt(0)")
    k("s_barrier")
    for ks in range(4):
        k(f"ds_read_b128 v[{8+8*ks}:{11+8*ks}], v6 offset:{64*ks}")
        k(f"ds_read_b128 v[{12+8*ks}:{15+8*ks}], v5 offset:{64*ks}")
    for ks in range(8):
        r = 8 + 8*(ks % 4)
        k(f"s_waitcnt lgkmcnt({6 if ks < 5 else (7-ks)*2})")
        c = "0" if ks == 0 else "v[40:43]"
        k(f"v_mfma_f32_16x16x32_bf16 v[40:43], v[{r}:{r+3}], v[{r+4}:{r+7}], {c}")
        if ks < 4:
            k(f"ds_read_b128 v[{r}:{r+3}], v6 offset:{64*(ks+4)}")
            k(f"ds_read_b128 v[{r+4}:{r+7}], v5 offset:{64*(ks+4)}")
    k("s_lshr_b32 s3, s15, 1")
    k("s_lshl_b32 s3, s3, 4")
    k("v_add_u32 v7, s3, v2")
    k("v_mov_b32 v44, v7")
    k("v_lshlrev_b32 v45, 1, v7")
    k("v_subrev_u32 v45, 8, v45")
    k("v_max_i32 v44, v44, v45")
    k("v_lshlrev_b32 v45, 2, v7")
    k("v_subrev_u32 v45, 32, v45")
    k("v_max_i32 v44, v44, v45")
    k("v_lshlrev_b32 v45, 3, v7")
    k("v_subrev_u32 v45, 96, v45")
    k("v_max_i32 v44, v44, v45")
    k("v_min_i32 v44, 71, v44")
    k("v_lshlrev_b32 v44, 6, v44")
    k("v_lshl_add_u32 v44, v3, 3, v44")
    k("s_lshl_b32 s4, s4, 5")
    k("v_add_u32 v44, s4, v44")
    k("s_barrier")
    k("v_cvt_pk_bf16_f32 v46, v40, v41")
    k("v_cvt_pk_bf16_f32 v47, v42, v43")
    k(f"ds_write_b64 v44, v[46:47] offset:{TB}")
    k("s_waitcnt lgkmcnt(0)")
    k("s_barrier")
    for e in range(8):
        k(f"ds_read_u16 v{8+e}, v{G+e} offset:{TB}")
    k.srd(32, 6, D*KR_PITCH, WS_KH)
    k(f"s_mul_i32 s3, s2, {KR_PITCH}")
    k("v_lshlrev_b32 v5, 4, v0")
    k("v_mov_b32 v20, 0"); k("v_mov_b32 v21, 0"); k("v_mov_b32 v22, 0"); k("v_mov_b32 v23, 0")
    k("s_waitcnt lgkmcnt(0)")
    for j in range(4):
        k(f"v_lshl_or_b32 v{16+j}, v{9+2*j}, 16, v{8+2*j}")
    k("buffer_store_dwordx4 v[16:19], v5, s[32:35], s3 offen")
    k("v_cmp_gt_u32 vcc, 8, v0")
    k("s_and_saveexec_b64 s[4:5], vcc")
    k(f"s_cbranch_execz {done}")
    k("s_add_u32 s3, s3, 4096")
    k("buffer_store_dwordx4 v[20:23], v5, s[32:35], s3 offen")
    k("s_endpgm")
    k(f"{lS}:")
    k(f"s_sub_u32 s3, s2, {NK}")
    k("s_lshl_b32 s3, s3, 4")
    k("v_lshrrev_b32 v1, 4, v0")
    k("v_add_u32 v1, s3, v1")
    k("v_and_b32 v2, 15, v0")
    k(f"v_mul_u32_u24 v3, {D*2}, v1")
    k("v_lshl_add_u32 v3, v2, 3, v3")
    k("s_waitcnt lgkmcnt(0)")
    k.srd(32, 16, L*D*2)
    k.srd(36, 6, L*8, WS_ST1)
    for q in range(9):
        k(f"buffer_load_dwordx2 v[{8+2*q}:{9+2*q}], v3, s[32:35], 0 offen offset:{128*q}")
    X = 30
    k("v_mov_b32 v4, 0")
    for q in range(9):
        k(f"s_waitcnt vmcnt({8-q})")
        for j in range(2):
            r = 8 + 2*q + j
            k(f"v_lshlrev_b32 v{X+4*q+2*j}, 16, v{r}")
            k(f"v_and_b32 v{X+4*q+2*j+1}, 0xffff0000, v{r}")
            k(f"v_add_f32 v4, v4, v{X+4*q+2*j}")
            k(f"v_add_f32 v4, v4, v{X+4*q+2*j+1}")
    def red16(v, t):
        for ctl in ["quad_perm:[1,0,3,2]", "quad_perm:[2,3,0,1]", "row_half_mirror", "row_mirror"]:
            k.nop(2)
            k(f"v_add_f32_dpp v{v}, v{v}, v{v} {ctl} row_mask:0xf bank_mask:0xf")
    red16(4, 5)
    k(f"v_mul_f32 v4, {fhex(1.0/D)}, v4")
    k("v_mov_b32 v6, 0")
    k("v_mov_b32 v7, 0")
    for i in range(36):
        k(f"v_sub_f32 v{X+i}, v{X+i}, v4")
    for i in range(36):
        k(f"v_fmac_f32 v{6 + (i&1)}, v{X+i}, v{X+i}")
    k("v_add_f32 v6, v6, v7")
    red16(6, 5)
    k(f"v_mul_f32 v6, {fhex(1.0/D)}, v6")
    rbf(k, 4, 4)
    rbf(k, 6, 6)
    k(f"v_add_f32 v6, {fhex(1e-5)}, v6")
    rbf(k, 6, 6)
    k("v_sqrt_f32 v6, v6")
    k.nop(1)
    rbf(k, 6, 6)
    k("v_rcp_f32 v5, v6")
    k("v_lshlrev_b32 v3, 3, v1")
    k("v_cmp_eq_u32 vcc, 0, v2")
    k("s_and_saveexec_b64 s[4:5], vcc")
    k("buffer_store_dwordx2 v[4:5], v3, s[36:39], 0 offen")
    k("s_endpgm")
    k(f"{lT}:")
    k(f"s_sub_u32 s3, s2, {NK+NS_}")
    k("s_waitcnt lgkmcnt(0)")
    k("s_mov_b32 s4, s16")
    k("s_mov_b32 s5, s17")
    transpose_body(k, 4, L, D, WS_XT, 3)
    k(f"{lPF}:")
    k(f"s_load_dwordx2 s[4:5], s[0:1], {KA['wsp']}")
    k(f"s_sub_u32 s3, s2, {NK+NS_+NT}")
    k("s_lshl_b32 s3, s3, 15")
    k("v_lshlrev_b32 v1, 4, v0")
    k("s_waitcnt lgkmcnt(0)")
    k.srd(8, 4, L*L*2)
    for j in range(8):
        k(f"buffer_load_dwordx4 v[{8+4*j}:{11+4*j}], v1, s[8:11], s3 offen")
        k("s_add_u32 s3, s3, 4096")
    k("s_waitcnt vmcnt(0)")
    k("s_endpgm")
    k(f"{done}:")
    k("s_endpgm")
    return k, NK+NS_+NT+NPF, (21+32)*528

CP = 4160
UB = 8*CP
UP = 160
YP = 272

def k2_kernel(name='k2_kernel', clear_bytes=32*L*8, cw_off=None):
    k = Kernel(name, vgpr=112, sgpr=64)
    done = k.label('done'); lW1 = k.label('w1'); lW2 = k.label('w2')
    NC, N1, N2, N3 = D, 9*72, 36*9, (72 if cw_off else 0)
    lCW = k.label('cw')
    k(f"s_cmp_ge_u32 s2, {NC+N1+N2+N3}")
    k(f"s_cbranch_scc1 {done}")
    k(f"s_load_dwordx2 s[6:7], s[0:1], {KA['ws']}")
    k(f"s_load_dwordx2 s[8:9], s[0:1], {KA['Dskip']}")
    k(f"s_load_dwordx2 s[24:25], s[0:1], {KA['win']}")
    k(f"s_load_dwordx2 s[26:27], s[0:1], {KA['wout']}")
    k(f"s_cmp_ge_u32 s2, {NC+N1+N2}")
    k(f"s_cbranch_scc1 {lCW}")
    k(f"s_cmp_ge_u32 s2, {NC+N1}")
    k(f"s_cbranch_scc1 {lW2}")
    k(f"s_cmp_ge_u32 s2, {NC}")
    k(f"s_cbranch_scc1 {lW1}")
    k("v_lshlrev_b32 v1, 4, v0")
    k("v_lshlrev_b32 v2, 6, v0")
    k("v_lshrrev_b32 v3, 6, v0")
    k("s_lshl_b32 s3, s2, 12")
    k(f"s_mul_i32 s4, s2, {KR_PITCH}")
    k("s_lshl_b32 s5, s2, 1")
    k("v_mov_b32 v4, s5")
    k("v_readfirstlane_b32 s15, v3")
    k("s_waitcnt lgkmcnt(0)")
    k.srd(28, 6, D*KR_PITCH, WS_KH)
    k.srd(32, 6, D*L*2, WS_XT)
    k.srd(36, 6, L*8, WS_ST1)
    k.srd(40, 8, D*2)
    k.srd(44, 6, D*L*2, WS_HT)
    k("buffer_load_dwordx4 v[8:11], v1, s[28:31], s4 offen")
    k("buffer_load_dwordx4 v[12:15], v1, s[28:31], s4 offen offset:16")
    k("buffer_load_dwordx4 v[16:19], v1, s[32:35], s3 offen")
    for j in range(4):
        k(f"buffer_load_dwordx4 v[{20+4*j}:{23+4*j}], v2, s[36:39], 0 offen offset:{16*j}")
    k("buffer_load_ushort v36, v4, s[40:43], 0 offen")
    for r in range(40, 44): k(f"v_mov_b32 v{r}, 0")
    k("v_cmp_gt_u32 vcc, 160, v0")
    k("s_and_saveexec_b64 s[10:11], vcc")
    k(f"ds_write_b128 v1, v[40:43] offset:{UB}")
    k("s_mov_b64 exec, s[10:11]")
    k("v_lshrrev_b32 v5, 2, v0")
    k(f"v_mul_u32_u24 v5, {CP}, v5")
    k("v_and_b32 v6, 3, v0")
    k("v_lshl_add_u32 v5, v6, 4, v5")
    k("v_cmp_gt_u32 vcc, 32, v0")
    k("s_and_saveexec_b64 s[10:11], vcc")
    k("ds_write_b128 v5, v[40:43] offset:4096")
    k("s_mov_b64 exec, s[10:11]")
    k("s_waitcnt vmcnt(6)")
    E, O, O2 = 44, 52, 60
    for j in range(6): k(f"v_mov_b32 v{E+j}, v{9+j}")
    for j in range(6): k(f"v_alignbit_b32 v{O+j}, v{9+j}, v{8+j}, 16")
    for j in range(6): k(f"v_alignbit_b32 v{O2+j}, v{10+j}, v{9+j}, 16")
    src = {0: 8, 4: 10, 2: E, 6: E+2, 1: O, 5: O+2, 3: O2, 7: O2+2}
    for c in range(8):
        k(f"ds_write_b128 v1, v[{src[c]}:{src[c]+3}] offset:{c*CP}")
    k("s_waitcnt vmcnt(0)")
    XF = 68
    UF = 76
    for j in range(4):
        k(f"v_lshlrev_b32 v{XF+2*j}, 16, v{16+j}")
        k(f"v_and_b32 v{XF+2*j+1}, 0xffff0000, v{16+j}")
    for e in range(8):
        k(f"v_sub_f32 v{UF+e}, v{XF+e}, v{20+2*e}")
    for j in range(4):
        k(f"v_cvt_pk_bf16_f32 v{40+j}, v{UF+2*j}, v{UF+2*j+1}")
    for j in range(4):
        k(f"v_lshlrev_b32 v{UF+2*j}, 16, v{40+j}")
        k(f"v_and_b32 v{UF+2*j+1}, 0xffff0000, v{40+j}")
    for e in range(8):
        k(f"v_mul_f32 v{UF+e}, v{UF+e}, v{21+2*e}")
    for j in range(4):
        k(f"v_cvt_pk_bf16_f32 v{40+j}, v{UF+2*j}, v{UF+2*j+1}")
    k("v_lshrrev_b32 v5, 3, v0")
    k(f"v_mul_u32_u24 v5, {UP}, v5")
    k("v_and_b32 v6, 7, v0")
    k("v_lshl_add_u32 v5, v6, 4, v5")
    k(f"ds_write_b128 v5, v[40:43] offset:{UB + 16*UP}")
    k("v_lshlrev_b32 v36, 16, v36")
    for j in range(4):
        k(f"v_lshlrev_b32 v{UF+2*j}, 16, v{40+j}")
        k(f"v_and_b32 v{UF+2*j+1}, 0xffff0000, v{40+j}")
    for e in range(8):
        k(f"v_mul_f32 v{UF+e}, v{UF+e}, v36")
    for j in range(4):
        k(f"v_cvt_pk_bf16_f32 v{84+j}, v{UF+2*j}, v{UF+2*j+1}")
    k("v_and_b32 v2, 15, v0")
    k("v_bfe_u32 v3, v0, 4, 2")
    k("v_and_b32 v5, 7, v2")
    k("v_sub_u32 v5, 7, v5")
    k(f"v_mul_u32_u24 v5, {CP}, v5")
    k("v_lshrrev_b32 v6, 3, v2")
    k("v_sub_u32 v6, v3, v6")
    k("v_add_u32 v6, 1, v6")
    k("v_lshl_add_u32 v5, v6, 4, v5")
    k(f"v_mul_u32_u24 v6, {UP}, v2")
    k("v_lshl_add_u32 v6, v3, 4, v6")
    k(f"v_add_u32 v6, {UB}, v6")
    k("s_waitcnt lgkmcnt(0)")
    k("s_barrier")
    ACC = 8
    AF = 40
    BF = 88
    ranges = [(0, 12), (12, 24), (24, 40), (40, 64)]
    labs = [k.label('cw') for _ in range(4)]
    ljoin = k.label('cj')
    for w in range(1, 4):
        k(f"s_cmp_eq_u32 s15, {w}")
        k(f"s_cbranch_scc1 {labs[w]}")
    def ra(phi):
        r = AF + 4*(phi % 6)
        return f"ds_read_b128 v[{r}:{r+3}], v5 offset:{32*(127-phi)}"
    def rb(kap, nt):
        r = BF + 8*(kap & 1) + 4*nt
        lam = kap >> 1
        off = (16*nt + 16 - lam)*UP + (64 if kap % 2 == 0 else 0)
        return f"ds_read_b128 v[{r}:{r+3}], v6 offset:{off}"
    for w in range(4):
        k(f"{labs[w]}:")
        k0, k1_ = ranges[w]
        def nts(kap): return [0, 1] if kap < 32 else [1]
        def loads(kap, first):
            out = []
            phis = [2*kap - 2 + mt for mt in (range(4) if first else (2, 3))]
            for nt in nts(kap): out.append(rb(kap, nt))
            for p in phis:
                if p >= 0: out.append(ra(p))
            return out
        inited = set()
        for ins in loads(k0, True): k(ins)
        for kap in range(k0, k1_):
            k("s_waitcnt lgkmcnt(0)")
            nxt = loads(kap+1, False) if kap+1 < k1_ else []
            ms = []
            for mt in range(4):
                phi = 2*kap - 2 + mt
                if phi < 0: continue
                for nt in nts(kap):
                    a = ACC + (mt*2+nt)*4
                    ar = AF + 4*(phi % 6); br = BF + 8*(kap & 1) + 4*nt
                    c = f"v[{a}:{a+3}]" if (mt, nt) in inited else "0"
                    inited.add((mt, nt))
                    ms.append(f"v_mfma_f32_16x16x32_bf16 v[{a}:{a+3}], v[{ar}:{ar+3}], v[{br}:{br+3}], {c}")
            for i_, m in enumerate(ms):
                k(m)
                if i_ < len(nxt): k(nxt[i_])
            for ins in nxt[len(ms):]: k(ins)
        k(f"v_mul_u32_u24 v7, {YP}, v2")
        k("v_lshl_add_u32 v7, v3, 4, v7")
        k("s_barrier")
        k.nop(8)
        for mt in range(4):
            for nt in range(2):
                if (mt, nt) not in inited: continue
                a = ACC + (mt*2+nt)*4
                off = w*32*YP + 16*nt*YP + 64*mt - (16*YP if w == 3 else 0)
                k(f"ds_write_b128 v7, v[{a}:{a+3}] offset:{off}")
        if w < 3: k(f"s_branch {ljoin}")
    k(f"{ljoin}:")
    k("v_lshrrev_b32 v5, 3, v0")
    k(f"v_mul_u32_u24 v5, {YP}, v5")
    k("v_and_b32 v6, 7, v0")
    k("v_lshl_add_u32 v5, v6, 5, v5")
    k("s_waitcnt lgkmcnt(0)")
    k("s_barrier")
    for w in range(3):
        k(f"ds_read_b128 v[{8+8*w}:{11+8*w}], v5 offset:{w*32*YP}")
        k(f"ds_read_b128 v[{12+8*w}:{15+8*w}], v5 offset:{w*32*YP+16}")
    for r in range(32, 40): k(f"v_mov_b32 v{r}, 0")
    sk = k.label('sk')
    k("s_cmp_lt_u32 s15, 2")
    k(f"s_cbranch_scc1 {sk}")
    k(f"ds_read_b128 v[32:35], v5 offset:{3*32*YP - 16*YP}")
    k(f"ds_read_b128 v[36:39], v5 offset:{3*32*YP - 16*YP + 16}")
    k(f"{sk}:")
    k("s_waitcnt lgkmcnt(0)")
    for e in range(8):
        k(f"v_add_f32 v{8+e}, v{8+e}, v{16+e}")
        k(f"v_add_f32 v{24+e}, v{24+e}, v{32+e}")
    for e in range(8):
        k(f"v_add_f32 v{8+e}, v{8+e}, v{24+e}")
    for j in range(4):
        k(f"v_cvt_pk_bf16_f32 v{16+j}, v{8+2*j}, v{9+2*j}")
    for j in range(4):
        k(f"v_lshlrev_b32 v{8+2*j}, 16, v{16+j}")
        k(f"v_and_b32 v{9+2*j}, 0xffff0000, v{16+j}")
        k(f"v_lshlrev_b32 v{24+2*j}, 16, v{84+j}")
        k(f"v_and_b32 v{25+2*j}, 0xffff0000, v{84+j}")
    for e in range(8):
        k(f"v_add_f32 v{8+e}, v{8+e}, v{24+e}")
    for j in range(4):
        k(f"v_cvt_pk_bf16_f32 v{16+j}, v{8+2*j}, v{9+2*j}")
    for j in range(4):
        k(f"v_lshlrev_b32 v{8+2*j}, 16, v{16+j}")
        k(f"v_and_b32 v{9+2*j}, 0xffff0000, v{16+j}")
    for e in range(8):
        k(f"v_add_f32 v{8+e}, v{8+e}, v{XF+e}")
    for j in range(4):
        k(f"v_cvt_pk_bf16_f32 v{16+j}, v{8+2*j}, v{9+2*j}")
    k("buffer_store_dwordx4 v[16:19], v1, s[44:47], s3 offen")
    k("s_endpgm")
    k(f"{lW1}:")
    k(f"s_sub_u32 s3, s2, {NC}")
    k("s_waitcnt lgkmcnt(0)")
    k.srd(32, 6, clear_bytes, WS_STAT)
    for r in range(20, 24): k(f"v_mov_b32 v{r}, -1")
    k("s_lshl_b32 s13, s3, 12")
    k("v_lshlrev_b32 v24, 4, v0")
    k("buffer_store_dwordx4 v[20:23], v24, s[32:35], s13 offen")
    transpose_body(k, 24, D, F, WS_WINT, 3)
    k(f"{lW2}:")
    k(f"s_sub_u32 s3, s2, {NC+N1}")
    k("s_waitcnt lgkmcnt(0)")
    transpose_body(k, 26, FH, D, WS_WOUTT, 3)
    k(f"{lCW}:")
    k(f"s_sub_u32 s3, s2, {NC+N1+N2}")
    k("v_lshrrev_b32 v1, 3, v0")
    k("v_and_b32 v2, 7, v0")
    k(f"v_mul_u32_u24 v3, {F*2}, v1")
    k("v_lshl_add_u32 v3, v2, 4, v3")
    k("s_lshl_b32 s4, s3, 7")
    k("s_waitcnt lgkmcnt(0)")
    k.srd(16, 24, D*F*2)
    k.srd(20, 6, F*4, cw_off or 0)
    for q in range(18):
        k(f"buffer_load_dwordx4 v[{24+4*q}:{27+4*q}], v3, s[16:19], s4 offen")
        k(f"s_add_u32 s4, s4, {32*F*2}")
    for e in range(8): k(f"v_mov_b32 v{8+e}, 0")
    for q in range(18):
        k(f"s_waitcnt vmcnt({17-q})")
        for j in range(4):
            k(f"v_lshlrev_b32 v4, 16, v{24+4*q+j}")
            k(f"v_and_b32 v5, 0xffff0000, v{24+4*q+j}")
            k(f"v_add_f32 v{8+2*j}, v{8+2*j}, v4")
            k(f"v_add_f32 v{9+2*j}, v{9+2*j}, v5")
    k("v_lshlrev_b32 v4, 5, v0")
    k("ds_write_b128 v4, v[8:11]")
    k("ds_write_b128 v4, v[12:15] offset:16")
    k("s_waitcnt lgkmcnt(0)")
    k("s_barrier")
    k("v_cmp_gt_u32 vcc, 64, v0")
    k("s_and_saveexec_b64 s[10:11], vcc")
    k(f"s_cbranch_execz {done}")
    k("v_lshlrev_b32 v4, 2, v0")
    for g in range(32): k(f"ds_read_b32 v{24+g}, v4 offset:{256*g}")
    k("s_waitcnt lgkmcnt(0)")
    for g in range(1, 32): k(f"v_add_f32 v24, v24, v{24+g}")
    k("v_cvt_pk_bf16_f32 v5, v24, v24")
    k("v_lshlrev_b32 v5, 16, v5")
    k("v_sub_f32 v6, v24, v5")
    k("v_cvt_pk_bf16_f32 v5, v24, v6")
    k("s_lshl_b32 s4, s3, 8")
    k("buffer_store_dword v5, v4, s[20:23], s4 offen")
    k("s_endpgm")
    k(f"{done}:")
    k("s_endpgm")
    return k, NC+N1+N2+N3, 40960

def ht_transpose_kernel(name='htt_kernel'):
    k = Kernel(name, vgpr=40, sgpr=48)
    done = k.label('done')
    k(f"s_cmp_ge_u32 s2, 288")
    k(f"s_cbranch_scc1 {done}")
    k(f"s_load_dwordx2 s[6:7], s[0:1], {KA['ws']}")
    k("s_waitcnt lgkmcnt(0)")
    k(f"s_add_u32 s4, s6, {WS_HT}")
    k("s_addc_u32 s5, s7, 0")
    transpose_body(k, 4, D, L, WS_H, 2)
    k(f"{done}:")
    k("s_endpgm")
    return k, 288, 64*144
```

```python
import sys, math
sys.path.insert(0, 'work')
from gcore import *
import gen_v0 as v0
from gen1 import PAIR9, PLAIN, PAIR5, groups_of, decode_16x16
rbf = v0.rbf

HO_BASE = WS_STAT
HO_ST3 = 0
HO_LN2 = 256*1024
HO_Z2F = HO_LN2 + 16*1024
HO_ZGF = HO_Z2F + 1024
HO_BYTES = HO_ZGF + 1024
WS_CWP = 32*MB

SC = "sc0 sc1"
SPIN = 0x8000

class Role:
    def __init__(self, k, name):
        self.k, self.name, self.nb = k, name, 0
    def bar(self, n=1):
        for _ in range(n):
            self.k("s_barrier"); self.nb += 1

def mega_kernel(name='mega_kernel', NA=4, stamps=False):
    cA = Cfg([0,1,2,3,4], [5,6,7,8], 2, 144, 4, PAIR9, PLAIN, swap=False)
    cB = Cfg([0,1], [2,3,4], 1, 72, 6, PAIR5, PLAIN, swap=False)
    SCR = cA.LDS
    SC_P2 = SCR
    SC_RS2 = SCR + 2048
    SC_NM2 = SC_RS2 + 512
    SC_P3 = SC_NM2 + 512
    SC_C3 = SC_P3 + 2048
    LDS = SC_C3 + 1024
    k = Kernel(name, vgpr=164, sgpr=96)
    done = k.label('done'); lP = k.label('ldP'); lQ = k.label('ldQ'); lX = k.label('aux'); c1 = k.label('c1')
    k("s_cmp_ge_u32 s2, 256")
    k(f"s_cbranch_scc1 {done}")
    k(f"s_load_dwordx2 s[6:7], s[0:1], {KA['ws']}")
    k(f"s_load_dwordx4 s[72:75], s[0:1], {KA['wsp']}")
    k(f"s_load_dwordx2 s[4:5], s[0:1], {KA['out']}")
    if stamps:
        k("s_memrealtime s[48:49]")
        k.sgpr = 102
    decode_16x16(k)
    k("v_lshrrev_b32 v1, 6, v0")
    k("v_and_b32 v2, 63, v0")
    k("s_and_b32 s76, s10, 7")
    k("s_mul_i32 s76, s76, 72")
    k("v_readfirstlane_b32 s15, v1")
    k("s_lshr_b32 s77, s10, 3")
    k("s_lshl_b32 s77, s77, 6")
    k("s_add_u32 s77, s77, s13")
    k("s_waitcnt lgkmcnt(0)")
    k("s_cmp_eq_u32 s15, 8")
    k(f"s_cbranch_scc1 {lP}")
    k("s_cmp_eq_u32 s15, 9")
    k(f"s_cbranch_scc1 {lQ}")
    k("s_cmp_eq_u32 s15, 10")
    k(f"s_cbranch_scc1 {lX}")
    nbs = {}
    STR = [48+2*i for i in range(8)] + [84+2*i for i in range(8)]
    class Stamper:
        def __init__(self): self.n = 1
        def __call__(self, tag=''):
            if stamps:
                r = STR[self.n]; self.n += 1
                k(f"s_memrealtime s[{r}:{r+1}]")
        def dump(self):
            if not stamps: return
            k("s_waitcnt vmcnt(0)")
            self()
            k("s_waitcnt lgkmcnt(0)")
            k.srd(24, 6, 1 << 20, WS_STAMP)
            k("s_lshl_b32 s42, s2, 4")
            k("s_add_u32 s42, s42, s15")
            k("s_lshl_b32 s42, s42, 6")
            k("v_mov_b32 v10, 0")
            for i in range(16):
                k(f"v_mov_b32 v{16+i}, s{STR[i] if i < self.n else STR[0]}")
            for i in range(4):
                k(f"buffer_store_dwordx4 v[{16+4*i}:{19+4*i}], v10, s[24:27], s42 offen offset:{16*i}")

    k.srd(20, 6, D*L*2, WS_HT)
    k("s_lshl_b32 s42, s10, 3")
    k("s_add_u32 s42, s42, s13")
    k("s_lshl_b32 s42, s42, 1")
    k("v_lshlrev_b32 v16, 12, v0")
    k("buffer_load_dwordx4 v[20:23], v16, s[20:23], s42 offen")
    k(f"v_add_u32 v17, {512*4096}, v16")
    k("buffer_load_dwordx4 v[24:27], v17, s[20:23], s42 offen")
    comp_addrs(k, cA)
    k("v_lshrrev_b32 v12, 2, v3")
    k("v_and_b32 v13, 3, v3")
    k("v_and_b32 v14, 1, v4")
    k("v_lshl_or_b32 v14, v14, 2, v12")
    k("v_lshlrev_b32 v14, 1, v14")
    k("v_lshrrev_b32 v15, 1, v13")
    k("s_lshl_b32 s42, s40, 2")
    k("v_add_u32 v15, s42, v15")
    k("v_xor_b32 v15, v15, v14")
    k("v_lshlrev_b32 v15, 4, v15")
    k("v_and_b32 v13, 1, v13")
    k("v_lshl_add_u32 v15, v13, 3, v15")
    k("v_lshl_add_u32 v12, v4, 3, v12")
    k("v_lshl_add_u32 v10, v12, 8, v15")
    k(f"v_add_u32 v10, {cA.Q_BASE}, v10")
    k("v_xor_b32 v11, 32, v10")
    k.srd(24, 6, FH*L*2, WS_Z2T)
    k.srd(28, 6, L*FH*2, WS_ZG)
    k.srd(32, 74, L*2)
    k.srd(36, 6, F*4, WS_CWP)
    k.srd(80, 4, L*D*2)
    masks = {3: 64, 2: 66, 1: 68, 0: 70}
    for b, sr in masks.items():
        k(f"v_and_b32 v12, {1 << b}, v3")
        k(f"v_cmp_ne_u32 s[{sr}:{sr+1}], 0, v12")
    def reduce_scatter(V, W):
        cnt = 16
        for b, ctl in [(3, "row_ror:8"), (2, "row_half_mirror"), (1, "quad_perm:[2,3,0,1]"), (0, "quad_perm:[1,0,3,2]")]:
            half = cnt//2; sr = masks[b]
            for j in range(half):
                k(f"v_cndmask_b32 v{W+j}, v{V+j+half}, v{V+j}, s[{sr}:{sr+1}]")
                k(f"v_cndmask_b32 v{V+j}, v{V+j}, v{V+j+half}, s[{sr}:{sr+1}]")
            k.nop(2)
            for j in range(half):
                k(f"v_add_f32_dpp v{V+j}, v{W+j}, v{V+j} {ctl} row_mask:0xf bank_mask:0xf")
            cnt = half
    k("s_waitcnt vmcnt(0)")
    V = 32; W = 48
    for j in range(4):
        for hi in range(2):
            row = 2*j + hi
            for src, first in ((20+j, True), (24+j, False)):
                t = 56 + (0 if first else 1)
                if hi: k(f"v_and_b32 v{t}, 0xffff0000, v{src}")
                else:  k(f"v_lshlrev_b32 v{t}, 16, v{src}")
            k(f"v_add_f32 v{V+2*row}, v56, v57")
            k(f"v_mul_f32 v{V+2*row+1}, v56, v56")
            k(f"v_fmac_f32 v{V+2*row+1}, v57, v57")
    reduce_scatter(V, W)
    k("v_lshlrev_b32 v12, 2, v0")
    k(f"v_add_u32 v12, {SC_P2}, v12")
    k(f"ds_write_b32 v12, v{V}")
    k("s_waitcnt lgkmcnt(0)")
    k("s_cmp_eq_u32 s41, 1")
    k(f"s_cbranch_scc1 {c1}")

    def compute(ci):
        R = Role(k, f'c{ci}')
        ST = Stamper()
        A1 = 16; A2 = 56; S0 = 96; S1 = 124; T = 152
        nm = len(cA.cls[ci])
        class CompM(Comp):
            tr = False; swapf = False
            def reads(self, si, slot, ks):
                if not self.tr: return Comp.reads(self, si, slot, ks)
                c = self.cfg; S = self.S[si]; out = []
                for n in range(2):
                    for x in range(2):
                        out.append(f"ds_read_b64_tr_b16 v[{S+4*n+2*x}:{S+4*n+2*x+1}], v{10+n} offset:{slot*c.Q_SLOT + (32*ks+4*x)*256}")
                for m in range(self.nm):
                    r = S + 8 + 4*m
                    out.append(f"ds_read_b128 v[{r}:{r+3}], v{self.va+ks} offset:{slot*c.P_SLOT + m*2048}")
                return out
            def st(self, slot, ACC, zero=False, last=False, swap=False, pre_bar=None):
                self.cfg.swap = swap
                self.interleave(self.mfmas(0, ACC, zero), self.reads(1, slot, 1))
                k("s_waitcnt lgkmcnt(0)")
                if pre_bar: k(pre_bar)
                R.bar()
                self.interleave(self.mfmas(1, ACC), [] if last else self.reads(0, (slot+1) % self.cfg.NS, 0))
                if not last: k("s_waitcnt lgkmcnt(0)")
                self.cfg.swap = False
        C = CompM(k, cA, ci, S0, S1)
        C.tr = True
        CWZ2 = T
        k("v_add_u32 v12, s12, v3")
        k("v_lshlrev_b32 v12, 2, v12")
        for m in range(nm):
            k(f"s_mov_b32 s42, {(FH + cA.cls[ci][m]*16)*4}")
            k(f"buffer_load_dword v{CWZ2+m}, v12, s[36:39], s42 offen")
        R.bar()
        ST()
        for r in C.reads(0, 0, 0): k(r)
        k("s_waitcnt lgkmcnt(0)")
        C.st(0, A2, zero=True, swap=True)
        k("s_mov_b32 s43, 2")
        lp = k.label('lp'); k(f"{lp}:")
        nb0 = R.nb
        for i in range(4): C.st((1+i) % 4, A2, swap=True)
        R.nb += (R.nb - nb0)
        k("s_sub_u32 s43, s43, 1")
        k("s_cmp_lg_u32 s43, 0")
        k(f"s_cbranch_scc1 {lp}")
        ST()
        def ext_step(ACC, CW, swap):
            QX = S1; PX = S1 + 4
            k("v_lshlrev_b32 v12, 2, v3")
            k("s_lshl_b32 s42, s40, 7")
            k(f"s_add_u32 s42, s42, {SC_NM2}")
            k("v_add_u32 v12, s42, v12")
            k(f"ds_read_b32 v{QX}, v12")
            k(f"ds_read_b32 v{QX+2}, v12 offset:64")
            k(f"v_mov_b32 v{QX+1}, 0"); k(f"v_mov_b32 v{QX+3}, 0")
            k("v_cmp_eq_u32 vcc, 0, v4")
            k("s_waitcnt vmcnt(0)")
            for m in range(nm):
                k(f"v_mov_b32 v{PX+2*m}, v{CW+m}")
                k(f"v_mov_b32 v{PX+2*m+1}, 0")
            k("s_waitcnt lgkmcnt(0)")
            k(f"v_cndmask_b32 v{QX}, 0, v{QX}, vcc")
            k(f"v_cndmask_b32 v{QX+2}, 0, v{QX+2}, vcc")
            k.nop(2)
            for m in range(nm):
                for n in range(2):
                    a = ACC + (m*2+n)*4
                    p = PX + 2*m; q = QX + 2*n
                    x, y = (q, p) if swap else (p, q)
                    k(f"v_mfma_f32_16x16x16_bf16 v[{a}:{a+3}], v[{x}:{x+1}], v[{y}:{y+1}], v[{a}:{a+3}]")
        ext_step(A2, CWZ2, True)
        RS = S1 + 16
        k("v_lshlrev_b32 v12, 4, v4")
        k("s_lshl_b32 s42, s40, 7")
        k(f"s_add_u32 s42, s42, {SC_RS2}")
        k("v_add_u32 v12, s42, v12")
        k(f"ds_read_b128 v[{RS}:{RS+3}], v12")
        k(f"ds_read_b128 v[{RS+4}:{RS+7}], v12 offset:64")
        CWZ1 = T + 5
        k("v_lshrrev_b32 v12, 2, v3")
        k("v_lshlrev_b32 v12, 3, v12")
        k("v_and_b32 v13, 3, v3")
        k("v_add_u32 v12, v12, v13")
        k("v_add_u32 v12, s12, v12")
        k("v_lshlrev_b32 v12, 2, v12")
        k("v_add_u32 v13, s12, v3")
        k("v_lshlrev_b32 v13, 2, v13")
        for m in range(nm):
            base, e = PAIR9[cA.cls[ci][m]]
            if e is None: k(f"buffer_load_dword v{CWZ1+m}, v13, s[36:39], 0 offen offset:{base*4}")
            else:         k(f"buffer_load_dword v{CWZ1+m}, v12, s[36:39], 0 offen offset:{(base+4*e)*4}")
        k(f"v_mov_b32 v{T}, {fhex(GC2)}")
        k("s_waitcnt lgkmcnt(0)")
        k.nop(4)
        for m in range(nm):
            for n in range(2):
                for r in range(4):
                    a = A2 + (m*2+n)*4 + r
                    k(f"v_mul_f32 v{a}, v{a}, v{RS+4*n+r}")
        for ins in gelu_stream([A2+i for i in range(nm*8)], [T+1, T+2, T+3, T+4], T): k(ins)
        Vv = S1; Ww = S1 + 16
        for n in range(2):
            for r in range(4):
                row = 4*n + r; a0 = A2 + n*4 + r
                k(f"v_mov_b32 v{Vv+2*row}, v{a0}")
                k(f"v_mul_f32 v{Vv+2*row+1}, v{a0}, v{a0}")
                for m in range(1, nm):
                    a = A2 + (m*2+n)*4 + r
                    k(f"v_add_f32 v{Vv+2*row}, v{Vv+2*row}, v{a}")
                    k(f"v_fmac_f32 v{Vv+2*row+1}, v{a}, v{a}")
        reduce_scatter(Vv, Ww)
        k("v_lshrrev_b32 v12, 3, v3")
        k("v_lshlrev_b32 v12, 4, v12")
        k("v_lshl_add_u32 v12, v4, 2, v12")
        k("v_bfe_u32 v13, v3, 1, 2")
        k("v_add_u32 v12, v12, v13")
        k("v_lshlrev_b32 v12, 1, v12")
        k("v_and_b32 v13, 1, v3")
        k("v_add_u32 v12, v12, v13")
        k("v_lshlrev_b32 v12, 2, v12")
        k("s_lshl_b32 s42, s40, 8")
        k(f"s_add_u32 s42, s42, {SC_P3 + ci*1024}")
        k("v_add_u32 v12, s42, v12")
        k(f"ds_write_b32 v12, v{Vv}")
        ST()
        for g in range(9, 9+NA):
            C.st(g % 4, A1, zero=(g == 9))
        ST()
        CC = S1
        k("v_lshlrev_b32 v12, 5, v4")
        k("s_lshl_b32 s42, s40, 8")
        k(f"s_add_u32 s42, s42, {SC_C3}")
        k("v_add_u32 v12, s42, v12")
        for n in range(2):
            for x in range(2):
                k(f"ds_read_b128 v[{CC+8*n+4*x}:{CC+8*n+4*x+3}], v12 offset:{128*n + 16*x}")
        k("v_add_u32 v13, s12, v3")
        k("v_lshlrev_b32 v13, 12, v13")
        k("s_lshl_b32 s42, s40, 5")
        k("s_add_u32 s42, s42, s13")
        k("s_lshl_b32 s42, s42, 1")
        k("v_lshl_add_u32 v13, v4, 4, v13")
        k("v_add_u32 v13, s42, v13")
        k("s_waitcnt lgkmcnt(0)")
        for m in range(nm):
            for n in range(2):
                for r in range(4):
                    a = A2 + (m*2+n)*4 + r
                    k(f"v_fma_f32 v{a}, v{a}, v{CC+8*n+2*r}, -v{CC+8*n+2*r+1}")
            a = A2 + m*8
            k(f"v_cvt_pk_bf16_f32 v{a}, v{a}, v{a+1}")
            k(f"v_cvt_pk_bf16_f32 v{a+1}, v{a+2}, v{a+3}")
            k(f"v_cvt_pk_bf16_f32 v{a+2}, v{a+4}, v{a+5}")
            k(f"v_cvt_pk_bf16_f32 v{a+3}, v{a+6}, v{a+7}")
        k.nop(2)
        for m in range(nm):
            a = A2 + m*8
            k(f"v_permlane32_swap_b32 v{a}, v{a+2}")
            k(f"v_permlane32_swap_b32 v{a+1}, v{a+3}")
        k.nop(2)
        for m in range(nm):
            a = A2 + m*8
            k(f"v_permlane16_swap_b32 v{a}, v{a+2}")
            k(f"v_permlane16_swap_b32 v{a+1}, v{a+3}")
        k.nop(1)
        for m in range(nm):
            a = A2 + m*8
            k(f"s_mov_b32 s44, {cA.cls[ci][m]*16*4096}")
            k(f"buffer_store_dwordx4 v[{a}:{a+3}], v13, s[24:27], s44 offen {SC}")
        ST()
        for g in range(9+NA, 18):
            C.st(g % 4, A1, last=(g == 17), pre_bar="s_waitcnt vmcnt(0)" if g == 17 else None)
        ST()
        ext_step(A1, CWZ1, False)
        KC = S1 + 16
        k("v_lshlrev_b32 v12, 2, v3")
        k("s_lshl_b32 s42, s40, 7")
        k(f"s_add_u32 s42, s42, {SC_RS2}")
        k("v_add_u32 v12, s42, v12")
        k(f"ds_read_b32 v{KC+2}, v12")
        k(f"ds_read_b32 v{KC+5}, v12 offset:64")
        k("s_lshl_b32 s42, s40, 5")
        k("s_add_u32 s42, s42, s13")
        k("v_add_u32 v14, s42, v3")
        k("v_lshlrev_b32 v15, 1, v14")
        k(f"buffer_load_ushort v{T+10}, v15, s[32:35], 0 offen")
        k(f"buffer_load_ushort v{T+11}, v15, s[32:35], 0 offen offset:32")
        k("s_waitcnt lgkmcnt(0)")
        for n in range(2):
            b = KC + 3*n
            k(f"v_mul_f32 v{b}, {fhex(GC1)}, v{b+2}")
            k(f"v_mul_f32 v{b+1}, v{b+2}, v{b+2}")
            k(f"v_mul_f32 v{b+1}, v{b+1}, v{b+2}")
            k(f"v_mul_f32 v{b+1}, {fhex(GC2)}, v{b+1}")
            k(f"v_rcp_f32 v{b+2}, v{b+2}")
        k.nop(2)
        tm = [T+1, T+2, T+3, T+4]
        for m in range(nm):
            for n in range(2):
                b = KC + 3*n
                xs = [A1 + (m*2+n)*4 + r for r in range(4)]
                for step in range(7):
                    for x, t in zip(xs, tm):
                        k([f"v_mul_f32 v{t}, v{x}, v{x}",
                           f"v_fma_f32 v{t}, v{t}, v{b+1}, v{b}",
                           f"v_mul_f32 v{t}, v{t}, v{x}",
                           f"v_exp_f32 v{t}, v{t}",
                           f"v_fma_f32 v{t}, v{t}, v{b+2}, v{b+2}",
                           f"v_rcp_f32 v{t}, v{t}",
                           f"v_mul_f32 v{x}, v{x}, v{t}"][step])
        C.tr = False
        ST()
        R.bar()
        ST()
        for r in C.reads(0, 2, 0): k(r)
        k("s_waitcnt lgkmcnt(0)")
        C.st(2, A2, zero=True)
        for i in range(3): C.st((3+i) % 4, A2)
        k("s_mov_b32 s43, 7")
        lp = k.label('lp'); k(f"{lp}:")
        nb0 = R.nb
        for i in range(4): C.st((2+i) % 4, A2)
        R.nb += 6*(R.nb - nb0)
        k("s_sub_u32 s43, s43, 1")
        k("s_cmp_lg_u32 s43, 0")
        k(f"s_cbranch_scc1 {lp}")
        ST()
        k(f"v_mul_u32_u24 v14, {FH*2}, v14")
        k("s_lshl_b32 s42, s12, 1")
        k("v_add_u32 v14, s42, v14")
        k("v_lshl_add_u32 v15, v4, 3, v14")
        k("v_lshl_add_u32 v14, v4, 4, v14")
        k("s_waitcnt vmcnt(0)")
        k(f"v_lshlrev_b32 v{T+10}, 16, v{T+10}")
        k(f"v_lshlrev_b32 v{T+11}, 16, v{T+11}")
        k(f"s_mov_b32 s44, {16*FH*2}")
        k.nop(4)
        O = S0
        for gi, (ms, base) in enumerate(groups_of(cA.cls[ci], PAIR9)):
            for n in range(2):
                for mi, m in enumerate(ms):
                    a = (m*2+n)*4
                    for r in range(4): k(f"v_add_f32 v{A2+a+r}, v{A2+a+r}, v{T+10+n}")
                    for r in range(4): k(f"v_mul_f32 v{A2+a+r}, v{A2+a+r}, v{A1+a+r}")
                    for pr in range(2): k(f"v_cvt_pk_bf16_f32 v{O+mi*2+pr}, v{A2+a+2*pr}, v{A2+a+2*pr+1}")
                so = "s44" if n else "0"
                if len(ms) == 2: k(f"buffer_store_dwordx4 v[{O}:{O+3}], v14, s[28:31], {so} offen offset:{base*2} {SC}")
                else:            k(f"buffer_store_dwordx2 v[{O}:{O+1}], v15, s[28:31], {so} offen offset:{base*2} {SC}")
                O += 4
        ST()
        k("s_waitcnt vmcnt(0)")
        R.bar()
        ST()
        comp_addrs(k, cB)
        C5 = CompM(k, cB, ci, 32, 48)
        ACC = 16; H = 64; TT = 80
        grp = groups_of(cB.cls[ci], PAIR5)
        k("s_lshl_b32 s42, s40, 4")
        k("s_add_u32 s42, s42, s77")
        k("v_add_u32 v10, s42, v3")
        k("v_lshlrev_b32 v12, 1, v10")
        k("v_lshl_add_u32 v13, v4, 14, v12")
        k("v_lshl_add_u32 v12, v4, 15, v12")
        for gi, (ms, base) in enumerate(grp):
            for e in range(4*len(ms)):
                k(f"s_add_u32 s42, s76, {base+e}")
                k("s_lshl_b32 s42, s42, 12")
                k(f"buffer_load_ushort v{H+8*gi+e}, v{12 if len(ms)==2 else 13}, s[20:23], s42 offen")
        k(f"v_mul_u32_u24 v10, {D*2}, v10")
        k("s_lshl_b32 s42, s76, 1")
        k("v_add_u32 v10, s42, v10")
        k("v_lshl_add_u32 v11, v4, 3, v10")
        k("v_lshl_add_u32 v10, v4, 4, v10")
        k("v_mov_b32 v12, 0x7ffffff0")
        k("v_cmp_gt_u32 vcc, 2, v4")
        k("s_nop 1")
        k("v_cndmask_b32 v11, v12, v11, vcc")
        for r in range(C5.nm*4): k(f"v_mov_b32 v{ACC+r}, 0")
        R.bar()
        ST()
        for r in C5.reads(0, 0, 0): k(r)
        k("s_waitcnt lgkmcnt(0)")
        k("s_mov_b32 s43, 6")
        lp = k.label('lp'); k(f"{lp}:")
        nb0 = R.nb
        for i in range(6): C5.st(i, ACC)
        R.nb += 5*(R.nb - nb0)
        k("s_sub_u32 s43, s43, 1")
        k("s_cmp_lg_u32 s43, 0")
        k(f"s_cbranch_scc1 {lp}")
        ST()
        k("s_waitcnt vmcnt(0)")
        k.nop(8)
        for gi, (ms, base) in enumerate(grp):
            for mi, m in enumerate(ms):
                for pr in range(2):
                    a = ACC + 4*m + 2*pr; hh = H + 8*gi + 4*mi + 2*pr
                    k(f"v_cvt_pk_bf16_f32 v{TT+8}, v{a}, v{a+1}")
                    k(f"v_lshlrev_b32 v{hh}, 16, v{hh}")
                    k(f"v_lshlrev_b32 v{hh+1}, 16, v{hh+1}")
                    k(f"v_lshlrev_b32 v{a}, 16, v{TT+8}")
                    k(f"v_and_b32 v{a+1}, 0xffff0000, v{TT+8}")
                    k(f"v_add_f32 v{a}, v{a}, v{hh}")
                    k(f"v_add_f32 v{a+1}, v{a+1}, v{hh+1}")
                    k(f"v_cvt_pk_bf16_f32 v{TT+4*gi+2*mi+pr}, v{a}, v{a+1}")
            o = TT + 4*gi
            if len(ms) == 2: k(f"buffer_store_dwordx4 v[{o}:{o+3}], v10, s[80:83], 0 offen offset:{base*2}")
            else:            k(f"buffer_store_dwordx2 v[{o}:{o+1}], v11, s[80:83], 0 offen offset:{base*2}")
        ST.dump()
        k("s_endpgm")
        nbs[R.name] = R.nb
    compute(0)
    k(f"{c1}:")
    compute(1)

    def poll_flags(off_sgpr_setup):
        k.srd(84, 6, HO_BYTES, HO_BASE)
        off_sgpr_setup()
        k("v_and_b32 v12, 15, v2")
        k("v_lshlrev_b32 v12, 2, v12")
        k(f"s_mov_b32 s46, {SPIN}")
        pl = k.label('poll'); pd = k.label('pd')
        k(f"{pl}:")
        k(f"buffer_load_dword v13, v12, s[84:87], s45 offen {SC}")
        k("s_waitcnt vmcnt(0)")
        k("v_and_b32 v13, 1, v13")
        k("v_cmp_ne_u32 vcc, 0, v13")
        k("s_sub_u32 s46, s46, 1")
        k("s_cmp_eq_u32 s46, 0")
        k(f"s_cbranch_scc1 {pd}")
        k("s_nop 3")
        k(f"s_cbranch_vccz {pd}")
        k("s_sleep 2")
        k(f"s_branch {pl}")
        k(f"{pd}:")

    class Ld:
        def __init__(self, R, n, base, slotb, NS, V=16, step=128, flags=''):
            self.R, self.n, self.base, self.slotb, self.NS, self.V, self.step, self.flags = R, n, base, slotb, NS, V, step, flags
        def issue(self, slot):
            for j in range(self.n):
                k(f"s_mov_b32 m0, {self.base + slot*self.slotb + j*1024}")
                k("s_nop 0")
                k(f"buffer_load_dwordx4 v{self.V+j}, s[16:19], s44 offen {self.flags} lds")
            k(f"s_add_u32 s44, s44, {self.step}")
        def wait(self, stages):
            k(f"s_waitcnt vmcnt({min(stages*self.n, 63)})")
        def prologue(self, slot0):
            NS = self.NS
            infl = min(NS-1, 63//self.n)
            for s in range(infl): self.issue((slot0+s) % NS)
            self.wait(infl-1)
            for s in range(infl, NS):
                self.issue((slot0+s) % NS)
                if s < NS-1: self.wait(infl-1)
        def steady(self, slot0, count):
            NS = self.NS
            nl = count//NS
            if nl >= 2:
                k(f"s_mov_b32 s43, {nl}")
                lp = k.label('lpl'); k(f"{lp}:")
                for s in range(NS):
                    self.wait(NS-2); self.R.bar(); self.issue((slot0+s) % NS)
                self.R.nb += (nl-1)*NS
                k("s_sub_u32 s43, s43, 1")
                k("s_cmp_lg_u32 s43, 0")
                k(f"s_cbranch_scc1 {lp}")
                rest = count - nl*NS
            else:
                rest = count
            for s in range(rest):
                self.wait(NS-2); self.R.bar(); self.issue((slot0+s) % NS)
        def tail(self):
            for r in range(self.NS):
                self.wait(max(self.NS-2-r, 0)); self.R.bar()

    k(f"{lP}:")
    R = Role(k, 'P')
    ld = Ld(R, 18, cA.P_BASE, cA.P_SLOT, 4)
    k.srd(16, 6, F*D*2, WS_WINT)
    k(f"s_add_u32 s44, s12, {FH}")
    k(f"s_mul_i32 s44, s44, {D*2}")
    loader_voffs(k, 16, 18, PLAIN, D*2)
    ld.prologue(0)
    R.bar()
    loader_voffs(k, 48, 18, PAIR9, D*2)
    ld.steady(0, 5)
    k(f"s_mul_i32 s44, s12, {D*2}")
    ld.V = 48
    ld.steady(1, 9)
    loader_voffs(k, 16, 18, PAIR9, 4096)
    ld.V = 16
    ld.tail()
    poll_flags(lambda: (k("s_lshl_b32 s45, s10, 6"), k(f"s_add_u32 s45, s45, {HO_Z2F}")))
    k.srd(16, 6, FH*L*2, WS_Z2T)
    k("s_lshl_b32 s44, s12, 12")
    ld.flags = SC
    ld.prologue(2)
    R.bar()
    ld.steady(2, 28)
    loader_voffs(k, 48, 9, PAIR5, FH*2)
    ld.tail()
    l5 = Ld(R, 9, cB.P_BASE, cB.P_SLOT, 6, V=48)
    k.srd(16, 6, D*FH*2, WS_WOUTT)
    k(f"s_mul_i32 s44, s76, {FH*2}")
    l5.prologue(0)
    R.bar(2)
    l5.steady(0, 30)
    l5.tail()
    k("s_endpgm")
    nbs['P'] = R.nb

    k(f"{lQ}:")
    R = Role(k, 'Q')
    ld = Ld(R, 16, cA.Q_BASE, cA.Q_SLOT, 4, step=64*4096)
    k.srd(16, 6, D*L*2, WS_HT)
    k("s_lshl_b32 s44, s13, 1")
    k("v_lshrrev_b32 v3, 4, v2")
    k("v_and_b32 v4, 15, v2")
    k("v_lshlrev_b32 v5, 1, v3")
    k("v_xor_b32 v4, v4, v5")
    k("v_lshlrev_b32 v4, 4, v4")
    k("v_lshl_add_u32 v4, v3, 12, v4")
    k("v_xor_b32 v5, 128, v4")
    for j in range(16):
        k(f"v_add_u32 v{16+j}, {4*j*4096}, v{5 if (j>>1)&1 else 4}")
    ld.prologue(0)
    R.bar()
    loader_voffs(k, 48, 16, PLAIN, 4096)
    ld.steady(0, 5)
    k("s_lshl_b32 s44, s13, 1")
    ld.steady(1, 9)
    k.srd(16, 72, L*L*2)
    k("s_lshl_b32 s44, s13, 12")
    ld.V = 48; ld.step = 128
    ld.steady(2, 4)
    R.bar()
    ld.steady(2, 28)
    loader_voffs(k, 16, 8, PLAIN, FH*2)
    ld.tail()
    R.bar()
    poll_flags(lambda: (k("s_lshl_b32 s45, s11, 6"), k(f"s_add_u32 s45, s45, {HO_ZGF}")))
    l5 = Ld(R, 8, cB.Q_BASE, cB.Q_SLOT, 6, V=16, flags=SC)
    k.srd(16, 6, L*FH*2, WS_ZG)
    k(f"s_mul_i32 s44, s77, {FH*2}")
    l5.prologue(0)
    R.bar()
    l5.steady(0, 30)
    l5.tail()
    k("s_endpgm")
    nbs['Q'] = R.nb

    k(f"{lX}:")
    R = Role(k, 'X')
    k.srd(84, 6, HO_BYTES, HO_BASE)
    k("v_and_b32 v3, 15, v2")
    k("v_lshrrev_b32 v4, 4, v2")
    R.bar()
    k("v_lshlrev_b32 v5, 2, v2")
    k(f"v_add_u32 v5, {SC_P2}, v5")
    for w in range(8): k(f"ds_read_b32 v{16+w}, v5 offset:{256*w}")
    k("s_waitcnt lgkmcnt(0)")
    for w in range(1, 8): k(f"v_add_f32 v16, v16, v{16+w}")
    k("v_mov_b32 v17, v16")
    k.nop(2)
    k("v_permlane32_swap_b32 v16, v17")
    k("v_add_f32 v16, v16, v17")
    k("v_mov_b32 v17, v16")
    k.nop(2)
    k("v_permlane16_swap_b32 v16, v17")
    k("v_add_f32 v16, v16, v17")
    def ln_finish(S, Q, n, mrs):
        k(f"v_mul_f32 v{S}, {fhex(1.0/n)}, v{S}")
        k(f"v_mul_f32 v{Q}, {fhex(1.0/n)}, v{Q}")
        k(f"v_fma_f32 v{Q}, -v{S}, v{S}, v{Q}")
        k(f"v_max_f32 v{Q}, 0, v{Q}")
        rbf(k, S, S); rbf(k, Q, Q)
        k(f"v_add_f32 v{Q}, {fhex(1e-5)}, v{Q}")
        rbf(k, Q, Q)
        k(f"v_sqrt_f32 v{Q}, v{Q}")
        k.nop(1)
        rbf(k, Q, Q)
        k(f"v_rcp_f32 v{Q}, v{Q}")
        k.nop(1)
        if mrs: k(f"v_mul_f32 v{S}, v{S}, v{Q}")
    k.nop(2)
    k("v_mov_b32_dpp v18, v16 quad_perm:[0,0,2,2] row_mask:0xf bank_mask:0xf")
    k("v_mov_b32_dpp v19, v16 quad_perm:[1,1,3,3] row_mask:0xf bank_mask:0xf")
    ln_finish(18, 19, D, False)
    k("v_and_b32 v18, 0xfffffffe, v18")
    k("v_and_b32 v19, 0xfffffffe, v19")
    k("s_lshl_b32 s42, s10, 3")
    k("s_add_u32 s42, s42, s13")
    k("s_lshl_b32 s42, s42, 3")
    k(f"s_add_u32 s42, s42, {HO_LN2}")
    k("v_lshlrev_b32 v5, 2, v2")
    k("s_mov_b64 exec, 0x5555")
    k(f"buffer_store_dwordx2 v[18:19], v5, s[84:87], s42 offen {SC}")
    k("s_mov_b64 exec, -1")
    def poll_data(nbar, issue, regs):
        k(f"s_mov_b32 s46, {SPIN}")
        pl = k.label('poll'); pd = k.label('pd'); pc = k.label('pc')
        issue()
        R.bar(nbar)
        k(f"s_branch {pc}")
        k(f"{pl}:")
        issue()
        k(f"{pc}:")
        k("s_waitcnt vmcnt(0)")
        k(f"v_mov_b32 v13, v{regs[0]}")
        for r in regs[1:]: k(f"v_or_b32 v13, v13, v{r}")
        k("v_and_b32 v13, 1, v13")
        k("v_cmp_ne_u32 vcc, 0, v13")
        k("s_sub_u32 s46, s46, 1")
        k("s_cmp_eq_u32 s46, 0")
        k(f"s_cbranch_scc1 {pd}")
        k("s_nop 3")
        k(f"s_cbranch_vccz {pd}")
        k("s_sleep 2")
        k(f"s_branch {pl}")
        k(f"{pd}:")
    R.bar(4)
    k("v_lshlrev_b32 v5, 4, v2")
    k("s_lshl_b32 s42, s13, 3")
    k(f"s_add_u32 s42, s42, {HO_LN2}")
    poll_data(3, lambda: k(f"buffer_load_dwordx4 v[16:19], v5, s[84:87], s42 offen {SC}"), [16, 17, 18, 19])
    k("v_cvt_pk_bf16_f32 v20, -v16, -v16")
    k("v_cvt_pk_bf16_f32 v21, -v18, -v18")
    k("v_mov_b32 v22, v17")
    k("v_mov_b32 v23, v19")
    k("v_lshlrev_b32 v6, 3, v2")
    k(f"v_add_u32 v6, {SC_RS2}, v6")
    k("ds_write_b64 v6, v[22:23]")
    k("ds_write_b64 v6, v[20:21] offset:512")
    k("s_waitcnt lgkmcnt(0)")
    R.bar(3)
    k(f"v_add_u32 v6, {SC_P3}, v5")
    k("ds_read_b128 v[16:19], v6")
    k("ds_read_b128 v[20:23], v6 offset:1024")
    k("s_lshl_b32 s42, s13, 3")
    k("s_lshl_b32 s43, s10, 14")
    k("s_add_u32 s43, s43, s42")
    k("s_waitcnt lgkmcnt(0)")
    for j in range(4):
        k(f"v_add_f32 v{16+j}, v{16+j}, v{20+j}")
        k(f"v_and_b32 v{16+j}, 0xfffffffe, v{16+j}")
    k(f"buffer_store_dwordx4 v[16:19], v5, s[84:87], s43 offen {SC}")
    R.bar(NA-3)
    def iss():
        for p in range(16):
            k(f"s_add_u32 s43, s42, {p << 14}")
            k(f"buffer_load_dwordx4 v[{32+4*p}:{35+4*p}], v5, s[84:87], s43 offen {SC}")
    poll_data(1, iss, list(range(32, 96)))
    for p in range(1, 16):
        for j in range(4): k(f"v_add_f32 v{32+j}, v{32+j}, v{32+4*p+j}")
    ln_finish(32, 33, FH, True)
    ln_finish(34, 35, FH, True)
    k("v_mov_b32 v16, v33"); k("v_mov_b32 v17, v32"); k("v_mov_b32 v18, v35"); k("v_mov_b32 v19, v34")
    k(f"v_add_u32 v6, {SC_C3}, v5")
    k("ds_write_b128 v6, v[16:19]")
    k("s_waitcnt lgkmcnt(0)")
    R.bar(18 - (8+NA))
    k("v_mov_b32 v16, 0")
    k("v_mov_b32 v5, 0")
    k("s_lshl_b32 s42, s10, 6")
    k("s_lshl_b32 s43, s11, 2")
    k("s_add_u32 s42, s42, s43")
    k(f"s_add_u32 s42, s42, {HO_Z2F}")
    k("s_mov_b64 exec, 1")
    k(f"buffer_store_dword v16, v5, s[84:87], s42 offen {SC}")
    k("s_mov_b64 exec, -1")
    R.bar()
    k("s_mov_b32 s43, 32")
    lp = k.label('lp'); k(f"{lp}:")
    R.bar(); R.nb += 31
    k("s_sub_u32 s43, s43, 1")
    k("s_cmp_lg_u32 s43, 0")
    k(f"s_cbranch_scc1 {lp}")
    R.bar()
    k("s_lshl_b32 s42, s11, 6")
    k("s_lshl_b32 s43, s10, 2")
    k("s_add_u32 s42, s42, s43")
    k(f"s_add_u32 s42, s42, {HO_ZGF}")
    k("s_mov_b64 exec, 1")
    k(f"buffer_store_dword v16, v5, s[84:87], s42 offen {SC}")
    k("s_endpgm")
    nbs['X'] = R.nb
    print("barrier counts", nbs)
    assert nbs['c0'] == nbs['c1'] == nbs['P'] == nbs['Q'] == nbs['X'] + 37
    k(f"{done}:")
    k("s_endpgm")
    return k, LDS
```

```python
import re
from asmlib import *
TL_OFF = 120 << 20
def instrument(k, kidx):
    V = (k.vgpr + 1)//2*2
    k.vgpr = V + 4
    k.sgpr = 102
    new = ["    s_memrealtime s[96:97]", f"    s_load_dwordx2 s[98:99], s[0:1], {KA['ws']}", f"    v_lshrrev_b32 v{V+3}, 6, v0",
           "    s_mov_b32 s95, s2"]
    body = k.lines
    out = list(new)
    n = len(body)
    for i, l in enumerate(body):
        if l.strip() == 's_endpgm' and i != n-1:
            out += ["    s_mov_b64 exec, -1",
                    "    s_waitcnt vmcnt(0) lgkmcnt(0)",
                    "    s_memrealtime s[100:101]",
                    f"    s_add_u32 s88, s98, 0x{TL_OFF + kidx*(1<<20):x}",
                    "    s_addc_u32 s89, s99, 0",
                    "    s_mov_b32 s90, 0x100000",
                    "    s_mov_b32 s91, 0x00020000",
                    "    s_waitcnt lgkmcnt(0)",
                    f"    v_mov_b32 v{V}, s96",
                    f"    v_mov_b32 v{V+1}, s100",
                    "    s_lshl_b32 s95, s95, 4",
                    f"    v_add_u32 v{V+2}, s95, v{V+3}",
                    f"    v_lshlrev_b32 v{V+2}, 3, v{V+2}",
                    f"    buffer_store_dwordx2 v[{V}:{V+1}], v{V+2}, s[88:91], 0 offen"]
        out.append(l)
    k.lines = out

def blocker_kernel(us=300):
    k = Kernel('blocker_kernel', vgpr=8, sgpr=16)
    k("s_memrealtime s[4:5]")
    k("s_waitcnt lgkmcnt(0)")
    lp = k.label('lp')
    k(f"{lp}:")
    k("s_sleep 10")
    k("s_memrealtime s[6:7]")
    k("s_waitcnt lgkmcnt(0)")
    k("s_sub_u32 s8, s6, s4")
    k(f"s_cmp_lt_u32 s8, {us*100}")
    k(f"s_cbranch_scc1 {lp}")
    k("s_endpgm")
    return k
```

```python
import sys
sys.path.insert(0, 'work')
from gcore import *
import gen_a as ga, gen_m as gm, tl
def main(out, timeline=False, **kw):
    k1, n1, l1 = ga.k1_kernel()
    k2, n2, l2 = ga.k2_kernel(clear_bytes=gm.HO_BYTES, cw_off=gm.WS_CWP)
    km, lm = gm.mega_kernel(**kw)
    ks = [k1, k2, km]
    launches = [('k1_kernel', n1, 256, l1), ('k2_kernel', n2, 256, l2), ('mega_kernel', 256, 704, lm)]
    if timeline or kw.get('stamps'):
        if timeline:
            for i, kk in enumerate(ks): tl.instrument(kk, i)
        ks.append(tl.blocker_kernel())
        launches = [('blocker_kernel', 1, 64, 0)] + launches
    open(out, 'w').write(build_file(ks, launches))
if __name__ == '__main__':
    main('v2.s')
    main('v2t.s', timeline=True)
    main('v2s.s', stamps=True)
```

```python
import re
from asmlib import *
TL_OFF = 120 << 20
def instrument(k, kidx):
    V = (k.vgpr + 1)//2*2
    k.vgpr = V + 4
    k.sgpr = 102
    new = ["    s_memrealtime s[96:97]", f"    s_load_dwordx2 s[98:99], s[0:1], {KA['ws']}", f"    v_lshrrev_b32 v{V+3}, 6, v0",
           "    s_mov_b32 s95, s2"]
    body = k.lines
    out = list(new)
    n = len(body)
    for i, l in enumerate(body):
        if l.strip() == 's_endpgm' and i != n-1:
            out += ["    s_mov_b64 exec, -1",
                    "    s_waitcnt vmcnt(0) lgkmcnt(0)",
                    "    s_memrealtime s[100:101]",
                    f"    s_add_u32 s88, s98, 0x{TL_OFF + kidx*(1<<20):x}",
                    "    s_addc_u32 s89, s99, 0",
                    "    s_mov_b32 s90, 0x100000",
                    "    s_mov_b32 s91, 0x00020000",
                    "    s_waitcnt lgkmcnt(0)",
                    f"    v_mov_b32 v{V}, s96",
                    f"    v_mov_b32 v{V+1}, s100",
                    "    s_lshl_b32 s95, s95, 4",
                    f"    v_add_u32 v{V+2}, s95, v{V+3}",
                    f"    v_lshlrev_b32 v{V+2}, 3, v{V+2}",
                    f"    buffer_store_dwordx2 v[{V}:{V+1}], v{V+2}, s[88:91], 0 offen"]
        out.append(l)
    k.lines = out

def blocker_kernel(us=300):
    k = Kernel('blocker_kernel', vgpr=8, sgpr=16)
    k("s_memrealtime s[4:5]")
    k("s_waitcnt lgkmcnt(0)")
    lp = k.label('lp')
    k(f"{lp}:")
    k("s_sleep 10")
    k("s_memrealtime s[6:7]")
    k("s_waitcnt lgkmcnt(0)")
    k("s_sub_u32 s8, s6, s4")
    k(f"s_cmp_lt_u32 s8, {us*100}")
    k(f"s_cbranch_scc1 {lp}")
    k("s_endpgm")
    return k

def scrub_kernel(n=20000):
    k = Kernel('scrub_kernel', vgpr=8, sgpr=16)
    for i in range(n):
        k.lines.append("    v_add_f32 v1, v1, v2")
    k("s_endpgm")
    return k

def report_kernel(nk, back=0):
    k = Kernel('report_kernel', vgpr=16, sgpr=32)
    done = k.label('done')
    k("s_cmp_ge_u32 s2, 1")
    k(f"s_cbranch_scc1 {done}")
    k("s_memrealtime s[20:21]")
    k(f"s_load_dwordx2 s[6:7], s[0:1], {KA['ws']}")
    k(f"s_load_dwordx2 s[4:5], s[0:1], {KA['dbg']}")
    k("s_waitcnt lgkmcnt(0)")
    k.srd(8, 6, 16 << 20, TL_OFF)
    k(f"s_sub_u32 s12, s4, {back}")
    k("s_subb_u32 s13, s5, 0")
    k("s_mov_b32 s14, 256")
    k("s_mov_b32 s15, 0x00020000")
    k("v_lshrrev_b32 v1, 1, v0")
    k("v_lshlrev_b32 v1, 20, v1")
    k("v_and_b32 v2, 1, v0")
    k("v_lshl_add_u32 v1, v2, 2, v1")
    k("buffer_load_dword v3, v1, s[8:11], 0 offen")
    k("v_mov_b32 v4, s20")
    k(f"v_cmp_eq_u32 vcc, {2*nk}, v0")
    k("s_waitcnt vmcnt(0)")
    k("v_cndmask_b32 v3, v3, v4, vcc")
    k("v_lshlrev_b32 v2, 2, v0")
    k(f"v_cmp_ge_u32 vcc, {2*nk}, v0")
    k("s_and_saveexec_b64 s[16:17], vcc")
    k("buffer_store_dword v3, v2, s[12:15], 0 offen")
    k(f"{done}:")
    k("s_endpgm")
    return k
```

```python
import sys
sys.path.insert(0, 'work')
from gcore import *
import gen_a as ga, gen_m as gm, tl
def main(out, timeline=False, report=False, **kw):
    k1, n1, l1 = ga.k1_kernel()
    k2, n2, l2 = ga.k2_kernel(clear_bytes=gm.HO_BYTES, cw_off=gm.WS_CWP)
    km, lm = gm.mega_kernel(**kw)
    ks = [k1, k2, km]
    launches = [('k1_kernel', n1, 256, l1), ('k2_kernel', n2, 256, l2), ('mega_kernel', 256, 704, lm)]
    if report:
        for i, kk in enumerate(ks): tl.instrument(kk, i)
        ks.append(tl.report_kernel(len(launches)))
        launches = launches + [('report_kernel', 1, 64, 0)]
    if timeline or kw.get('stamps'):
        if timeline:
            for i, kk in enumerate(ks): tl.instrument(kk, i)
        ks.append(tl.blocker_kernel())
        ks.append(tl.scrub_kernel())
        launches = [('blocker_kernel', 1, 64, 0)] + launches + [('scrub_kernel', 1024, 64, 0)]
    open(out, 'w').write(build_file(ks, launches))
if __name__ == '__main__':
    main('v2.s')
    main('v2t.s', timeline=True)
    main('v2s.s', stamps=True)
    main('v2r.s', report=True)
```

```python
import sys, math
sys.path.insert(0, 'work')
from asmlib import *

L, D, N, F, FH = 2048, 576, 128, 4608, 2304
MB = 1 << 20
LOG2E = math.log2(math.e)
WS_STAMP = 0
WS_U, WS_KF = 1*MB, 4*MB
WS_H, WS_X2 = 12*MB, 16*MB
WS_WINT, WS_WOUTT = 20*MB, 26*MB
WS_STAT = 30*MB
WS_Z2T, WS_ZG = 40*MB, 52*MB
WS_XT, WS_HT, WS_KH = 64*MB, 68*MB, 72*MB
WS_SIZE = 128*MB

GC1 = -2.0*LOG2E*math.sqrt(2.0/math.pi)
GC2 = GC1*0.044715

class Cfg:
    def __init__(self, p_tiles0, p_tiles1, nq_per_wave, p_rows, nslot, p_map, q_map, swap):
        self.cls = [p_tiles0, p_tiles1]
        self.nq = nq_per_wave
        self.p_rows = p_rows
        self.q_rows = 64*nq_per_wave
        ntp = len(p_tiles0) + len(p_tiles1)
        self.P_SLOT = ntp*2048
        self.Q_SLOT = self.q_rows*128
        self.NS = nslot
        self.P_BASE = 0
        self.Q_BASE = nslot*self.P_SLOT
        self.LDS = nslot*(self.P_SLOT + self.Q_SLOT)
        self.p_map = p_map
        self.q_map = q_map
        self.swap = swap

def loader_voffs(k, V, ninstr, tmap, stride, chunkmap=None, tile16=None):
    k("v_lshrrev_b32 v3, 3, v2")
    k("v_and_b32 v4, 7, v2")
    k("v_lshrrev_b32 v5, 4, v2")
    k("v_xor_b32 v4, v4, v5")
    if chunkmap:
        k("v_lshrrev_b32 v5, 2, v4")
        k("v_and_b32 v4, 3, v4")
        k("v_lshlrev_b32 v4, 4, v4")
        k(f"v_mul_u32_u24 v6, {chunkmap}, v5")
        k("v_xor_b32 v5, 1, v5")
        k(f"v_mul_u32_u24 v5, {chunkmap}, v5")
        k("v_add_u32 v5, v5, v4")
        k("v_add_u32 v4, v6, v4")
    else:
        k("v_lshlrev_b32 v4, 4, v4")
        k("v_xor_b32 v5, 64, v4")
    k("v_lshrrev_b32 v6, 2, v3")
    k("v_lshlrev_b32 v6, 3, v6")
    k("v_and_b32 v7, 3, v3")
    k("v_add_u32 v6, v6, v7")
    k(f"v_mul_u32_u24 v6, {stride}, v6")
    k(f"v_mul_u32_u24 v3, {stride}, v3")
    k("v_add_u32 v8, v6, v4")
    k("v_add_u32 v9, v6, v5")
    k("v_add_u32 v10, v3, v4")
    k("v_add_u32 v11, v3, v5")
    for j in range(ninstr):
        base, e = tmap[j >> 1]
        if e is None:
            src = 10 + (j & 1); c = base + 8*(j & 1)
        else:
            src = 8 + (j & 1); c = base + 16*(j & 1) + 4*e
        if c == 0:
            k(f"v_mov_b32 v{V+j}, v{src}")
        else:
            cb = c*stride if tile16 is None else (c >> 4)*tile16 + (c & 15)*stride
            k(f"v_add_u32 v{V+j}, 0x{cb:x}, v{src}")

def emit_loader(k, ninstr, tmap, lds_base, slot_bytes, NS, phases, SRD=16):
    V = 16; V2 = 48
    G = sum(p['nst'] for p in phases)
    inflight = min(NS - 1, 63 // ninstr)
    phases[0]['setup'](k)
    loader_voffs(k, V, ninstr, tmap, phases[0]['stride'])
    switch_at = {}
    g = 0
    for pi, p in enumerate(phases[:-1]):
        g += p['nst']; switch_at[g] = pi + 1
    assert len(phases) <= 2
    def issue(slot):
        for j in range(ninstr):
            k(f"s_mov_b32 m0, {lds_base + slot*slot_bytes + j*1024}")
            k("s_nop 0")
            k(f"buffer_load_dwordx4 v{V+j}, s[{SRD}:{SRD+3}], s44 offen lds")
        k("s_add_u32 s44, s44, 128")
    def switch(pi):
        phases[pi]['setup'](k)
        for j in range(ninstr):
            k(f"v_mov_b32 v{V+j}, v{V2+j}")
    issued = 0
    for s in range(min(inflight, NS)):
        issue(s); issued += 1
        if s == 0 and len(phases) > 1:
            loader_voffs(k, V2, ninstr, tmap, phases[1]['stride'])
    k(f"s_waitcnt vmcnt({(inflight-1)*ninstr})")
    while issued < NS:
        assert issued not in switch_at
        issue(issued); issued += 1
        if issued < NS:
            k(f"s_waitcnt vmcnt({(inflight-1)*ninstr})")
    k("s_barrier")
    W = min((NS-2)*ninstr, 63)
    nsteady = G - NS
    nloop = nsteady // NS
    rem = nsteady - nloop*NS
    if nloop:
        k(f"s_mov_b32 s43, 0")
        lp = k.label('lpl')
        k(f"{lp}:")
        for sl in range(NS):
            k(f"s_waitcnt vmcnt({W})")
            k("s_barrier")
            for gs, pi in switch_at.items():
                if gs >= NS and gs < NS + nloop*NS and (gs % NS) == sl:
                    it = (gs - NS)//NS
                    sk = k.label('sk')
                    k(f"s_cmp_lg_u32 s43, {it}")
                    k(f"s_cbranch_scc1 {sk}")
                    switch(pi)
                    k(f"{sk}:")
            issue(sl)
        k("s_add_u32 s43, s43, 1")
        k(f"s_cmp_lg_u32 s43, {nloop}")
        k(f"s_cbranch_scc1 {lp}")
    for r in range(rem):
        gs = NS + nloop*NS + r
        k(f"s_waitcnt vmcnt({W})")
        k("s_barrier")
        if gs in switch_at:
            switch(switch_at[gs])
        issue(gs % NS)
    for r in range(NS):
        k(f"s_waitcnt vmcnt({min(max(NS-2-r, 0)*ninstr, 63)})")
        k("s_barrier")
    k("s_endpgm")

class Comp:
    def __init__(self, k, cfg, ci, S0, S1, va=6):
        self.k, self.cfg, self.ci = k, cfg, ci
        self.nm = len(cfg.cls[ci]); self.nq = cfg.nq
        self.S = [S0, S1]
        self.va = va
    def reads(self, si, slot, ks):
        c = self.cfg; S = self.S[si]; out = []
        vp = self.va + ks; vq = self.va + 2 + ks
        for n in range(self.nq):
            out.append(f"ds_read_b128 v[{S+4*n}:{S+4*n+3}], v{vq} offset:{slot*c.Q_SLOT + n*2048}")
        for m in range(self.nm):
            r = S + 4*self.nq + 4*m
            out.append(f"ds_read_b128 v[{r}:{r+3}], v{vp} offset:{slot*c.P_SLOT + m*2048}")
        return out
    def mfmas(self, si, ACC, zero=False):
        S = self.S[si]; out = []
        for m in range(self.nm):
            for n in range(self.nq):
                a = ACC + (m*self.nq + n)*4
                p = S + 4*self.nq + 4*m; q = S + 4*n
                x, y = (q, p) if self.cfg.swap else (p, q)
                c = "0" if zero else f"v[{a}:{a+3}]"
                out.append(f"v_mfma_f32_16x16x32_bf16 v[{a}:{a+3}], v[{x}:{x+3}], v[{y}:{y+3}], {c}")
        return out
    def interleave(self, ms, rs, extra=None, per=2):
        k = self.k
        for i, m in enumerate(ms):
            k(m)
            if i < len(rs):
                k(rs[i])
            if extra:
                for _ in range(per):
                    if extra: k(extra.pop(0))
        for r in rs[len(ms):]:
            k(r)
    def stage(self, slot, ACC, nslot_next, zero=False, extra=None, per=2, last=False):
        k = self.k
        self.interleave(self.mfmas(0, ACC, zero), self.reads(1, slot, 1), extra, per)
        k("s_waitcnt lgkmcnt(0)")
        k("s_barrier")
        self.interleave(self.mfmas(1, ACC), [] if last else self.reads(0, nslot_next, 0), extra, per)
        if not last:
            k("s_waitcnt lgkmcnt(0)")

def comp_addrs(k, cfg, va=6):
    k("v_and_b32 v3, 15, v2")
    k("v_lshrrev_b32 v4, 4, v2")
    k("v_lshrrev_b32 v5, 1, v3")
    k("v_xor_b32 v5, v5, v4")
    k("v_lshlrev_b32 v5, 4, v5")
    k("v_lshl_add_u32 v5, v3, 7, v5")
    k("s_and_b32 s40, s15, 3")
    k("s_lshr_b32 s41, s15, 2")
    k(f"s_mul_i32 s42, s41, {cfg.cls[1][0]*2048}")
    k(f"v_add_u32 v{va}, s42, v5")
    k(f"v_xor_b32 v{va+1}, 64, v{va}")
    k(f"s_mul_i32 s42, s40, {cfg.nq*2048}")
    k(f"s_add_u32 s42, s42, {cfg.Q_BASE}")
    k(f"v_add_u32 v{va+2}, s42, v5")
    k(f"v_xor_b32 v{va+3}, 64, v{va+2}")

def gelu_ops(x, t0, t1):
    return [f"v_mul_f32 v{t0}, v{x}, v{x}",
            f"v_fmaak_f32 v{t0}, v{t0}, v{t1}, {fhex(GC1)}",
            f"v_mul_f32 v{t0}, v{t0}, v{x}",
            f"v_exp_f32 v{t0}, v{t0}",
            f"v_add_f32 v{t0}, 1.0, v{t0}",
            f"v_rcp_f32 v{t0}, v{t0}",
            f"v_mul_f32 v{x}, v{x}, v{t0}"]

def gelu_stream(regs, temps, cgc2):
    out = []
    nt = len(temps)
    for i in range(0, len(regs), nt):
        grp = regs[i:i+nt]
        seqs = [gelu_ops(x, temps[j], cgc2) for j, x in enumerate(grp)]
        for step in range(7):
            for s in seqs:
                out.append(s[step])
            if len(grp) == 1:
                out.append("s_nop 0")
    return out
```

```python
import sys, math
sys.path.insert(0, 'work')
from gcore import *
import gen_v0 as v0
from gen_a import cexp, cmul, INV2PI, CP, UB, UP, YP
rbf = v0.rbf
SC = "sc1"
WS_UX = 64*MB
WS_HT2 = 72*MB
SPIN = 0x8000
UXP = 8448
POLL_SLEEP = 64

def strip_transpose(k, src_base, R, Cc, dst_off, id_sgpr, cw_off=None, kperm=False):
    tc = Cc//64
    k(f"s_mov_b32 s10, {(1<<32)//tc + 1}")
    k(f"s_mul_hi_u32 s11, s{id_sgpr}, s10")
    k(f"s_mul_i32 s12, s11, {tc}")
    k(f"s_sub_u32 s12, s{id_sgpr}, s12")
    k.srd(16, src_base, R*Cc*2)
    k.srd(20, 6, R*Cc*2, dst_off)
    k("v_and_b32 v2, 63, v0")
    k("v_lshrrev_b32 v1, 6, v0")
    k("s_nop 0")
    k("v_readfirstlane_b32 s15, v1")
    k("v_lshrrev_b32 v3, 3, v2")
    k("v_and_b32 v4, 7, v2")
    k("v_bfe_u32 v5, v2, 4, 1")
    k("v_lshlrev_b32 v5, 1, v5")
    k("v_xor_b32 v4, v4, v5")
    k("v_lshlrev_b32 v4, 4, v4")
    k(f"v_mul_u32_u24 v3, {Cc*2}, v3")
    k("v_add_u32 v4, v4, v3")
    k("v_xor_b32 v5, 64, v4")
    k(f"s_mul_i32 s13, s11, {192*Cc*2}")
    k("s_lshl_b32 s14, s12, 7")
    k("s_add_u32 s13, s13, s14")
    k(f"s_mul_i32 s14, s15, {48*Cc*2}")
    k("s_add_u32 s13, s13, s14")
    k("s_mul_i32 s14, s15, 6144")
    for j in range(6):
        k(f"s_add_u32 m0, s14, {j*1024}")
        k("s_nop 0")
        k(f"buffer_load_dwordx4 v{5 if j&1 else 4}, s[16:19], s13 offen lds")
        k(f"s_add_u32 s13, s13, {8*Cc*2}")
    k("v_and_b32 v3, 15, v2")
    k("v_lshrrev_b32 v6, 4, v2")
    k("v_lshrrev_b32 v7, 2, v3")
    k("v_bfe_u32 v8, v3, 1, 1")
    k("s_lshl_b32 s13, s15, 1")
    k("v_add_u32 v8, s13, v8")
    k("v_and_b32 v9, 2, v7")
    k("v_xor_b32 v8, v8, v9")
    k("v_and_b32 v9, 1, v6")
    k("v_lshlrev_b32 v9, 2, v9")
    k("v_xor_b32 v8, v8, v9")
    k("v_lshlrev_b32 v8, 4, v8")
    k("v_and_b32 v9, 1, v3")
    k("v_lshl_add_u32 v8, v9, 3, v8")
    k("v_lshl_add_u32 v7, v6, 3, v7")
    k("v_lshl_add_u32 v8, v7, 7, v8")
    k("s_lshl_b32 s13, s12, 6")
    k("s_lshl_b32 s14, s15, 4")
    k("s_add_u32 s13, s13, s14")
    k("v_add_u32 v9, s13, v3")
    k(f"v_mul_u32_u24 v9, {R*2}, v9")
    k("v_lshl_add_u32 v9, v6, 4, v9")
    k(f"s_mul_i32 s13, s11, {192*2}")
    if kperm:
        k("v_lshlrev_b32 v10, 4, v6")
        k("v_sub_u32 v9, v9, v10")
        k("s_mul_i32 s14, s11, 43")
        k("s_lshr_b32 s14, s14, 7")
        k("s_mul_i32 s13, s14, 3")
        k("s_sub_u32 s13, s11, s13")
        k("s_mul_i32 s13, s13, 24")
        for b in range(6):
            k(f"s_add_u32 s10, s13, {4*b}")
            k("v_add_u32 v10, s10, v6")
            k("v_mul_u32_u24 v11, 57, v10")
            k("v_lshrrev_b32 v11, 10, v11")
            k("v_mul_u32_u24 v12, 18, v11")
            k("v_sub_u32 v10, v10, v12")
            k("v_cmp_lt_u32 vcc, 9, v10")
            k("v_subrev_u32 v12, 2, v10")
            k("v_lshlrev_b32 v13, 1, v11")
            k("v_cndmask_b32 v12, v10, v12, vcc")
            k("v_lshl_add_u32 v12, v11, 4, v12")
            k("v_add3_u32 v13, v13, v10, 56")
            k("v_and_b32 v14, 0x1e, v10")
            k("v_cmp_eq_u32 vcc, 8, v14")
            k("s_nop 1")
            k("v_cndmask_b32 v12, v12, v13, vcc")
            k(f"v_lshl_add_u32 v{40+b}, v12, 4, v9")
        k(f"s_mul_i32 s13, s14, {72*16}")
    k("s_waitcnt vmcnt(0)")
    k("s_barrier")
    for b in range(6):
        for x in range(2):
            k(f"ds_read_b64_tr_b16 v[{16+4*b+2*x}:{17+4*b+2*x}], v8 offset:{(32*b+4*x)*128}")
    for b in range(6):
        k(f"s_waitcnt lgkmcnt({10-2*b})")
        if kperm: k(f"buffer_store_dwordx4 v[{16+4*b}:{19+4*b}], v{40+b}, s[20:23], s13 offen")
        else: k(f"buffer_store_dwordx4 v[{16+4*b}:{19+4*b}], v9, s[20:23], s13 offen offset:{64*b}")
    if cw_off is not None:
        k.srd(24, 6, 3*Cc*4, cw_off)
        k("v_mov_b32 v10, 0"); k("v_mov_b32 v11, 0")
        k("s_mov_b32 s14, 0x3f803f80")
        for i in range(24):
            k(f"v_dot2_f32_bf16 v{10+(i&1)}, v{16+i}, s14, v{10+(i&1)}")
        k.nop(3)
        k("v_add_f32 v10, v10, v11")
        k("v_mov_b32 v11, v10")
        k.nop(2)
        k("v_permlane32_swap_b32 v10, v11")
        k("v_add_f32 v10, v10, v11")
        k("v_mov_b32 v11, v10")
        k.nop(2)
        k("v_permlane16_swap_b32 v10, v11")
        k("v_add_f32 v10, v10, v11")
        k(f"s_mul_i32 s13, s11, {Cc*4}")
        k("s_lshl_b32 s14, s12, 8")
        k("s_add_u32 s13, s13, s14")
        k("s_lshl_b32 s14, s15, 6")
        k("s_add_u32 s13, s13, s14")
        k("v_lshlrev_b32 v11, 2, v3")
        k("s_mov_b64 exec, 0xffff")
        k("buffer_store_dword v10, v11, s[24:27], s13 offen")
    k("s_endpgm")

KR_PITCH = 4224
WS_KR = 80*MB
def ka_kernel(name='ka_kernel', clear=None, cw_off=None, ht_off=WS_HT2, mode='fused'):
    k = Kernel(name, vgpr=112 if mode != 'k1' else 72, sgpr=80)
    NR, NC, N1, N2, N3, NPF = 128, D, 216, 108, 72, 128
    if mode == 'k1': N1 = N2 = N3 = NPF = 0
    if mode == 'k2': NR = 0
    SC = globals()['SC'] if mode == 'fused' else ''
    b1 = NR; b2 = b1+NC; b3 = b2+N1; b4 = b3+N2; b5 = b4+N3; b6 = b5+NPF
    done = k.label('done'); lC = k.label('conv'); lW1 = k.label('w1'); lW2 = k.label('w2'); lCW = k.label('cw'); lPF = k.label('pf')
    lX = k.label('xw'); lJ = k.label('join')
    k(f"s_cmp_ge_u32 s2, {b6}")
    k(f"s_cbranch_scc1 {done}")
    k("s_load_dwordx16 s[16:31], s[0:1], 0")
    k("s_load_dwordx4 s[4:7], s[0:1], 120")
    k(f"s_cmp_ge_u32 s2, {b2}")
    k(f"s_cbranch_scc1 {lW1}")
    k(f"s_cmp_ge_u32 s2, {b1}")
    k(f"s_cbranch_scc1 {lC}")
    RP = 1184
    k("s_and_b32 s13, s2, 7")
    k("s_lshl_b32 s13, s13, 4")
    k("s_lshr_b32 s3, s2, 3")
    k("s_add_u32 s13, s13, s3")
    k("s_lshl_b32 s3, s13, 4")
    k("v_lshrrev_b32 v1, 4, v0")
    k("v_add_u32 v5, s3, v1")
    k("v_and_b32 v2, 15, v0")
    k(f"v_mul_u32_u24 v3, {D*2}, v5")
    k("v_lshl_add_u32 v3, v2, 3, v3")
    k("s_waitcnt lgkmcnt(0)")
    k.srd(32, 16, L*D*2)
    for q in range(9):
        k(f"buffer_load_dwordx2 v[{8+2*q}:{9+2*q}], v3, s[32:35], 0 offen offset:{128*q}")
    k.srd(36, 6, D*UXP, WS_UX)
    k.srd(40, 4, 256)
    k(f"v_mul_u32_u24 v66, {RP}, v1")
    k("v_lshl_add_u32 v66, v2, 3, v66")
    X = 30
    k("v_mov_b32 v4, 0")
    k("v_mov_b32 v7, 0")
    for q in range(9):
        k(f"s_waitcnt vmcnt({8-q})")
        k(f"ds_write_b64 v66, v[{8+2*q}:{9+2*q}] offset:{16*RP + 128*q}")
        for j in range(2):
            r = 8 + 2*q + j
            k(f"v_lshlrev_b32 v{X+4*q+2*j}, 16, v{r}")
            k(f"v_and_b32 v{X+4*q+2*j+1}, 0xffff0000, v{r}")
            k(f"v_add_f32 v4, v4, v{X+4*q+2*j}")
            k(f"v_add_f32 v7, v7, v{X+4*q+2*j+1}")
    k("v_add_f32 v4, v4, v7")
    def red16(v):
        for ctl in ["quad_perm:[1,0,3,2]", "quad_perm:[2,3,0,1]", "row_half_mirror", "row_mirror"]:
            k.nop(2)
            k(f"v_add_f32_dpp v{v}, v{v}, v{v} {ctl} row_mask:0xf bank_mask:0xf")
    red16(4)
    k(f"v_mul_f32 v4, {fhex(1.0/D)}, v4")
    k("v_mov_b32 v6, 0")
    k("v_mov_b32 v7, 0")
    for i in range(36):
        k(f"v_sub_f32 v{68+(i&3)}, v{X+i}, v4")
        k(f"v_fmac_f32 v{6 + (i&1)}, v{68+(i&3)}, v{68+(i&3)}")
    k("v_add_f32 v6, v6, v7")
    red16(6)
    k(f"v_mul_f32 v6, {fhex(1.0/D)}, v6")
    rbf(k, 4, 4); rbf(k, 6, 6)
    k(f"v_add_f32 v6, {fhex(1e-5)}, v6")
    rbf(k, 6, 6)
    k("v_sqrt_f32 v6, v6")
    k.nop(1)
    rbf(k, 6, 6)
    k("v_rcp_f32 v5, v6")
    for i in range(36): k(f"v_sub_f32 v{X+i}, v{X+i}, v4")
    for j in range(18): k(f"v_cvt_pk_bf16_f32 v{8+j}, v{X+2*j}, v{X+2*j+1}")
    for j in range(18):
        k(f"v_lshlrev_b32 v{X+2*j}, 16, v{8+j}")
        k(f"v_and_b32 v{X+2*j+1}, 0xffff0000, v{8+j}")
    for i in range(36): k(f"v_mul_f32 v{X+i}, v{X+i}, v5")
    for j in range(18): k(f"v_cvt_pk_bf16_f32 v{8+j}, v{X+2*j}, v{X+2*j+1}")
    for q in range(9):
        k(f"ds_write_b64 v66, v[{8+2*q}:{9+2*q}] offset:{128*q}")
    k("v_and_b32 v2, 63, v0")
    k("v_lshrrev_b32 v1, 6, v0")
    k("v_and_b32 v3, 15, v2")
    k("v_lshrrev_b32 v4, 4, v2")
    k("v_lshrrev_b32 v5, 2, v3")
    k("v_lshl_add_u32 v5, v4, 3, v5")
    k(f"v_mul_u32_u24 v5, {RP}, v5")
    k("v_and_b32 v6, 3, v3")
    k("v_lshl_add_u32 v5, v6, 3, v5")
    k(f"v_mul_u32_u24 v6, {9*32}, v1")
    k("v_add_u32 v5, v5, v6")
    k(f"v_mul_u32_u24 v6, {9*16}, v1")
    k("v_add_u32 v6, v6, v3")
    k(f"v_mul_u32_u24 v6, {UXP}, v6")
    k("v_lshl_add_u32 v6, v4, 4, v6")
    k("s_lshl_b32 s3, s13, 6")
    k("s_waitcnt lgkmcnt(0)")
    k("s_barrier")
    for g in range(9):
        for x in range(2):
            k(f"ds_read_b64_tr_b16 v[{8+4*g+2*x}:{9+4*g+2*x}], v5 offset:{32*g + 4*x*RP}")
    for g in range(9):
        k(f"s_waitcnt lgkmcnt({min(16-2*g, 15)})")
        k(f"buffer_store_dwordx4 v[{8+4*g}:{11+4*g}], v6, s[36:39], s3 offen {SC}")
        k(f"s_add_u32 s3, s3, {16*UXP}")
    if mode == 'fused':
        k("s_waitcnt vmcnt(0)")
        k("s_barrier")
        k("v_cmp_eq_u32 vcc, 0, v0")
        k("s_and_saveexec_b64 s[8:9], vcc")
        k(f"s_cbranch_execz {done}")
        k("v_mov_b32 v1, 1")
        k("s_lshl_b32 s3, s2, 1")
        k(f"buffer_store_short v1, v0, s[40:43], s3 offen {SC}")
    k("s_endpgm")

    k(f"{lC}:")
    k(f"s_load_dwordx2 s[8:9], s[0:1], {KA['Dskip']}")
    k(f"s_sub_u32 s14, s2, {b1}")
    XP = 528
    XA, YB, TB = 0, 21*XP, UB
    k("v_and_b32 v1, 127, v0")
    k("v_lshlrev_b32 v2, 1, v1")
    k("s_lshl_b32 s3, s14, 8")
    k("v_add_u32 v2, s3, v2")
    k("s_lshl_b32 s3, s14, 1")
    k("v_mov_b32 v3, s3")
    k("v_lshrrev_b32 v4, 6, v0")
    k("s_waitcnt lgkmcnt(0)")
    k("v_readfirstlane_b32 s15, v4")
    for i in range(6): k.srd(32+4*i, 18+2*i, D*N*2)
    k.srd(56, 30, D*2)
    k.srd(60, 8, D*2)
    k("buffer_load_ushort v16, v3, s[56:59], 0 offen")
    for i in range(6):
        k(f"buffer_load_ushort v{10+i}, v2, s[{32+4*i}:{35+4*i}], 0 offen")
    k("buffer_load_ushort v104, v3, s[60:63], 0 offen")
    G = 56
    k("v_lshlrev_b32 v5, 3, v0")
    for e in range(8):
        k(f"v_sub_u32 v6, {2047-e}, v5")
        k("v_cvt_f32_u32 v6, v6")
        k("v_cvt_pk_bf16_f32 v6, v6, v6")
        k("v_lshlrev_b32 v6, 16, v6")
        k("v_cvt_u32_f32 v6, v6")
        k("v_lshrrev_b32 v7, 8, v6")
        k("v_and_b32 v8, 7, v6")
        k("v_lshl_add_u32 v7, v7, 3, v8")
        k("v_bfe_u32 v8, v6, 3, 5")
        k("v_lshlrev_b32 v8, 1, v8")
        k(f"v_lshl_add_u32 v{G+e}, v7, 6, v8")
    k("s_waitcnt vmcnt(0)")
    k.srd(32, 6, D*UXP, WS_UX)
    k.srd(36, 4, 256)
    k.srd(44, 6, D*L*2, ht_off)
    for i in range(7): k(f"v_lshlrev_b32 v{10+i}, 16, v{10+i}")
    Lhi = struct.unpack('<f', struct.pack('<f', LOG2E))[0]
    Llo = LOG2E - Lhi
    k(f"s_mov_b32 s8, {fhex(Lhi)}")
    k(f"s_mov_b32 s9, {fhex(Llo)}")
    k("v_mul_f32 v17, s8, v16")
    k("v_fma_f32 v18, v16, s8, -v17")
    k("v_fma_f32 v18, v16, s9, v18")
    k("v_exp_f32 v17, v17")
    k(f"v_mul_f32 v18, {fhex(math.log(2.0))}, v18")
    k("v_fma_f32 v17, v17, v18, v17")
    rbf(k, 17, 17)
    k("v_mul_f32 v20, v17, v10")
    k("v_mul_f32 v21, v17, v11")
    k(f"v_mul_f32 v20, {fhex(LOG2E)}, v20")
    k(f"v_mul_f32 v21, {fhex(INV2PI)}, v21")
    k("v_lshlrev_b32 v9, 2, v1")
    k("s_cmp_ge_u32 s15, 2")
    k(f"s_cbranch_scc1 {lX}")
    cexp(k, 22, 23, 20, 21, 8, 24)
    k("v_mov_b32 v30, 0x00003f80")
    k(f"ds_write_b32 v9, v30 offset:{YB}")
    k("v_cvt_pk_bf16_f32 v31, v22, v23")
    k(f"ds_write_b32 v9, v31 offset:{YB+XP}")
    cmul(k, 24, 25, 22, 23, 22, 23)
    k("v_cvt_pk_bf16_f32 v30, v24, v25")
    k(f"ds_write_b32 v9, v30 offset:{YB+2*XP}")
    cur = {1: (22, 23), 0: (24, 25)}
    free = [(26, 27), (28, 29), (32, 33), (34, 35)]
    fi = 0
    for b in range(3, 32):
        a = cur[b & 1]; d_ = free[fi % 4]; fi += 1
        cmul(k, d_[0], d_[1], a[0], a[1], 24, 25)
        k(f"v_cvt_pk_bf16_f32 v{30 + (b&1)}, v{d_[0]}, v{d_[1]}")
        k(f"ds_write_b32 v9, v{30 + (b&1)} offset:{YB+b*XP}")
        cur[b & 1] = d_
    k(f"s_branch {lJ}")
    k(f"{lX}:")
    k("v_mul_f32 v12, v17, v12")
    k("v_mul_f32 v13, v17, v13")
    X0 = 24
    cmul(k, X0, X0+1, 14, 15, 12, 13)
    cexp(k, 22, 23, 20, 21, 1, 40)
    cexp(k, 42, 43, 20, 21, 256, 40)
    cexp(k, 44, 45, 20, 21, 512, 40)
    cexp(k, 46, 47, 20, 21, 1024, 40)
    def putX(row, r, i_):
        k(f"v_cvt_pk_bf16_f32 v{40 + (row&1)}, v{r}, -v{i_}")
        k(f"ds_write_b32 v9, v{40 + (row&1)} offset:{XA+row*XP}")
    putX(0, X0, X0+1)
    for h in range(1, 8):
        cmul(k, X0+2*h, X0+2*h+1, X0+2*h-2, X0+2*h-1, 22, 23)
        putX(h, X0+2*h, X0+2*h+1)
    for i, h in enumerate((0, 2, 4, 6)):
        cmul(k, 48, 49, X0+2*h, X0+2*h+1, 42, 43); putX(8+i, 48, 49)
    for i, h in enumerate((0, 4)):
        cmul(k, 48, 49, X0+2*h, X0+2*h+1, 44, 45); putX(12+i, 48, 49)
        cmul(k, 50, 51, 48, 49, 42, 43); putX(14+i, 50, 51)
    cmul(k, 48, 49, X0, X0+1, 46, 47); putX(16, 48, 49)
    cmul(k, 50, 51, 48, 49, 42, 43); putX(17, 50, 51)
    cmul(k, 50, 51, 48, 49, 44, 45); putX(18, 50, 51)
    cmul(k, 52, 53, 50, 51, 42, 43); putX(19, 52, 53)
    cmul(k, 52, 53, 48, 49, 46, 47); putX(20, 52, 53)
    k(f"{lJ}:")
    k("v_and_b32 v2, 15, v0")
    k("v_bfe_u32 v3, v0, 4, 2")
    k(f"v_mul_u32_u24 v4, {XP}, v2")
    k("v_lshl_add_u32 v4, v3, 4, v4")
    k("s_lshr_b32 s3, s15, 1")
    k(f"s_mul_i32 s3, s3, {16*XP}")
    k("v_add_u32 v5, s3, v4")
    k("s_and_b32 s10, s15, 1")
    k(f"s_mul_i32 s11, s10, {16*XP}")
    k(f"s_add_u32 s11, s11, {YB}")
    k("v_add_u32 v6, s11, v4")
    k("s_waitcnt lgkmcnt(0)")
    k("s_barrier")
    for ks in range(4):
        k(f"ds_read_b128 v[{8+8*ks}:{11+8*ks}], v6 offset:{64*ks}")
        k(f"ds_read_b128 v[{12+8*ks}:{15+8*ks}], v5 offset:{64*ks}")
    for ks in range(8):
        r = 8 + 8*(ks % 4)
        k(f"s_waitcnt lgkmcnt({6 if ks < 5 else (7-ks)*2})")
        c = "0" if ks == 0 else "v[40:43]"
        k(f"v_mfma_f32_16x16x32_bf16 v[40:43], v[{r}:{r+3}], v[{r+4}:{r+7}], {c}")
        if ks < 4:
            k(f"ds_read_b128 v[{r}:{r+3}], v6 offset:{64*(ks+4)}")
            k(f"ds_read_b128 v[{r+4}:{r+7}], v5 offset:{64*(ks+4)}")
    k("s_lshr_b32 s3, s15, 1")
    k("s_lshl_b32 s3, s3, 4")
    k("v_add_u32 v7, s3, v2")
    k("v_mov_b32 v44, v7")
    k("v_lshlrev_b32 v45, 1, v7")
    k("v_subrev_u32 v45, 8, v45")
    k("v_max_i32 v44, v44, v45")
    k("v_lshlrev_b32 v45, 2, v7")
    k("v_subrev_u32 v45, 32, v45")
    k("v_max_i32 v44, v44, v45")
    k("v_lshlrev_b32 v45, 3, v7")
    k("v_subrev_u32 v45, 96, v45")
    k("v_max_i32 v44, v44, v45")
    k("v_min_i32 v44, 71, v44")
    k("v_lshlrev_b32 v44, 6, v44")
    k("v_lshl_add_u32 v44, v3, 3, v44")
    k("s_lshl_b32 s10, s10, 5")
    k("v_add_u32 v44, s10, v44")
    k("v_cvt_pk_bf16_f32 v46, v40, v41")
    k("v_cvt_pk_bf16_f32 v47, v42, v43")
    k(f"ds_write_b64 v44, v[46:47] offset:{TB}")
    k("s_waitcnt lgkmcnt(0)")
    k("s_barrier")
    for e in range(8): k(f"ds_read_u16 v{16+e}, v{G+e} offset:{TB}")
    k("v_lshlrev_b32 v1, 4, v0")
    for r in range(40, 44): k(f"v_mov_b32 v{r}, 0")
    k("v_lshrrev_b32 v5, 2, v0")
    k(f"v_mul_u32_u24 v5, {CP}, v5")
    k("v_and_b32 v6, 3, v0")
    k("v_lshl_add_u32 v5, v6, 4, v5")
    k("v_cmp_gt_u32 vcc, 32, v0")
    k("s_and_saveexec_b64 s[10:11], vcc")
    k("ds_write_b128 v5, v[40:43] offset:4096")
    k("s_mov_b64 exec, s[10:11]")
    k("s_waitcnt lgkmcnt(0)")
    for j in range(4): k(f"v_lshl_or_b32 v{8+j}, v{17+2*j}, 16, v{16+2*j}")
    k("ds_write_b128 v1, v[8:11]")
    k("s_waitcnt lgkmcnt(0)")
    k("s_barrier")
    k("ds_read_b128 v[12:15], v1 offset:16")
    k("v_cmp_gt_u32 vcc, 160, v0")
    k("s_and_saveexec_b64 s[10:11], vcc")
    k(f"ds_write_b128 v1, v[40:43] offset:{UB}")
    k("s_mov_b64 exec, s[10:11]")
    k("s_waitcnt lgkmcnt(0)")
    E, O, O2 = 44, 52, 60
    for j in range(6): k(f"v_mov_b32 v{E+j}, v{9+j}")
    for j in range(6): k(f"v_alignbit_b32 v{O+j}, v{9+j}, v{8+j}, 16")
    for j in range(6): k(f"v_alignbit_b32 v{O2+j}, v{10+j}, v{9+j}, 16")
    src = {4: 10, 2: E, 6: E+2, 1: O, 5: O+2, 3: O2, 7: O2+2}
    for c, r in src.items():
        k(f"ds_write_b128 v1, v[{r}:{r+3}] offset:{c*CP}")
    k("v_and_b32 v5, 7, v2")
    k("v_sub_u32 v5, 7, v5")
    k(f"v_mul_u32_u24 v5, {CP}, v5")
    k("v_lshrrev_b32 v6, 3, v2")
    k("v_sub_u32 v6, v3, v6")
    k("v_add_u32 v6, 1, v6")
    k("v_lshl_add_u32 v5, v6, 4, v5")
    k(f"v_mul_u32_u24 v6, {UP}, v2")
    k("v_lshl_add_u32 v6, v3, 4, v6")
    k(f"v_add_u32 v6, {UB}, v6")
    k("v_lshrrev_b32 v7, 3, v0")
    k(f"v_mul_u32_u24 v7, {UP}, v7")
    k("v_and_b32 v20, 7, v0")
    k("v_lshl_add_u32 v7, v20, 4, v7")
    k("v_lshrrev_b32 v20, 1, v0")
    k("v_lshlrev_b32 v20, 6, v20")
    k("v_and_b32 v21, 1, v0")
    k("v_lshl_add_u32 v20, v21, 4, v20")
    k(f"s_mul_i32 s3, s14, {UXP}")
    k("v_and_b32 v21, 63, v0")
    k("v_lshlrev_b32 v21, 2, v21")
    k("v_lshlrev_b32 v104, 16, v104")
    k(f"s_mov_b32 s12, {SPIN}")
    pl = k.label('poll'); pd = k.label('pd')
    k("s_cmp_lg_u32 s15, 0")
    k(f"s_cbranch_scc1 {pd}")
    k(f"{pl}:")
    k(f"buffer_load_dword v22, v21, s[36:39], 0 offen {SC}")
    k("s_waitcnt vmcnt(0)")
    k("v_cmp_ne_u32 vcc, 0x00010001, v22")
    k("s_sub_u32 s12, s12, 1")
    k("s_cmp_eq_u32 s12, 0")
    k(f"s_cbranch_scc1 {pd}")
    k("s_nop 3")
    k(f"s_cbranch_vccz {pd}")
    k(f"s_sleep {POLL_SLEEP}")
    k(f"s_branch {pl}")
    k(f"{pd}:")
    k("s_barrier")
    k(f"buffer_load_dwordx4 v[40:43], v20, s[32:35], s3 offen {SC}")
    k(f"buffer_load_dwordx4 v[16:19], v20, s[32:35], s3 offen offset:32 {SC}")
    XF, UF = 68, 76
    k("s_waitcnt vmcnt(1)")
    k(f"ds_write_b128 v7, v[40:43] offset:{UB + 16*UP}")
    k("s_waitcnt lgkmcnt(0)")
    k("s_barrier")
    for j in range(4):
        k(f"v_lshlrev_b32 v{UF+2*j}, 16, v{40+j}")
        k(f"v_and_b32 v{UF+2*j+1}, 0xffff0000, v{40+j}")
    for e in range(8): k(f"v_mul_f32 v{UF+e}, v{UF+e}, v104")
    for j in range(4): k(f"v_cvt_pk_bf16_f32 v{84+j}, v{UF+2*j}, v{UF+2*j+1}")
    k("s_waitcnt vmcnt(0)")
    for j in range(4):
        k(f"v_lshlrev_b32 v{XF+2*j}, 16, v{16+j}")
        k(f"v_and_b32 v{XF+2*j+1}, 0xffff0000, v{16+j}")
    ACC, AF, BF = 8, 40, 88
    ranges = [(0, 12), (12, 24), (24, 40), (40, 64)]
    labs = [k.label('cw') for _ in range(4)]
    ljoin = k.label('cj')
    for w in range(1, 4):
        k(f"s_cmp_eq_u32 s15, {w}")
        k(f"s_cbranch_scc1 {labs[w]}")
    def ra(phi):
        r = AF + 4*(phi % 6)
        return f"ds_read_b128 v[{r}:{r+3}], v5 offset:{32*(127-phi)}"
    def rb(kap, nt):
        r = BF + 8*(kap & 1) + 4*nt
        off = (16*nt + 16 - (kap >> 1))*UP + (64 if kap % 2 == 0 else 0)
        return f"ds_read_b128 v[{r}:{r+3}], v6 offset:{off}"
    for w in range(4):
        k(f"{labs[w]}:")
        k0, k1_ = ranges[w]
        nts = lambda kap: [0, 1] if kap < 32 else [1]
        def loads(kap, first):
            out = [rb(kap, nt) for nt in nts(kap)]
            for mt in (range(4) if first else (2, 3)):
                p = 2*kap - 2 + mt
                if p >= 0: out.append(ra(p))
            return out
        inited = set()
        for ins in loads(k0, True): k(ins)
        for kap in range(k0, k1_):
            k("s_waitcnt lgkmcnt(0)")
            nxt = loads(kap+1, False) if kap+1 < k1_ else []
            ms = []
            for mt in range(4):
                phi = 2*kap - 2 + mt
                if phi < 0: continue
                for nt in nts(kap):
                    a = ACC + (mt*2+nt)*4
                    ar = AF + 4*(phi % 6); br = BF + 8*(kap & 1) + 4*nt
                    c = f"v[{a}:{a+3}]" if (mt, nt) in inited else "0"
                    inited.add((mt, nt))
                    ms.append(f"v_mfma_f32_16x16x32_bf16 v[{a}:{a+3}], v[{ar}:{ar+3}], v[{br}:{br+3}], {c}")
            for i_, m in enumerate(ms):
                k(m)
                if i_ < len(nxt): k(nxt[i_])
            for ins in nxt[len(ms):]: k(ins)
        k(f"v_mul_u32_u24 v7, {YP}, v2")
        k("v_lshl_add_u32 v7, v3, 4, v7")
        k("s_barrier")
        k.nop(8)
        for mt in range(4):
            for nt in range(2):
                if (mt, nt) not in inited: continue
                a = ACC + (mt*2+nt)*4
                off = w*32*YP + 16*nt*YP + 64*mt - (16*YP if w == 3 else 0)
                k(f"ds_write_b128 v7, v[{a}:{a+3}] offset:{off}")
        if w < 3: k(f"s_branch {ljoin}")
    k(f"{ljoin}:")
    k("v_lshrrev_b32 v5, 3, v0")
    k(f"v_mul_u32_u24 v5, {YP}, v5")
    k("v_and_b32 v6, 7, v0")
    k("v_lshl_add_u32 v5, v6, 5, v5")
    k("s_lshl_b32 s3, s14, 12")
    k("s_waitcnt lgkmcnt(0)")
    k("s_barrier")
    for w in range(3):
        k(f"ds_read_b128 v[{8+8*w}:{11+8*w}], v5 offset:{w*32*YP}")
        k(f"ds_read_b128 v[{12+8*w}:{15+8*w}], v5 offset:{w*32*YP+16}")
    for r in range(32, 40): k(f"v_mov_b32 v{r}, 0")
    sk = k.label('sk')
    k("s_cmp_lt_u32 s15, 2")
    k(f"s_cbranch_scc1 {sk}")
    k(f"ds_read_b128 v[32:35], v5 offset:{3*32*YP - 16*YP}")
    k(f"ds_read_b128 v[36:39], v5 offset:{3*32*YP - 16*YP + 16}")
    k(f"{sk}:")
    k("s_waitcnt lgkmcnt(0)")
    for e in range(8):
        k(f"v_add_f32 v{8+e}, v{8+e}, v{16+e}")
        k(f"v_add_f32 v{24+e}, v{24+e}, v{32+e}")
    for e in range(8): k(f"v_add_f32 v{8+e}, v{8+e}, v{24+e}")
    for j in range(4): k(f"v_cvt_pk_bf16_f32 v{16+j}, v{8+2*j}, v{9+2*j}")
    for j in range(4):
        k(f"v_lshlrev_b32 v{8+2*j}, 16, v{16+j}")
        k(f"v_and_b32 v{9+2*j}, 0xffff0000, v{16+j}")
        k(f"v_lshlrev_b32 v{24+2*j}, 16, v{84+j}")
        k(f"v_and_b32 v{25+2*j}, 0xffff0000, v{84+j}")
    for e in range(8): k(f"v_add_f32 v{8+e}, v{8+e}, v{24+e}")
    for j in range(4): k(f"v_cvt_pk_bf16_f32 v{16+j}, v{8+2*j}, v{9+2*j}")
    for j in range(4):
        k(f"v_lshlrev_b32 v{8+2*j}, 16, v{16+j}")
        k(f"v_and_b32 v{9+2*j}, 0xffff0000, v{16+j}")
    for e in range(8): k(f"v_add_f32 v{8+e}, v{8+e}, v{XF+e}")
    for j in range(4): k(f"v_cvt_pk_bf16_f32 v{16+j}, v{8+2*j}, v{9+2*j}")
    k("buffer_store_dwordx4 v[16:19], v1, s[44:47], s3 offen")
    k("s_endpgm")

    k(f"{lW1}:")
    k("s_load_dwordx8 s[64:71], s[0:1], 80")
    k(f"s_cmp_ge_u32 s2, {b5}")
    k(f"s_cbranch_scc1 {lPF}")
    k(f"s_cmp_ge_u32 s2, {b4}")
    k(f"s_cbranch_scc1 {lCW}")
    k(f"s_cmp_ge_u32 s2, {b3}")
    k(f"s_cbranch_scc1 {lW2}")
    k(f"s_sub_u32 s3, s2, {b2}")
    k("s_waitcnt lgkmcnt(0)")
    k.srd(32, 6, clear[1], clear[0])
    for r in range(20, 24): k(f"v_mov_b32 v{r}, -1")
    k("s_lshl_b32 s13, s3, 12")
    k("v_lshlrev_b32 v24, 4, v0")
    k("buffer_store_dwordx4 v[20:23], v24, s[32:35], s13 offen")
    strip_transpose(k, 64, D, F, WS_WINT, 3)
    k(f"{lW2}:")
    k(f"s_sub_u32 s3, s2, {b3}")
    k("s_waitcnt lgkmcnt(0)")
    strip_transpose(k, 70, FH, D, WS_WOUTT, 3)
    k(f"{lCW}:")
    k(f"s_sub_u32 s3, s2, {b4}")
    k("v_lshrrev_b32 v1, 3, v0")
    k("v_and_b32 v2, 7, v0")
    k(f"v_mul_u32_u24 v3, {F*2}, v1")
    k("v_lshl_add_u32 v3, v2, 4, v3")
    k("s_lshl_b32 s8, s3, 7")
    k("s_waitcnt lgkmcnt(0)")
    k.srd(16, 64, D*F*2)
    k.srd(20, 6, F*4, cw_off)
    for q in range(18):
        k(f"buffer_load_dwordx4 v[{24+4*q}:{27+4*q}], v3, s[16:19], s8 offen")
        k(f"s_add_u32 s8, s8, {32*F*2}")
    for e in range(8): k(f"v_mov_b32 v{8+e}, 0")
    for q in range(18):
        k(f"s_waitcnt vmcnt({17-q})")
        for j in range(4):
            k(f"v_lshlrev_b32 v4, 16, v{24+4*q+j}")
            k(f"v_and_b32 v5, 0xffff0000, v{24+4*q+j}")
            k(f"v_add_f32 v{8+2*j}, v{8+2*j}, v4")
            k(f"v_add_f32 v{9+2*j}, v{9+2*j}, v5")
    k("v_lshlrev_b32 v4, 5, v0")
    k("ds_write_b128 v4, v[8:11]")
    k("ds_write_b128 v4, v[12:15] offset:16")
    k("s_waitcnt lgkmcnt(0)")
    k("s_barrier")
    k("v_cmp_gt_u32 vcc, 64, v0")
    k("s_and_saveexec_b64 s[10:11], vcc")
    k(f"s_cbranch_execz {done}")
    k("v_lshlrev_b32 v4, 2, v0")
    for g in range(32): k(f"ds_read_b32 v{24+g}, v4 offset:{256*g}")
    k("s_waitcnt lgkmcnt(0)")
    for g in range(1, 32): k(f"v_add_f32 v24, v24, v{24+g}")
    k("v_cvt_pk_bf16_f32 v5, v24, v24")
    k("v_lshlrev_b32 v5, 16, v5")
    k("v_sub_f32 v6, v24, v5")
    k("v_cvt_pk_bf16_f32 v5, v24, v6")
    k("s_lshl_b32 s8, s3, 8")
    k("buffer_store_dword v5, v4, s[20:23], s8 offen")
    k("s_endpgm")
    k(f"{lPF}:")
    k(f"s_sub_u32 s3, s2, {b5}")
    k("s_lshl_b32 s3, s3, 16")
    k("v_lshlrev_b32 v1, 4, v0")
    k("s_waitcnt lgkmcnt(0)")
    k.srd(8, 66, L*L*2)
    for j in range(16):
        k(f"buffer_load_dwordx4 v[{8+4*j}:{11+4*j}], v1, s[8:11], s3 offen")
        k("s_add_u32 s3, s3, 4096")
    k("s_waitcnt vmcnt(0)")
    k("s_endpgm")
    k(f"{done}:")
    k("s_endpgm")
    roles = [["R",0,b1],["C",b1,b2],["w1",b2,b3],["w2",b3,b4],["cw",b4,b5],["pf",b5,b6]]
    return k, b6, 40960, roles
```

```python
import sys, math
sys.path.insert(0, 'work')
from gcore import *
import gen_v0 as v0
from gen1 import PAIR9, PLAIN, PAIR5, groups_of, decode_16x16
rbf = v0.rbf

HO_BASE = WS_STAT
HO_ST3 = 0
HO_LN2 = 256*1024
HO_Z2F = HO_LN2 + 9*16*1024
HO_ZGF = HO_Z2F + 2048
HO_BYTES = HO_ZGF + 2048
WS_CWP = 32*MB
WS_HTM = 72*MB
SC = "sc1"
SPIN = 0x8000

class Role:
    def __init__(self, k, name):
        self.k, self.name, self.nb = k, name, 0
    def bar(self, n=1):
        for _ in range(n):
            self.k("s_barrier"); self.nb += 1

def pk(op, d, a, b, c=None, mods=''):
    def r(x): return x if isinstance(x, str) else f"v[{x}:{x+1}]"
    s = f"v_pk_{op}_f32 {r(d)}, {r(a)}, {r(b)}"
    if c is not None: s += f", {r(c)}"
    return s + (' ' + mods if mods else '')

def mega_kernel(name='mega_kernel', NA=4, stamps=False, PF=True, DET=False, GF=16, RINGS=(10, 8), ROT3=True, WARMP=True, LSC=SC, MAP3=True, WARM2=False, PSPREAD=15, FAKEQ=False, FAKEP=False, ZEXP=0):
    cA = Cfg([0,1,2,3,4], [5,6,7,8], 2, 144, 4, PAIR9, PLAIN, swap=False)
    P5S, Q5S = 9216, 8192
    P5N, Q5N = RINGS
    Q5B = P5S*P5N
    SCR = cA.LDS
    SC_RS2 = SCR
    SC_NM2 = SC_RS2 + 512
    SC_P3 = SC_NM2 + 512
    SC_RS3 = SC_P3 + 2048
    SC_MR3 = SC_RS3 + 512
    SC_CW1 = SC_MR3 + 512
    SC_CW2 = SC_CW1 + 768
    LDS = max(SC_CW2 + 768, Q5B + Q5S*Q5N)
    k = Kernel(name, vgpr=164, sgpr=96)
    done = k.label('done'); lP = k.label('ldP'); lQ = k.label('ldQ'); lX = k.label('aux'); c1 = k.label('c1')
    k("s_cmp_ge_u32 s2, 256")
    k(f"s_cbranch_scc1 {done}")
    k(f"s_load_dwordx2 s[6:7], s[0:1], {KA['ws']}")
    k(f"s_load_dwordx4 s[72:75], s[0:1], {KA['wsp']}")
    k(f"s_load_dwordx2 s[4:5], s[0:1], {KA['out']}")
    if stamps:
        k("s_memrealtime s[48:49]")
        k.sgpr = 102
    k("v_lshrrev_b32 v1, 6, v0")
    k("v_and_b32 v2, 63, v0")
    decode_16x16(k)
    k("v_readfirstlane_b32 s15, v1")
    if MAP3:
        k("s_lshr_b32 s77, s2, 3")
        k("s_and_b32 s76, s77, 7")
        k("s_mul_i32 s76, s76, 72")
        k("s_lshr_b32 s77, s77, 3")
        k("s_and_b32 s14, s2, 7")
        k("s_lshl_b32 s14, s14, 2")
        k("s_add_u32 s77, s77, s14")
        k("s_lshl_b32 s77, s77, 6")
    else:
        k("s_and_b32 s76, s10, 7")
        k("s_mul_i32 s76, s76, 72")
        k("s_lshr_b32 s77, s10, 3")
        k("s_lshl_b32 s77, s77, 6")
        k("s_add_u32 s77, s77, s13")
    k("s_cmp_eq_u32 s15, 8")
    k(f"s_cbranch_scc1 {lP}")
    k("s_cmp_eq_u32 s15, 9")
    k(f"s_cbranch_scc1 {lQ}")
    k("s_cmp_eq_u32 s15, 10")
    k(f"s_cbranch_scc1 {lX}")
    nbs = {}
    STR = [48+2*i for i in range(8)] + [84+2*i for i in range(8)]
    class Stamper:
        def __init__(self): self.n = 1
        def __call__(self):
            if stamps:
                r = STR[self.n]; self.n += 1
                k(f"s_memrealtime s[{r}:{r+1}]")
        def dump(self):
            if not stamps: return
            k("s_waitcnt vmcnt(0)")
            self()
            k("s_waitcnt lgkmcnt(0)")
            k.srd(24, 6, 1 << 20, WS_STAMP)
            k("s_lshl_b32 s42, s2, 4")
            k("s_add_u32 s42, s42, s15")
            k("s_lshl_b32 s42, s42, 6")
            k("v_mov_b32 v10, 0")
            for i in range(16): k(f"v_mov_b32 v{16+i}, s{STR[i] if i < self.n else STR[0]}")
            for i in range(4): k(f"buffer_store_dwordx4 v[{16+4*i}:{19+4*i}], v10, s[24:27], s42 offen offset:{16*i}")
    masks = {3: 64, 2: 66, 1: 68, 0: 70}
    def make_masks():
        for b, sr in masks.items():
            k(f"v_and_b32 v12, {1 << b}, v3")
            k(f"v_cmp_ne_u32 s[{sr}:{sr+1}], 0, v12")
    def reduce_scatter(V, W):
        cnt = 16
        for b, ctl in [(3, "row_ror:8"), (2, "row_half_mirror"), (1, "quad_perm:[2,3,0,1]"), (0, "quad_perm:[1,0,3,2]")]:
            half = cnt//2; sr = masks[b]
            for j in range(half):
                k(f"v_cndmask_b32 v{W+j}, v{V+j+half}, v{V+j}, s[{sr}:{sr+1}]")
                k(f"v_cndmask_b32 v{V+j}, v{V+j}, v{V+j+half}, s[{sr}:{sr+1}]")
            k.nop(2)
            for j in range(half):
                k(f"v_add_f32_dpp v{V+j}, v{W+j}, v{V+j} {ctl} row_mask:0xf bank_mask:0xf")
            cnt = half

    comp_addrs(k, cA)
    k("v_lshrrev_b32 v12, 2, v3")
    k("v_and_b32 v13, 3, v3")
    k("v_and_b32 v14, 1, v4")
    k("v_lshl_or_b32 v14, v14, 2, v12")
    k("v_lshlrev_b32 v14, 1, v14")
    k("v_lshrrev_b32 v15, 1, v13")
    k("s_lshl_b32 s42, s40, 2")
    k("v_add_u32 v15, s42, v15")
    k("v_xor_b32 v15, v15, v14")
    k("v_lshlrev_b32 v15, 4, v15")
    k("v_and_b32 v13, 1, v13")
    k("v_lshl_add_u32 v15, v13, 3, v15")
    k("v_lshl_add_u32 v12, v4, 3, v12")
    k("v_lshl_add_u32 v10, v12, 8, v15")
    k(f"v_add_u32 v10, {cA.Q_BASE}, v10")
    k("v_xor_b32 v11, 32, v10")
    make_masks()
    k(f"s_mov_b32 s78, {fhex(-GC2 if ZEXP else GC2)}")
    k(f"s_mov_b32 s79, {fhex(-GC1 if ZEXP else GC1)}")
    k("s_waitcnt lgkmcnt(0)")
    k.srd(20, 6, D*L*2, WS_HTM)
    k.srd(24, 6, FH*L*2, WS_Z2T)
    k.srd(28, 6, L*FH*2, WS_ZG)
    k.srd(32, 74, L*2)
    k.srd(80, 4, L*D*2)
    k("s_cmp_eq_u32 s41, 1")
    k(f"s_cbranch_scc1 {c1}")

    def compute(ci):
        R = Role(k, f'c{ci}')
        ST = Stamper()
        A1 = 16; A2 = 56; S0 = 96; S1 = 124; T = 152
        nm = len(cA.cls[ci])
        class CompM(Comp):
            tr = False
            def reads(self, si, slot, ks):
                if not self.tr: return Comp.reads(self, si, slot, ks)
                c = self.cfg; S = self.S[si]; out = []
                for n in range(2):
                    for x in range(2):
                        out.append(f"ds_read_b64_tr_b16 v[{S+4*n+2*x}:{S+4*n+2*x+1}], v{10+n} offset:{slot*c.Q_SLOT + (32*ks+4*x)*256}")
                for m in range(self.nm):
                    r = S + 8 + 4*m
                    out.append(f"ds_read_b128 v[{r}:{r+3}], v{self.va+ks} offset:{slot*c.P_SLOT + m*2048}")
                return out
            def st(self, slot, ACC, zero=False, last=False, swap=False, pre_bar=None):
                self.cfg.swap = swap
                self.interleave(self.mfmas(0, ACC, zero), self.reads(1, slot, 1))
                k("s_waitcnt lgkmcnt(0)")
                if pre_bar:
                    if DET: ST()
                    k(pre_bar)
                    if DET: ST()
                R.bar()
                self.interleave(self.mfmas(1, ACC), [] if last else self.reads(0, (slot+1) % self.cfg.NS, 0))
                if not last: k("s_waitcnt lgkmcnt(0)")
                self.cfg.swap = False
        def loop(n, body):
            k(f"s_mov_b32 s43, {n}")
            lp = k.label('lp'); k(f"{lp}:")
            nb0 = R.nb
            body()
            R.nb += (n-1)*(R.nb - nb0)
            k("s_sub_u32 s43, s43, 1")
            k("s_cmp_lg_u32 s43, 0")
            k(f"s_cbranch_scc1 {lp}")
        C = CompM(k, cA, ci, S0, S1)
        C.tr = True
        R.bar()
        ST()
        for r in C.reads(0, 0, 0): k(r)
        k("s_waitcnt lgkmcnt(0)")
        C.st(0, A2, zero=True, swap=True)
        loop(2, lambda: [C.st((1+i) % 4, A2, swap=True) for i in range(4)])
        ST()
        def ext_step(ACC, swap):
            QX = S1; PX = S1 + 4
            k("v_lshlrev_b32 v12, 2, v3")
            k("s_lshl_b32 s42, s40, 7")
            k(f"s_add_u32 s42, s42, {SC_NM2}")
            k("v_add_u32 v13, s42, v12")
            k(f"ds_read_b32 v{QX}, v13")
            k(f"ds_read_b32 v{QX+2}, v13 offset:64")
            k(f"v_add_u32 v12, {SC_CW2 if swap else SC_CW1}, v12")
            if not swap:
                k("v_lshrrev_b32 v13, 2, v3")
                k("v_lshlrev_b32 v13, 4, v13")
                k("v_add_u32 v13, v13, v12")
            for m in range(nm):
                if swap:
                    k(f"ds_read_b32 v{PX+2*m}, v12 offset:{cA.cls[ci][m]*64}")
                else:
                    base, e = PAIR9[cA.cls[ci][m]]
                    if e is None: k(f"ds_read_b32 v{PX+2*m}, v12 offset:{base*4}")
                    else:         k(f"ds_read_b32 v{PX+2*m}, v13 offset:{(base+4*e)*4}")
                k(f"v_mov_b32 v{PX+2*m+1}, 0")
            k(f"v_mov_b32 v{QX+1}, 0"); k(f"v_mov_b32 v{QX+3}, 0")
            k("v_cmp_eq_u32 vcc, 0, v4")
            k("s_nop 0")
            k("s_waitcnt lgkmcnt(0)")
            k(f"v_cndmask_b32 v{QX}, 0, v{QX}, vcc")
            k(f"v_cndmask_b32 v{QX+2}, 0, v{QX+2}, vcc")
            k.nop(2)
            for m in range(nm):
                for n in range(2):
                    a = ACC + (m*2+n)*4
                    p = PX + 2*m; q = QX + 2*n
                    x, y = (q, p) if swap else (p, q)
                    k(f"v_mfma_f32_16x16x16_bf16 v[{a}:{a+3}], v[{x}:{x+1}], v[{y}:{y+1}], v[{a}:{a+3}]")
        RS = S1 + 16
        k("v_lshlrev_b32 v14, 4, v4")
        k("s_lshl_b32 s42, s40, 7")
        k("v_add_u32 v14, s42, v14")
        k(f"v_add_u32 v15, {SC_RS2}, v14")
        k(f"ds_read_b128 v[{RS}:{RS+3}], v15")
        k(f"ds_read_b128 v[{RS+4}:{RS+7}], v15 offset:64")
        ext_step(A2, True)
        Vv = S1; Ww = S1 + 16
        k("v_bfe_u32 v12, v3, 2, 1")
        k("v_lshlrev_b32 v12, 4, v12")
        k("v_lshl_add_u32 v12, v4, 2, v12")
        k("v_and_b32 v13, 3, v3")
        k("v_add_u32 v12, v12, v13")
        k("v_lshrrev_b32 v13, 3, v3")
        k("v_lshl_add_u32 v12, v12, 1, v13")
        k("v_lshlrev_b32 v12, 2, v12")
        k("s_lshl_b32 s42, s40, 8")
        k(f"s_add_u32 s42, s42, {SC_P3 + ci*1024}")
        k("v_add_u32 v12, s42, v12")
        for m in range(nm):
            xs = [A2 + m*8 + 2*j for j in range(4)]
            ts = [T + 2*j for j in range(4)]
            for j, x in enumerate(xs): k(pk('mul', x, x, RS + 2*j))
            for x, t in zip(xs, ts): k(pk('mul', t, x, x))
            for x, t in zip(xs, ts): k(pk('fma', t, t, "s[78:79]", "s[78:79]", "op_sel:[0,0,1] op_sel_hi:[1,0,1]"))
            for x, t in zip(xs, ts): k(pk('mul', t, t, x))
            for t in ts: k(f"v_exp_f32 v{t}, v{t}"); k(f"v_exp_f32 v{t+1}, v{t+1}")
            for t in ts: k(pk('add', t, t, "1.0", None, "op_sel_hi:[1,0]"))
            for t in ts: k(f"v_rcp_f32 v{t}, v{t}"); k(f"v_rcp_f32 v{t+1}, v{t+1}")
            for x, t in zip(xs, ts):
                k(pk('fma', x, x, t, x, "neg_lo:[1,0,0] neg_hi:[1,0,0]") if ZEXP else pk('mul', x, x, t))
            for j, x in enumerate(xs):
                if m == 0:
                    k(f"v_pk_mov_b32 v[{Vv+2*j}:{Vv+2*j+1}], v[{x}:{x+1}], v[{x}:{x+1}] op_sel:[0,1]")
                    k(pk('mul', Vv+8+2*j, x, x))
                else:
                    k(pk('add', Vv+2*j, Vv+2*j, x))
                    k(pk('fma', Vv+8+2*j, x, x, Vv+8+2*j))
        reduce_scatter(Vv, Ww)
        k(f"ds_write_b32 v12, v{Vv}")
        k("s_waitcnt lgkmcnt(0)")
        R.bar()
        ST()
        for g in range(9, 9+NA):
            C.st(g % 4, A1, zero=(g == 9))
        ST()
        CR = S1; CM = S1 + 8
        k(f"v_add_u32 v15, {SC_RS3}, v14")
        for n in range(2):
            k(f"ds_read_b128 v[{CR+4*n}:{CR+4*n+3}], v15 offset:{64*n}")
            k(f"ds_read_b128 v[{CM+4*n}:{CM+4*n+3}], v15 offset:{512 + 64*n}")
        k("v_lshlrev_b32 v13, 6, v3")
        k("v_lshl_add_u32 v13, v4, 4, v13")
        k("s_lshl_b32 s42, s10, 6")
        k("s_lshl_b32 s44, s11, 2")
        k("s_add_u32 s42, s42, s44")
        k("s_add_u32 s42, s42, s40")
        k("s_mul_i32 s42, s42, 9216")
        k("v_add_u32 v13, s42, v13")
        k("s_waitcnt lgkmcnt(0)")
        for m in range(nm):
            a = A2 + m*8
            for j in range(4):
                k(pk('mul', a+2*j, a+2*j, CR+2*j) if ZEXP == 2 else pk('fma', a+2*j, a+2*j, CR+2*j, CM+2*j, "neg_lo:[0,0,1] neg_hi:[0,0,1]"))
            for j in range(4):
                k(f"v_cvt_pk_bf16_f32 v{a+j}, v{a+2*j}, v{a+2*j+1}")
            k(f"s_mov_b32 s44, {cA.cls[ci][m]*1024}")
            k("s_nop 0")
            k(f"v_permlane32_swap_b32 v{a}, v{a+2}")
            k(f"v_permlane32_swap_b32 v{a+1}, v{a+3}")
            k("s_nop 0")
            k(f"v_permlane16_swap_b32 v{a}, v{a+2}")
            k(f"v_permlane16_swap_b32 v{a+1}, v{a+3}")
            k(f"buffer_store_dwordx4 v[{a}:{a+3}], v13, s[24:27], s44 offen {SC}")
        ST()
        for g in range(9+NA, 18):
            C.st(g % 4, A1, last=(g == 17), pre_bar="s_waitcnt vmcnt(0)" if g == GF else None)
        ST()
        KC = S1 + 16
        k("v_lshlrev_b32 v12, 2, v3")
        k("s_lshl_b32 s42, s40, 7")
        k(f"s_add_u32 s42, s42, {SC_RS2}")
        k("v_add_u32 v12, s42, v12")
        k(f"ds_read_b32 v{KC+2}, v12")
        k(f"ds_read_b32 v{KC+6}, v12 offset:64")
        k("s_lshl_b32 s42, s40, 5")
        k("s_add_u32 s42, s42, s13")
        k("v_add_u32 v14, s42, v3")
        k("v_lshlrev_b32 v15, 1, v14")
        k(f"buffer_load_ushort v{T+8}, v15, s[32:35], 0 offen")
        k(f"buffer_load_ushort v{T+10}, v15, s[32:35], 0 offen offset:32")
        ext_step(A1, False)
        for n in range(2):
            b = KC + 4*n
            k(f"v_mul_f32 v{b+1}, {fhex(GC1)}, v{b+2}")
            k(f"v_mul_f32 v{b}, v{b+2}, v{b+2}")
            k(f"v_mul_f32 v{b}, v{b}, v{b+2}")
            k(f"v_mul_f32 v{b}, {fhex(GC2)}, v{b}")
            k(f"v_rcp_f32 v{b+2}, v{b+2}")
        k.nop(2)
        for m in range(nm):
            xs = [A1 + m*8 + 2*j for j in range(4)]
            ts = [T + 2*j for j in range(4)]
            bs = [KC + 4*(j >> 1) for j in range(4)]
            for x, t in zip(xs, ts): k(pk('mul', t, x, x))
            for t, b in zip(ts, bs): k(pk('fma', t, t, b, b, "op_sel:[0,0,1] op_sel_hi:[1,0,1]"))
            for x, t in zip(xs, ts): k(pk('mul', t, t, x))
            for t in ts: k(f"v_exp_f32 v{t}, v{t}"); k(f"v_exp_f32 v{t+1}, v{t+1}")
            for t, b in zip(ts, bs): k(pk('fma', t, t, b+2, b+2, "op_sel_hi:[1,0,0]"))
            for t in ts: k(f"v_rcp_f32 v{t}, v{t}"); k(f"v_rcp_f32 v{t+1}, v{t+1}")
            for x, t in zip(xs, ts): k(pk('mul', x, x, t))
        C.tr = False
        ST()
        R.bar()
        ST()
        for r in C.reads(0, 2, 0): k(r)
        k("s_waitcnt lgkmcnt(0)")
        C.st(2, A2, zero=True)
        for i in range(3): C.st((3+i) % 4, A2)
        loop(7, lambda: [C.st((2+i) % 4, A2) for i in range(4)])
        ST()
        k("s_lshl_b32 s42, s11, 3")
        k("s_lshl_b32 s44, s40, 1")
        k("s_add_u32 s42, s42, s44")
        k("s_lshl_b32 s42, s42, 4")
        k("s_add_u32 s42, s42, s10")
        k("s_mul_i32 s42, s42, 4608")
        k("v_lshlrev_b32 v14, 6, v3")
        k("v_lshl_add_u32 v14, v4, 4, v14")
        k("v_add_u32 v14, s42, v14")
        k("v_lshlrev_b32 v15, 5, v3")
        k("v_lshl_add_u32 v15, v4, 3, v15")
        k("v_add_u32 v15, s42, v15")
        k("v_add_u32 v15, 4096, v15")
        k("s_waitcnt vmcnt(0)")
        k(f"v_lshlrev_b32 v{T+8}, 16, v{T+8}")
        k(f"v_lshlrev_b32 v{T+10}, 16, v{T+10}")
        k(f"s_mov_b32 s44, {16*4608}")
        k.nop(2)
        O = S0
        PB = {0: 0, 32: 1024, 80: 2048, 112: 3072}
        for gi, (ms, base) in enumerate(groups_of(cA.cls[ci], PAIR9)):
            for n in range(2):
                for mi, m in enumerate(ms):
                    a = (m*2+n)*4
                    for j in range(2): k(pk('add', A2+a+2*j, A2+a+2*j, T+8+2*n, None, "op_sel_hi:[1,0]"))
                    for j in range(2): k(pk('mul', A2+a+2*j, A2+a+2*j, A1+a+2*j))
                    for j in range(2): k(f"v_cvt_pk_bf16_f32 v{O+mi*2+j}, v{A2+a+2*j}, v{A2+a+2*j+1}")
                so = "s44" if n else "0"
                if len(ms) == 2: k(f"buffer_store_dwordx4 v[{O}:{O+3}], v14, s[28:31], {so} offen offset:{PB[base]} {SC}")
                else:            k(f"buffer_store_dwordx2 v[{O}:{O+1}], v15, s[28:31], {so} offen {SC}")
                O += 4
        if not DET: ST()
        k("s_waitcnt vmcnt(0)")
        R.bar()
        if not DET: ST()
        tiles5 = [[0, 1], [2, 3, 4]][ci]
        n5 = len(tiles5)
        ACC = 16; ACX = 28
        BANKS = [[48, 68], [88, 108]]
        grp = groups_of(tiles5, PAIR5)
        k("s_lshl_b32 s42, s40, 4")
        k("s_add_u32 s42, s42, s77")
        k("v_add_u32 v10, s42, v3")
        k("v_lshlrev_b32 v12, 1, v10")
        k("v_lshl_add_u32 v13, v4, 14, v12")
        k("v_lshl_add_u32 v12, v4, 15, v12")
        for gi, (ms, base) in enumerate(grp):
            for e in range(4*len(ms)):
                k(f"s_add_u32 s42, s76, {base+e}")
                k("s_lshl_b32 s42, s42, 12")
                k(f"buffer_load_ushort v{ACC+4*ms[0]+e}, v{12 if len(ms)==2 else 13}, s[20:23], s42 offen")
        k("s_and_b32 s42, s40, 1")
        k("s_lshl_b32 s42, s42, 6")
        k("v_xor_b32 v14, s42, v5")
        k(f"v_add_u32 v6, {tiles5[0]*2048}, v14")
        k(f"v_add_u32 v7, {6*P5S}, v6")
        k("s_lshl_b32 s42, s40, 11")
        k(f"s_add_u32 s42, s42, {Q5B}")
        k("v_add_u32 v8, s42, v14")
        k("s_xor_b32 s42, s40, 1")
        k("s_lshl_b32 s42, s42, 11")
        k(f"s_add_u32 s42, s42, {Q5B}")
        k("v_add_u32 v9, s42, v14")
        k(f"v_mul_u32_u24 v10, {D*2}, v10")
        k("s_lshl_b32 s42, s76, 1")
        k("v_add_u32 v10, s42, v10")
        k("v_lshl_add_u32 v11, v4, 3, v10")
        k("v_lshl_add_u32 v10, v4, 4, v10")
        k("v_mov_b32 v12, 0x7ffffff0")
        k("v_cmp_gt_u32 vcc, 2, v4")
        k("v_lshlrev_b32 v13, 4, v2")
        k("s_mul_i32 s42, s15, 3072")
        k("v_cndmask_b32 v11, v12, v11, vcc")
        k("v_add_u32 v12, s42, v13")
        k("s_xor_b32 s42, s15, 1")
        k("s_mul_i32 s42, s42, 3072")
        k("v_add_u32 v13, s42, v13")
        for r in range(n5*4): k(f"v_mov_b32 v{ACX+r}, 0")
        k("s_waitcnt vmcnt(0)")
        for r in range(n5*4): k(f"v_lshlrev_b32 v{ACC+r}, 16, v{ACC+r}")
        assert Q5N <= 8
        def rd5(b, mu):
            out = []
            for q in range(2):
                st = 2*mu + q
                S = BANKS[b][q]; ps = st % P5N; qs = st % Q5N
                out.append(f"ds_read_b128 v[{S}:{S+3}], v8 offset:{qs*Q5S}")
                out.append(f"ds_read_b128 v[{S+4}:{S+7}], v9 offset:{qs*Q5S}")
                for m in range(n5):
                    out.append(f"ds_read_b128 v[{S+8+4*m}:{S+11+4*m}], v{6 if ps < 6 else 7} offset:{(ps % 6)*P5S + m*2048}")
            return out
        def mf5(b):
            out = []
            for q in range(2):
                S = BANKS[b][q]
                for m in range(n5):
                    for x, A in enumerate((ACC, ACX)):
                        out.append(f"v_mfma_f32_16x16x32_bf16 v[{A+4*m}:{A+4*m+3}], v[{S+8+4*m}:{S+11+4*m}], v[{S+4*x}:{S+4*x+3}], v[{A+4*m}:{A+4*m+3}]")
            return out
        def mst(i):
            rs = rd5((i+1) & 1, i+1) if i < 17 else []; ms_ = mf5(i & 1)
            j = 0
            for m in ms_:
                k(m)
                for _ in range(2):
                    if j < len(rs): k(rs[j]); j += 1
            assert j == len(rs)
            if i < 16:
                k("s_waitcnt lgkmcnt(0)")
                R.bar()
            elif i == 16:
                k("s_waitcnt lgkmcnt(0)")
        R.bar()
        ST()
        for r in rd5(0, 0): k(r)
        k("s_waitcnt lgkmcnt(0)")
        R.bar()
        for i in range(18): mst(i)
        ST()
        k.nop(8)
        for m in range(n5): k(f"ds_write_b128 v12, v[{ACX+4*m}:{ACX+4*m+3}] offset:{1024*m}")
        k("s_waitcnt lgkmcnt(0)")
        k("s_barrier")
        for m in range(n5): k(f"ds_read_b128 v[{ACX+4*m}:{ACX+4*m+3}], v13 offset:{1024*m}")
        k("s_waitcnt lgkmcnt(0)")
        TT = 48
        for gi, (ms, base) in enumerate(grp):
            for mi, m in enumerate(ms):
                for pr in range(2):
                    a = ACC + 4*m + 2*pr
                    k(pk('add', a, a, ACX + 4*m + 2*pr))
                    k(f"v_cvt_pk_bf16_f32 v{TT+4*gi+2*mi+pr}, v{a}, v{a+1}")
            o = TT + 4*gi
            if len(ms) == 2: k(f"buffer_store_dwordx4 v[{o}:{o+3}], v10, s[80:83], 0 offen offset:{base*2}")
            else:            k(f"buffer_store_dwordx2 v[{o}:{o+1}], v11, s[80:83], 0 offen offset:{base*2}")
        ST.dump()
        k("s_endpgm")
        nbs[R.name] = R.nb
    compute(0)
    k(f"{c1}:")
    compute(1)

    def poll_flags(setup):
        k.srd(84, 6, HO_BYTES, HO_BASE)
        setup()
        k("v_and_b32 v12, 15, v2")
        k("v_lshlrev_b32 v12, 2, v12")
        k(f"s_mov_b32 s47, {SPIN}")
        pl = k.label('poll'); pd = k.label('pd')
        k(f"{pl}:")
        k(f"buffer_load_dword v13, v12, s[84:87], s45 offen {SC}")
        k("s_waitcnt vmcnt(0)")
        k("v_and_b32 v13, 1, v13")
        k("v_cmp_ne_u32 vcc, 0, v13")
        k("s_sub_u32 s47, s47, 1")
        k("s_cmp_eq_u32 s47, 0")
        k(f"s_cbranch_scc1 {pd}")
        k("s_nop 3")
        k(f"s_cbranch_vccz {pd}")
        k("s_sleep 1")
        k(f"s_branch {pl}")
        k(f"{pd}:")

    class Ld:
        def __init__(self, R, n, base, slotb, NS, V=16, step=128, flags='', rot=False):
            self.R, self.n, self.base, self.slotb, self.NS, self.V, self.step, self.flags, self.rot = R, n, base, slotb, NS, V, step, flags, rot
        def issue(self, slot):
            for j in range(self.n):
                k(f"s_mov_b32 m0, {self.base + slot*self.slotb + j*1024}")
                k("s_nop 0")
                k(f"buffer_load_dwordx4 v{self.V+j}, s[16:19], s44 offen {self.flags} lds")
            if getattr(self, 'mod9', False):
                k("s_add_u32 s46, s46, 1")
                k("s_cmp_eq_u32 s46, 9")
                k("s_cselect_b32 s46, 0, s46")
                k(f"s_mul_i32 s44, s46, {self.step}")
                k("s_add_u32 s44, s44, s45")
            elif getattr(self, 'tiled', False):
                k("s_add_u32 s46, s46, 1")
                k("s_and_b32 s46, s46, 31")
                k(f"s_mul_i32 s44, s46, {2*9216}")
                k("s_add_u32 s44, s44, s45")
            elif self.rot:
                k("s_add_u32 s46, s46, 128")
                k("s_and_b32 s46, s46, 4095")
                k("s_add_u32 s44, s45, s46")
            else:
                k(f"s_add_u32 s44, s44, {self.step}")
        def wait(self, stages):
            k(f"s_waitcnt vmcnt({min(stages*self.n, 63 - self.n)})")
        def prologue(self, slot0):
            NS = self.NS
            infl = min(NS-1, 63//self.n)
            for s in range(infl): self.issue((slot0+s) % NS)
            for s in range(infl, NS):
                self.wait(infl-1)
                self.issue((slot0+s) % NS)
        def steady(self, slot0, count):
            NS = self.NS
            nl = count//NS
            if nl >= 2:
                k(f"s_mov_b32 s43, {nl}")
                lp = k.label('lpl'); k(f"{lp}:")
                for s in range(NS):
                    self.wait(NS-2); self.R.bar(); self.issue((slot0+s) % NS)
                self.R.nb += (nl-1)*NS
                k("s_sub_u32 s43, s43, 1")
                k("s_cmp_lg_u32 s43, 0")
                k(f"s_cbranch_scc1 {lp}")
                rest = count - nl*NS
            else:
                rest = count
            for s in range(rest):
                self.wait(NS-2); self.R.bar(); self.issue((slot0+s) % NS)
        def tail(self):
            for r in range(self.NS):
                self.wait(max(self.NS-2-r, 0)); self.R.bar()

    k(f"{lP}:")
    k("s_setprio 3")
    R = Role(k, 'P')
    ld = Ld(R, 18, cA.P_BASE, cA.P_SLOT, 4)
    k(f"s_add_u32 s45, s12, {FH}")
    k(f"s_mul_i32 s45, s45, {D*2}")
    k("s_lshr_b32 s46, s10, 1")
    k("s_lshl_b32 s44, s46, 7")
    k("s_add_u32 s44, s44, s45")
    ld.mod9 = True
    STP = Stamper()
    STP()
    loader_voffs(k, 16, 18, PLAIN, D*2)
    k("s_waitcnt lgkmcnt(0)")
    STP()
    k.srd(16, 6, F*D*2, WS_WINT)
    ld.issue(0); STP(); ld.issue(1); STP(); ld.wait(1); STP()
    R.bar()
    STP()
    ld.issue(2); ld.issue(3)
    STP()
    loader_voffs(k, 48, 18, PAIR9, D*2)
    ld.steady(0, 5)
    k(f"s_mul_i32 s45, s12, {D*2}")
    k("s_lshl_b32 s44, s46, 7")
    k("s_add_u32 s44, s44, s45")
    ld.V = 48
    ld.steady(1, 4)
    R.bar()
    ld.steady(1, 5)
    loader_voffs(k, 16, 18, PAIR9, 64, chunkmap=9216)
    ld.V = 16
    ld.tail()
    k.srd(16, 6, FH*L*2, WS_Z2T)
    k(f"s_mul_i32 s45, s10, {64*9216}")
    k("s_lshl_b32 s46, s11, 1")
    k(f"s_mul_i32 s44, s46, {2*9216}")
    k("s_add_u32 s44, s44, s45")
    ld.tiled = True; ld.mod9 = False
    ld.flags = LSC; ld.rot = True
    ld.issue(2); ld.issue(3)
    ld.wait(1)
    R.bar()
    ld.issue(0); ld.issue(1)
    ld.steady(2, 28)
    loader_voffs(k, 48, 9, PAIR5, FH*2)
    ld.tail()
    k.srd(16, 6, D*FH*2, WS_WOUTT)
    k(f"s_mul_i32 s44, s76, {FH*2}")
    pis = 0
    def ip(n):
        nonlocal pis
        for _ in range(n):
            if pis >= 36: return
            if pis >= 6: k("s_waitcnt vmcnt(54)")
            for j in range(9):
                k(f"s_mov_b32 m0, {(pis % P5N)*P5S + j*1024}")
                k("s_nop 0")
                k(f"buffer_load_dwordx4 v{48+j}, s[16:19], s44 offen lds")
            if not FAKEP: k("s_add_u32 s44, s44, 128")
            pis += 1
    def wp(last_needed):
        k(f"s_waitcnt vmcnt({min(max(pis-1-last_needed, 0)*9, 63)})")
    ip(4)
    R.bar()
    ip(P5N-4)
    wp(1)
    R.bar()
    for i in range(17):
        wp(2*i+3)
        R.bar()
        rem = 36 - P5N
        target = P5N + min(rem, -(-rem*(i+1)//PSPREAD))
        target = min(target, P5N + 2*(i+1))
        ip(target - pis)
    assert pis == 36
    STP.dump()
    k("s_endpgm")
    nbs['P'] = R.nb

    k(f"{lQ}:")
    k("s_setprio 3")
    R = Role(k, 'Q')
    ld = Ld(R, 16, cA.Q_BASE, cA.Q_SLOT, 4, step=64*4096)
    k("s_lshl_b32 s45, s13, 1")
    k("s_lshr_b32 s46, s10, 1")
    k("s_lshl_b32 s44, s46, 18")
    k("s_add_u32 s44, s44, s45")
    ld.mod9 = True
    k("v_lshrrev_b32 v3, 4, v2")
    k("v_and_b32 v4, 15, v2")
    k("v_lshlrev_b32 v5, 1, v3")
    k("v_xor_b32 v4, v4, v5")
    k("v_lshlrev_b32 v4, 4, v4")
    k("v_lshl_add_u32 v4, v3, 12, v4")
    k("v_xor_b32 v5, 128, v4")
    for j in range(16):
        k(f"v_add_u32 v{16+j}, {4*j*4096}, v{5 if (j>>1)&1 else 4}")
    k("s_waitcnt lgkmcnt(0)")
    k.srd(16, 6, D*L*2, WS_HTM)
    ld.issue(0); ld.issue(1); ld.wait(1)
    R.bar()
    ld.issue(2); ld.issue(3)
    loader_voffs(k, 48, 16, PLAIN, 4096)
    ld.steady(0, 5)
    ld.steady(1, 4)
    k("v_lshrrev_b32 v3, 3, v2")
    k("v_and_b32 v4, 7, v2")
    k("v_lshrrev_b32 v5, 4, v2")
    k("v_xor_b32 v4, v4, v5")
    for par in range(2):
        k(f"v_xor_b32 v6, {4*par}, v4")
        k(f"v_add_u32 v7, {8*par}, v3")
        k("v_lshrrev_b32 v8, 2, v6")
        k("v_lshlrev_b32 v8, 10, v8")
        k("v_lshl_add_u32 v8, v7, 6, v8")
        k("v_and_b32 v9, 3, v6")
        k(f"v_lshl_add_u32 v{80+par}, v9, 4, v8")
        k("v_lshrrev_b32 v8, 1, v6")
        k("v_mul_u32_u24 v8, 4608, v8")
        k("v_lshl_add_u32 v8, v7, 5, v8")
        k("v_and_b32 v9, 1, v6")
        k("v_lshl_add_u32 v8, v9, 4, v8")
        k(f"v_add_u32 v{82+par}, 4096, v8")
    R.bar()
    ld.steady(1, 5)
    k.srd(16, 72, L*L*2)
    k("s_lshl_b32 s45, s13, 12")
    k("s_lshl_b32 s46, s11, 8")
    k("s_add_u32 s44, s45, s46")
    ld.V = 48; ld.rot = True; ld.mod9 = False
    ld.steady(2, 3)
    R.bar(); ld.wait(2); ld.issue(1)
    R.bar()
    ld.steady(2, 28)
    ld.tail()
    k("s_lshr_b32 s60, s77, 4")
    k(f"s_mul_i32 s60, s60, {16*4608}")
    for j in range(1, 4): k(f"s_add_u32 s{60+j}, s60, {j*16*4608}")
    for j in range(4):
        k(f"s_add_u32 s{56+j}, s10, {j}" if ROT3 else f"s_mov_b32 s{56+j}, {j}")
        k(f"s_and_b32 s{56+j}, s{56+j}, 3")
        k(f"s_mul_i32 s{56+j}, s{56+j}, {4*4608}")
    R.bar()
    poll_flags(lambda: (k("s_and_b32 s45, s77, 0xffffff80"), k(f"s_add_u32 s45, s45, {HO_ZGF}")))
    k.srd(16, 6, L*FH*2, WS_ZG)
    def iq(mu):
        for hf in range(2):
            st = 2*mu + hf
            ph = st % 9
            cst = ((2*ph) >> 2)*4608 + ((2*ph) & 3)*1024 if ph < 8 else 0
            k(f"s_add_u32 s43, s{56 + st//9}, {cst}" if not FAKEQ else f"s_mov_b32 s43, {(st%2)*2048}")
            for j in range(8):
                if j % 2 == 0: k(f"s_add_u32 s44, s{60 + (j>>1)}, s43")
                k(f"s_mov_b32 m0, {Q5B + (st % Q5N)*Q5S + j*1024}")
                k("s_nop 0")
                k(f"buffer_load_dwordx4 v{(80 if ph < 8 else 82) + (j&1)}, s[16:19], s44 offen {LSC} lds")
    NQ = Q5N//2
    iq(0); iq(1)
    k("s_waitcnt vmcnt(16)")
    R.bar()
    issued = 2
    def top_up(limit):
        nonlocal issued
        while issued < min(limit, 18):
            k("s_waitcnt vmcnt(47)")
            iq(issued); issued += 1
    top_up(min(NQ, 4))
    for i in range(17):
        k(f"s_waitcnt vmcnt({min((issued-1-(i+1))*16, 63)})")
        R.bar()
        top_up(min(i+1+NQ, issued+2))
    k("s_endpgm")
    nbs['Q'] = R.nb

    k(f"{lX}:")
    k("s_setprio 3")
    R = Role(k, 'X')
    k("v_and_b32 v3, 15, v2")
    k("v_lshrrev_b32 v4, 4, v2")
    k("v_add_u32 v5, s12, v2")
    k("v_lshlrev_b32 v5, 2, v5")
    k("v_lshrrev_b32 v6, 3, v2")
    k("v_and_b32 v7, 7, v2")
    k("s_and_b32 s43, s10, 1")
    k("s_lshl_b32 s43, s43, 3")
    k("v_add_u32 v7, s43, v7")
    k("v_and_b32 v8, 3, v6")
    k("v_lshlrev_b32 v8, 1, v8")
    k("v_xor_b32 v7, v7, v8")
    k("v_lshlrev_b32 v7, 4, v7")
    k("v_lshl_add_u32 v10, v6, 8, v7")
    k(f"v_add_u32 v10, {cA.Q_BASE}, v10")
    k("v_xor_b32 v11, 128, v10")
    k("s_waitcnt lgkmcnt(0)")
    k.srd(36, 6, 3*F*4, WS_CWP)
    k.srd(84, 6, HO_BYTES, HO_BASE)
    make_masks()
    HX = 40; HY = 104
    R.bar()
    for q in range(8):
        k(f"ds_read_b128 v[{HX+4*q}:{HX+4*q+3}], v{10+(q&1)} offset:{2048*q}")
    for a in range(2):
        for p in range(3):
            k(f"s_mov_b32 s42, {(p*F + a*FH)*4}")
            for q in range(3):
                k(f"buffer_load_dword v{16+(a*3+p)*3+q}, v5, s[36:39], s42 offen offset:{256*q}")
    k("v_lshlrev_b32 v6, 2, v2")
    k(f"v_add_u32 v6, {SC_CW1}, v6")
    k("s_waitcnt lgkmcnt(0)")
    R.bar()
    for q in range(8):
        k(f"ds_read_b128 v[{HY+4*q}:{HY+4*q+3}], v{10+(q&1)} offset:{cA.Q_SLOT + 2048*q}")
    VS = 80
    def acc_q(H, q):
        for j in range(4):
            r = H + 4*q + j
            k(f"v_lshlrev_b32 v8, 16, v{r}")
            k(f"v_and_b32 v9, 0xffff0000, v{r}")
            if q == 0:
                k(f"v_mov_b32 v{VS+4*j}, v8"); k(f"v_mov_b32 v{VS+4*j+2}, v9")
                k(f"v_mul_f32 v{VS+4*j+1}, v8, v8"); k(f"v_mul_f32 v{VS+4*j+3}, v9, v9")
            else:
                k(f"v_add_f32 v{VS+4*j}, v{VS+4*j}, v8"); k(f"v_add_f32 v{VS+4*j+2}, v{VS+4*j+2}, v9")
                k(f"v_fmac_f32 v{VS+4*j+1}, v8, v8"); k(f"v_fmac_f32 v{VS+4*j+3}, v9, v9")
    def red_pub(plane_setup):
        k.nop(2)
        for j in range(8): k(f"v_permlane32_swap_b32 v{VS+j}, v{VS+8+j}")
        for j in range(8): k(f"v_add_f32 v{VS+j}, v{VS+j}, v{VS+8+j}")
        k.nop(2)
        for j in range(4): k(f"v_permlane16_swap_b32 v{VS+j}, v{VS+4+j}")
        for j in range(4): k(f"v_add_f32 v{VS+j}, v{VS+j}, v{VS+4+j}")
        sr = masks[3]
        for j in range(2):
            k(f"v_cndmask_b32 v{96+j}, v{VS+j+2}, v{VS+j}, s[{sr}:{sr+1}]")
            k(f"v_cndmask_b32 v{VS+j}, v{VS+j}, v{VS+j+2}, s[{sr}:{sr+1}]")
        k.nop(2)
        for j in range(2):
            k(f"v_add_f32_dpp v{VS+j}, v{96+j}, v{VS+j} row_ror:8 row_mask:0xf bank_mask:0xf")
        k(f"v_and_b32 v{VS}, 0xfffffffe, v{VS}")
        k(f"v_and_b32 v{VS+1}, 0xfffffffe, v{VS+1}")
        plane_setup()
        k("s_lshl_b32 s42, s42, 14")
        k("s_and_b32 s43, s10, 1")
        k("s_lshl_b32 s43, s43, 6")
        k("s_add_u32 s43, s43, s13")
        k("s_lshl_b32 s43, s43, 3")
        k("s_add_u32 s42, s42, s43")
        k(f"s_add_u32 s42, s42, {HO_LN2}")
        k(f"buffer_store_dwordx2 v[{VS}:{VS+1}], v14, s[84:87], s42 offen {SC}")
    k("v_and_b32 v14, 7, v2")
    k("v_lshrrev_b32 v15, 3, v2")
    k("v_lshl_add_u32 v14, v14, 3, v15")
    k("v_lshlrev_b32 v14, 3, v14")
    for q in range(0, 4): acc_q(HX, q)
    k("s_waitcnt lgkmcnt(0)")
    R.bar()
    for q in range(4, 8): acc_q(HX, q)
    R.bar()
    red_pub(lambda: k("s_lshr_b32 s42, s10, 1"))
    sk1 = k.label('sk'); sk2 = k.label('sk'); sk3 = k.label('sk')
    k("s_cmp_lt_u32 s10, 14")
    k(f"s_cbranch_scc1 {sk1}")
    for q in range(0, 3): acc_q(HY, q)
    k(f"{sk1}:")
    R.bar()
    k("s_cmp_lt_u32 s10, 14")
    k(f"s_cbranch_scc1 {sk2}")
    for q in range(3, 8): acc_q(HY, q)
    red_pub(lambda: k("s_mov_b32 s42, 8"))
    k(f"{sk2}:")
    def ln_finish(S, Q, n, mrs):
        k(f"v_mul_f32 v{S}, {fhex(1.0/n)}, v{S}")
        k(f"v_mul_f32 v{Q}, {fhex(1.0/n)}, v{Q}")
        k(f"v_fma_f32 v{Q}, -v{S}, v{S}, v{Q}")
        k(f"v_max_f32 v{Q}, 0, v{Q}")
        rbf(k, S, S); rbf(k, Q, Q)
        k(f"v_add_f32 v{Q}, {fhex(1e-5)}, v{Q}")
        rbf(k, Q, Q)
        k(f"v_sqrt_f32 v{Q}, v{Q}")
        k.nop(1)
        rbf(k, Q, Q)
        k(f"v_rcp_f32 v{Q}, v{Q}")
        k.nop(1)
        if mrs: k(f"v_mul_f32 v{S}, v{S}, v{Q}")
    R.bar()
    k("s_waitcnt vmcnt(0)")
    for a in range(2):
        for q in range(3):
            r = 16 + a*9 + q
            k(f"v_add_f32 v{r}, v{r}, v{r+3}")
            k(f"v_add_f32 v{r}, v{r}, v{r+6}")
            k(f"v_cvt_pk_bf16_f32 v7, v{r}, v{r}")
            k("v_lshlrev_b32 v7, 16, v7")
            k(f"v_sub_f32 v7, v{r}, v7")
            k(f"v_cvt_pk_bf16_f32 v{r}, v{r}, v7")
            k(f"ds_write_b32 v6, v{r} offset:{a*768 + 256*q}")
    def poll_data(nbar, issue, regs):
        k(f"s_mov_b32 s47, {SPIN}")
        pl = k.label('poll'); pd = k.label('pd'); pc = k.label('pc')
        issue()
        R.bar(nbar)
        k(f"s_branch {pc}")
        k(f"{pl}:")
        issue()
        k(f"{pc}:")
        k("s_waitcnt vmcnt(0)")
        k(f"v_or_b32 v13, v{regs[0]}, v{regs[1]}")
        rest = regs[2:]
        while rest:
            if len(rest) >= 2:
                k(f"v_or3_b32 v13, v13, v{rest[0]}, v{rest[1]}"); rest = rest[2:]
            else:
                k(f"v_or_b32 v13, v13, v{rest[0]}"); rest = rest[1:]
        k("v_and_b32 v13, 1, v13")
        k("v_cmp_ne_u32 vcc, 0, v13")
        k("s_sub_u32 s47, s47, 1")
        k("s_cmp_eq_u32 s47, 0")
        k(f"s_cbranch_scc1 {pd}")
        k("s_nop 3")
        k(f"s_cbranch_vccz {pd}")
        k("s_sleep 1")
        k(f"s_branch {pl}")
        k(f"{pd}:")
    R.bar(1)
    k("v_lshlrev_b32 v5, 4, v2")
    k("s_lshl_b32 s42, s13, 3")
    k(f"s_add_u32 s42, s42, {HO_LN2}")
    def iss2():
        for p in range(9):
            k(f"s_add_u32 s43, s42, {p << 14}")
            k(f"buffer_load_dwordx4 v[{40+4*p}:{43+4*p}], v5, s[84:87], s43 offen {SC}")
    poll_data(2, iss2, list(range(40, 76)))
    for p in range(1, 9):
        for j in range(4): k(f"v_add_f32 v{40+j}, v{40+j}, v{40+4*p+j}")
    ln_finish(40, 41, D, False)
    ln_finish(42, 43, D, False)
    k("v_cvt_pk_bf16_f32 v20, -v40, -v40")
    k("v_cvt_pk_bf16_f32 v21, -v42, -v42")
    k("v_mov_b32 v22, v41")
    k("v_mov_b32 v23, v43")
    k("v_lshlrev_b32 v6, 3, v2")
    k(f"v_add_u32 v6, {SC_RS2}, v6")
    k("ds_write_b64 v6, v[22:23]")
    k("ds_write_b64 v6, v[20:21] offset:512")
    k("s_waitcnt lgkmcnt(0)")
    R.bar()
    if PF:
        k.srd(36, 72, L*L*2)
        k("s_lshl_b32 s42, s2, 15")
        for j in range(32):
            r = 96 + 4*(j % 16)
            k(f"buffer_load_dwordx4 v[{r}:{r+3}], v5, s[36:39], s42 offen")
            k("s_add_u32 s42, s42, 1024")
    k(f"v_add_u32 v7, {SC_P3}, v5")
    k("s_lshl_b32 s42, s13, 3")
    k("s_lshl_b32 s43, s10, 14")
    k("s_add_u32 s43, s43, s42")
    R.bar()
    k("ds_read_b128 v[16:19], v7")
    k("ds_read_b128 v[20:23], v7 offset:1024")
    k("s_waitcnt lgkmcnt(0)")
    for j in range(4):
        k(f"v_add_f32 v{16+j}, v{16+j}, v{20+j}")
        k(f"v_and_b32 v{16+j}, 0xfffffffe, v{16+j}")
    k(f"buffer_store_dwordx4 v[16:19], v5, s[84:87], s43 offen {SC}")
    R.bar(NA-2)
    def iss():
        for p in range(16):
            k(f"s_add_u32 s43, s42, {p << 14}")
            k(f"buffer_load_dwordx4 v[{32+4*p}:{35+4*p}], v5, s[84:87], s43 offen {SC}")
    poll_data(1, iss, list(range(32, 96)))
    for p in range(1, 16):
        for j in range(4): k(f"v_add_f32 v{32+j}, v{32+j}, v{32+4*p+j}")
    ln_finish(32, 33, FH, True)
    ln_finish(34, 35, FH, True)
    k("v_mov_b32 v16, v33"); k("v_mov_b32 v17, v35"); k("v_mov_b32 v18, v32"); k("v_mov_b32 v19, v34")
    k("v_lshlrev_b32 v6, 3, v2")
    k(f"v_add_u32 v6, {SC_RS3}, v6")
    k("ds_write_b64 v6, v[16:17]")
    k("ds_write_b64 v6, v[18:19] offset:512")
    k("s_waitcnt lgkmcnt(0)")
    k("v_mov_b32 v16, 0")
    k("v_mov_b32 v5, 0")
    k("s_lshl_b32 s42, s10, 7")
    k("s_lshl_b32 s43, s11, 2")
    k("s_add_u32 s42, s42, s43")
    k(f"s_add_u32 s42, s42, {HO_Z2F}")
    R.bar(GF + 1 - (8+NA))
    k("s_mov_b64 exec, 1")
    k(f"buffer_store_dword v16, v5, s[84:87], s42 offen {SC}")
    k("s_mov_b64 exec, -1")
    R.bar(17 - GF)
    poll_flags(lambda: (k("s_lshl_b32 s45, s10, 7"), k(f"s_add_u32 s45, s45, {HO_Z2F}")))
    R.bar()
    k("s_mov_b32 s43, 7")
    lp = k.label('lp'); k(f"{lp}:")
    R.bar(4); R.nb += 24
    k("s_sub_u32 s43, s43, 1")
    k("s_cmp_lg_u32 s43, 0")
    k(f"s_cbranch_scc1 {lp}")
    if WARM2:
        k.srd(36, 6, D*FH*2, WS_WOUTT)
        k("v_lshlrev_b32 v6, 7, v2")
        k("s_lshr_b32 s42, s2, 3")
        k("s_mul_i32 s42, s42, 82944")
    for b in range(4):
        if WARM2:
            for j in range(3 if b < 3 else 2):
                k(f"buffer_load_dword v{20+3*b+j}, v6, s[36:39], s42 offen")
                k("s_add_u32 s42, s42, 8192")
        R.bar()
    k("s_lshl_b32 s42, s11, 7")
    k("s_lshl_b32 s43, s10, 2")
    k("s_add_u32 s42, s42, s43")
    k(f"s_add_u32 s42, s42, {HO_ZGF}")
    k("s_mov_b64 exec, 1")
    R.bar()
    k(f"buffer_store_dword v16, v5, s[84:87], s42 offen {SC}")
    if WARMP:
        k("s_mov_b64 exec, -1")
        k.srd(36, 6, D*FH*2, WS_WOUTT)
        k("v_lshrrev_b32 v6, 3, v2")
        k("v_and_b32 v7, 7, v2")
        k("v_min_u32 v7, 5, v7")
        k(f"v_mul_u32_u24 v6, {FH*2}, v6")
        k("v_lshl_add_u32 v6, v7, 7, v6")
        k("s_and_b32 s42, s11, 7")
        k("s_mul_i32 s42, s42, 576")
        k("s_and_b32 s42, s42, 0xffffff80")
        k(f"s_mul_i32 s43, s76, {FH*2}")
        k("s_add_u32 s42, s42, s43")
        for j in range(9):
            k(f"buffer_load_dword v{20+j}, v6, s[36:39], s42 offen")
            k(f"s_add_u32 s42, s42, {8*FH*2}")
    k("s_endpgm")
    nbs['X'] = R.nb
    assert nbs['c0'] == nbs['c1'] == nbs['P'] == nbs['Q'] == nbs['X'] + 18, nbs
    k(f"{done}:")
    k("s_endpgm")
    return k, LDS
```

```python
import sys, math
sys.path.insert(0, 'work')
from gcore import *
import gen_v0 as v0
from gen_a import cexp, cmul, INV2PI, CP, UB, UP, YP
from gen_ka import strip_transpose
rbf = v0.rbf
WS_UX = 64*MB
UXP = 8448
WS_HT2 = 72*MB
WS_KR = 80*MB
KR_PITCH = 4224
KPERM = False

def emit_R(k, idreg):
    RP = 1184
    k(f"s_and_b32 s13, s{idreg}, 7")
    k("s_lshl_b32 s13, s13, 4")
    k(f"s_lshr_b32 s3, s{idreg}, 3")
    k("s_add_u32 s13, s13, s3")
    k("s_lshl_b32 s3, s13, 4")
    k("v_lshrrev_b32 v1, 4, v0")
    k("v_add_u32 v5, s3, v1")
    k("v_and_b32 v2, 15, v0")
    k(f"v_mul_u32_u24 v3, {D*2}, v5")
    k("v_lshl_add_u32 v3, v2, 3, v3")
    k("s_waitcnt lgkmcnt(0)")
    k.lines.append("    ;@ST")
    k.srd(32, 16, L*D*2)
    for q in range(9):
        k(f"buffer_load_dwordx2 v[{8+2*q}:{9+2*q}], v3, s[32:35], 0 offen offset:{128*q}")
    k.srd(36, 6, D*UXP, WS_UX)
    k(f"v_mul_u32_u24 v66, {RP}, v1")
    k("v_lshl_add_u32 v66, v2, 3, v66")
    X = 30
    k("v_mov_b32 v4, 0")
    k("v_mov_b32 v7, 0")
    for q in range(9):
        k(f"s_waitcnt vmcnt({8-q})")
        k(f"ds_write_b64 v66, v[{8+2*q}:{9+2*q}] offset:{16*RP + 128*q}")
        for j in range(2):
            r = 8 + 2*q + j
            k(f"v_lshlrev_b32 v{X+4*q+2*j}, 16, v{r}")
            k(f"v_and_b32 v{X+4*q+2*j+1}, 0xffff0000, v{r}")
            k(f"v_add_f32 v4, v4, v{X+4*q+2*j}")
            k(f"v_add_f32 v7, v7, v{X+4*q+2*j+1}")
    k("v_add_f32 v4, v4, v7")
    k.lines.append("    ;@ST")
    def red16(v):
        for ctl in ["quad_perm:[1,0,3,2]", "quad_perm:[2,3,0,1]", "row_half_mirror", "row_mirror"]:
            k.nop(2)
            k(f"v_add_f32_dpp v{v}, v{v}, v{v} {ctl} row_mask:0xf bank_mask:0xf")
    red16(4)
    k(f"v_mul_f32 v4, {fhex(1.0/D)}, v4")
    k("v_mov_b32 v6, 0")
    k("v_mov_b32 v7, 0")
    for i in range(36):
        k(f"v_sub_f32 v{68+(i&3)}, v{X+i}, v4")
        k(f"v_fmac_f32 v{6 + (i&1)}, v{68+(i&3)}, v{68+(i&3)}")
    k("v_add_f32 v6, v6, v7")
    red16(6)
    k(f"v_mul_f32 v6, {fhex(1.0/D)}, v6")
    rbf(k, 4, 4); rbf(k, 6, 6)
    k(f"v_add_f32 v6, {fhex(1e-5)}, v6")
    rbf(k, 6, 6)
    k("v_sqrt_f32 v6, v6")
    k.nop(1)
    rbf(k, 6, 6)
    k("v_rcp_f32 v5, v6")
    k.lines.append("    ;@ST")
    for i in range(36): k(f"v_sub_f32 v{X+i}, v{X+i}, v4")
    for j in range(18): k(f"v_cvt_pk_bf16_f32 v{8+j}, v{X+2*j}, v{X+2*j+1}")
    for j in range(18):
        k(f"v_lshlrev_b32 v{X+2*j}, 16, v{8+j}")
        k(f"v_and_b32 v{X+2*j+1}, 0xffff0000, v{8+j}")
    for i in range(36): k(f"v_mul_f32 v{X+i}, v{X+i}, v5")
    for j in range(18): k(f"v_cvt_pk_bf16_f32 v{8+j}, v{X+2*j}, v{X+2*j+1}")
    for q in range(9):
        k(f"ds_write_b64 v66, v[{8+2*q}:{9+2*q}] offset:{128*q}")
    k("v_and_b32 v2, 63, v0")
    k("v_lshrrev_b32 v1, 6, v0")
    k("v_and_b32 v3, 15, v2")
    k("v_lshrrev_b32 v4, 4, v2")
    k("v_lshrrev_b32 v5, 2, v3")
    k("v_lshl_add_u32 v5, v4, 3, v5")
    k(f"v_mul_u32_u24 v5, {RP}, v5")
    k("v_and_b32 v6, 3, v3")
    k("v_lshl_add_u32 v5, v6, 3, v5")
    k(f"v_mul_u32_u24 v6, {9*32}, v1")
    k("v_add_u32 v5, v5, v6")
    k(f"v_mul_u32_u24 v6, {9*16}, v1")
    k("v_add_u32 v6, v6, v3")
    k(f"v_mul_u32_u24 v6, {UXP}, v6")
    k("v_lshl_add_u32 v6, v4, 4, v6")
    k("s_lshl_b32 s3, s13, 6")
    k("s_waitcnt lgkmcnt(0)")
    k.lines.append("    ;@ST")
    k("s_barrier")
    k.lines.append("    ;@ST")
    for g in range(9):
        for x in range(2):
            k(f"ds_read_b64_tr_b16 v[{8+4*g+2*x}:{9+4*g+2*x}], v5 offset:{32*g + 4*x*RP}")
    for g in range(9):
        k(f"s_waitcnt lgkmcnt({min(16-2*g, 15)})")
        k(f"buffer_store_dwordx4 v[{8+4*g}:{11+4*g}], v6, s[36:39], s3 offen")
        k(f"s_add_u32 s3, s3, {16*UXP}")
    k("s_endpgm")
    k.lines.append("    ;@ST0")

def emit_kgen(k, done):
    lX = k.label('xw'); lJ = k.label('join')
    XP = 528
    XA, YB = 0, 21*XP
    TB = YB + 32*XP
    k("v_and_b32 v1, 127, v0")
    k("v_lshlrev_b32 v2, 1, v1")
    k("s_lshl_b32 s3, s14, 8")
    k("v_add_u32 v2, s3, v2")
    k("s_lshl_b32 s3, s14, 1")
    k("v_mov_b32 v3, s3")
    k("v_lshrrev_b32 v4, 6, v0")
    k("s_waitcnt lgkmcnt(0)")
    k.lines.append("    ;@ST")
    k("v_readfirstlane_b32 s15, v4")
    k.srd(56, 30, D*2)
    k("buffer_load_ushort v16, v3, s[56:59], 0 offen")
    for i in range(6):
        k.srd(32+4*i, 18+2*i, D*N*2)
        k(f"buffer_load_ushort v{10+i}, v2, s[{32+4*i}:{35+4*i}], 0 offen")
    G = 56
    k("v_lshlrev_b32 v5, 3, v0")
    for e in range(8):
        k(f"v_sub_u32 v6, {2047-e}, v5")
        k("v_cvt_f32_u32 v6, v6")
        k("v_cvt_pk_bf16_f32 v6, v6, v6")
        k("v_lshlrev_b32 v6, 16, v6")
        k("v_cvt_u32_f32 v6, v6")
        k("v_lshrrev_b32 v7, 8, v6")
        k("v_and_b32 v8, 7, v6")
        k("v_lshl_add_u32 v7, v7, 3, v8")
        k("v_bfe_u32 v8, v6, 3, 5")
        k("v_lshlrev_b32 v8, 1, v8")
        k(f"v_lshl_add_u32 v{G+e}, v7, 6, v8")
    k("v_and_b32 v64, 15, v0")
    k("v_bfe_u32 v65, v0, 4, 2")
    k(f"v_mul_u32_u24 v4, {XP}, v64")
    k("v_lshl_add_u32 v4, v65, 4, v4")
    k("s_lshr_b32 s3, s15, 1")
    k(f"s_mul_i32 s3, s3, {16*XP}")
    k("v_add_u32 v66, s3, v4")
    k("s_and_b32 s10, s15, 1")
    k(f"s_mul_i32 s11, s10, {16*XP}")
    k(f"s_add_u32 s11, s11, {YB}")
    k("v_add_u32 v67, s11, v4")
    k("s_lshr_b32 s3, s15, 1")
    k("s_lshl_b32 s3, s3, 4")
    k("v_add_u32 v7, s3, v64")
    k("v_mov_b32 v68, v7")
    for sh, sub in ((1, 8), (2, 32), (3, 96)):
        k(f"v_lshlrev_b32 v8, {sh}, v7")
        k(f"v_subrev_u32 v8, {sub}, v8")
        k("v_max_i32 v68, v68, v8")
    k("v_min_i32 v68, 71, v68")
    k("v_lshlrev_b32 v68, 6, v68")
    k("v_lshl_add_u32 v68, v65, 3, v68")
    k("s_lshl_b32 s10, s10, 5")
    k("v_add_u32 v68, s10, v68")
    k("v_lshlrev_b32 v9, 2, v1")
    Lhi = struct.unpack('<f', struct.pack('<f', LOG2E))[0]
    Llo = LOG2E - Lhi
    k(f"s_mov_b32 s8, {fhex(Lhi)}")
    k(f"s_mov_b32 s9, {fhex(Llo)}")
    k("s_waitcnt vmcnt(4)")
    k.lines.append("    ;@ST")
    for r in (16, 10, 11): k(f"v_lshlrev_b32 v{r}, 16, v{r}")
    k("v_mul_f32 v17, s8, v16")
    k("v_fma_f32 v18, v16, s8, -v17")
    k("v_fma_f32 v18, v16, s9, v18")
    k("v_exp_f32 v17, v17")
    k(f"v_mul_f32 v18, {fhex(math.log(2.0))}, v18")
    k("v_fma_f32 v17, v17, v18, v17")
    rbf(k, 17, 17)
    k("v_mul_f32 v20, v17, v10")
    k("v_mul_f32 v21, v17, v11")
    k(f"v_mul_f32 v20, {fhex(LOG2E)}, v20")
    k(f"v_mul_f32 v21, {fhex(INV2PI)}, v21")
    k("s_cmp_ge_u32 s15, 2")
    k(f"s_cbranch_scc1 {lX}")
    cexp(k, 22, 23, 20, 21, 8, 24)
    k("v_mov_b32 v30, 0x00003f80")
    k(f"ds_write_b32 v9, v30 offset:{YB}")
    k("v_cvt_pk_bf16_f32 v31, v22, v23")
    k(f"ds_write_b32 v9, v31 offset:{YB+XP}")
    cmul(k, 24, 25, 22, 23, 22, 23)
    k("v_cvt_pk_bf16_f32 v30, v24, v25")
    k(f"ds_write_b32 v9, v30 offset:{YB+2*XP}")
    cur = {1: (22, 23), 0: (24, 25)}
    free = [(26, 27), (28, 29), (32, 33), (34, 35)]
    fi = 0
    for b in range(3, 32):
        a = cur[b & 1]; d_ = free[fi % 4]; fi += 1
        cmul(k, d_[0], d_[1], a[0], a[1], 24, 25)
        k(f"v_cvt_pk_bf16_f32 v{30 + (b&1)}, v{d_[0]}, v{d_[1]}")
        k(f"ds_write_b32 v9, v{30 + (b&1)} offset:{YB+b*XP}")
        cur[b & 1] = d_
    k(f"s_branch {lJ}")
    k(f"{lX}:")
    cexp(k, 22, 23, 20, 21, 1, 40)
    cexp(k, 42, 43, 20, 21, 256, 40)
    cexp(k, 44, 45, 20, 21, 512, 40)
    cexp(k, 46, 47, 20, 21, 1024, 40)
    k("s_waitcnt vmcnt(0)")
    for r in (12, 13, 14, 15): k(f"v_lshlrev_b32 v{r}, 16, v{r}")
    k("v_mul_f32 v12, v17, v12")
    k("v_mul_f32 v13, v17, v13")
    X0 = 24
    cmul(k, X0, X0+1, 14, 15, 12, 13)
    def putX(row, r, i_):
        k(f"v_cvt_pk_bf16_f32 v{40 + (row&1)}, v{r}, -v{i_}")
        k(f"ds_write_b32 v9, v{40 + (row&1)} offset:{XA+row*XP}")
    putX(0, X0, X0+1)
    for h in range(1, 8):
        cmul(k, X0+2*h, X0+2*h+1, X0+2*h-2, X0+2*h-1, 22, 23)
        putX(h, X0+2*h, X0+2*h+1)
    for i, h in enumerate((0, 2, 4, 6)):
        cmul(k, 48, 49, X0+2*h, X0+2*h+1, 42, 43); putX(8+i, 48, 49)
    for i, h in enumerate((0, 4)):
        cmul(k, 48, 49, X0+2*h, X0+2*h+1, 44, 45); putX(12+i, 48, 49)
        cmul(k, 50, 51, 48, 49, 42, 43); putX(14+i, 50, 51)
    cmul(k, 48, 49, X0, X0+1, 46, 47); putX(16, 48, 49)
    cmul(k, 50, 51, 48, 49, 42, 43); putX(17, 50, 51)
    cmul(k, 50, 51, 48, 49, 44, 45); putX(18, 50, 51)
    cmul(k, 52, 53, 50, 51, 42, 43); putX(19, 52, 53)
    cmul(k, 52, 53, 48, 49, 46, 47); putX(20, 52, 53)
    k(f"{lJ}:")
    k("s_waitcnt vmcnt(0) lgkmcnt(0)")
    k.lines.append("    ;@ST")
    k("s_barrier")
    k.lines.append("    ;@ST")
    for ks in range(4):
        k(f"ds_read_b128 v[{8+8*ks}:{11+8*ks}], v67 offset:{64*ks}")
        k(f"ds_read_b128 v[{12+8*ks}:{15+8*ks}], v66 offset:{64*ks}")
    for ks in range(8):
        r = 8 + 8*(ks % 4)
        k(f"s_waitcnt lgkmcnt({6 if ks < 5 else (7-ks)*2})")
        c = "0" if ks == 0 else "v[40:43]"
        k(f"v_mfma_f32_16x16x32_bf16 v[40:43], v[{r}:{r+3}], v[{r+4}:{r+7}], {c}")
        if ks < 4:
            k(f"ds_read_b128 v[{r}:{r+3}], v67 offset:{64*(ks+4)}")
            k(f"ds_read_b128 v[{r+4}:{r+7}], v66 offset:{64*(ks+4)}")
    k.srd(32, 6, D*KR_PITCH, WS_KR)
    k(f"s_mul_i32 s3, s14, {KR_PITCH}")
    k("v_lshlrev_b32 v5, 4, v0")
    for r in range(20, 24): k(f"v_mov_b32 v{r}, 0")
    k("v_cvt_pk_bf16_f32 v46, v40, v41")
    k("v_cvt_pk_bf16_f32 v47, v42, v43")
    k(f"ds_write_b64 v68, v[46:47] offset:{TB}")
    k("s_waitcnt lgkmcnt(0)")
    k("s_barrier")
    k.lines.append("    ;@ST")
    for e in range(8): k(f"ds_read_u16 v{8+e}, v{G+e} offset:{TB}")
    k("s_waitcnt lgkmcnt(0)")
    for j in range(4): k(f"v_lshl_or_b32 v{16+j}, v{9+2*j}, 16, v{8+2*j}")
    k("buffer_store_dwordx4 v[16:19], v5, s[32:35], s3 offen")
    k("v_cmp_gt_u32 vcc, 8, v0")
    k("s_and_saveexec_b64 s[4:5], vcc")
    k(f"s_cbranch_execz {done}")
    k("s_add_u32 s3, s3, 4096")
    k("buffer_store_dwordx4 v[20:23], v5, s[32:35], s3 offen")
    k("s_endpgm")
    k.lines.append("    ;@ST0")
    return TB + 72*64

def emit_w1(k, clear, cw_off):
    k("s_waitcnt lgkmcnt(0)")
    k.srd(32, 6, clear[1], clear[0])
    for r in range(20, 24): k(f"v_mov_b32 v{r}, -1")
    k("s_lshl_b32 s13, s3, 12")
    k("v_lshlrev_b32 v24, 4, v0")
    k("buffer_store_dwordx4 v[20:23], v24, s[32:35], s13 offen")
    strip_transpose(k, 64, D, F, WS_WINT, 3, cw_off=cw_off)

def k1_kernel(name='k1_kernel', clear=None, cw_off=None, w1=True):
    k = Kernel(name, vgpr=72, sgpr=80)
    done = k.label('done'); lK = k.label('kg'); lW = k.label('w1')
    NR = 128; NW = 216 if w1 else 0
    k(f"s_cmp_ge_u32 s2, {NR+D+NW}")
    k(f"s_cbranch_scc1 {done}")
    k(f"s_load_dwordx2 s[6:7], s[0:1], {KA['ws']}")
    k(f"s_cmp_ge_u32 s2, {NR+D}")
    k(f"s_cbranch_scc1 {lW}")
    k("s_load_dwordx16 s[16:31], s[0:1], 0")
    k(f"s_cmp_ge_u32 s2, {NR}")
    k(f"s_cbranch_scc1 {lK}")
    emit_R(k, 2)
    k(f"{lK}:")
    k(f"s_sub_u32 s14, s2, {NR}")
    lds = emit_kgen(k, done)
    k(f"{lW}:")
    k("s_load_dwordx8 s[64:71], s[0:1], 80")
    k(f"s_sub_u32 s3, s2, {NR+D}")
    emit_w1(k, clear, cw_off)
    k(f"{done}:")
    k("s_endpgm")
    return k, NR+D+NW, max(lds, 32*1184), [["R", 0, NR], ["kgen", NR, NR+D]] + ([["w1", NR+D, NR+D+NW]] if w1 else [])

def emit_conv(k, ht_off):
    k("v_lshlrev_b32 v1, 4, v0")
    k("v_lshrrev_b32 v3, 6, v0")
    k("v_lshrrev_b32 v20, 1, v0")
    k("v_lshlrev_b32 v20, 6, v20")
    k("v_and_b32 v21, 1, v0")
    k("v_lshl_add_u32 v20, v21, 4, v20")
    k(f"s_mul_i32 s3, s2, {UXP}")
    k(f"s_mul_i32 s4, s2, {KR_PITCH}")
    k("s_lshl_b32 s5, s2, 1")
    k("v_mov_b32 v4, s5")
    k("v_readfirstlane_b32 s15, v3")
    k("s_waitcnt lgkmcnt(0)")
    k.lines.append("    ;@ST")
    k.srd(28, 6, D*KR_PITCH, WS_KR)
    k("buffer_load_dwordx4 v[8:11], v1, s[28:31], s4 offen")
    k("buffer_load_dwordx4 v[12:15], v1, s[28:31], s4 offen offset:16")
    k.srd(32, 6, D*UXP, WS_UX)
    k("buffer_load_dwordx4 v[24:27], v20, s[32:35], s3 offen")
    k("buffer_load_dwordx4 v[16:19], v20, s[32:35], s3 offen offset:32")
    k.srd(40, 8, D*2)
    k("buffer_load_ushort v36, v4, s[40:43], 0 offen")
    k.srd(44, 6, D*L*2, ht_off)
    for r in range(40, 44): k(f"v_mov_b32 v{r}, 0")
    k("v_cmp_gt_u32 vcc, 160, v0")
    k("s_and_saveexec_b64 s[10:11], vcc")
    k(f"ds_write_b128 v1, v[40:43] offset:{UB}")
    k("s_mov_b64 exec, s[10:11]")
    k("v_lshrrev_b32 v5, 2, v0")
    k(f"v_mul_u32_u24 v5, {CP}, v5")
    k("v_and_b32 v6, 3, v0")
    k("v_lshl_add_u32 v5, v6, 4, v5")
    k("v_cmp_gt_u32 vcc, 32, v0")
    k("s_and_saveexec_b64 s[10:11], vcc")
    k("ds_write_b128 v5, v[40:43] offset:4096")
    k("s_mov_b64 exec, s[10:11]")
    k("v_and_b32 v2, 15, v0")
    k("v_bfe_u32 v3, v0, 4, 2")
    k("v_and_b32 v5, 7, v2")
    k("v_sub_u32 v5, 7, v5")
    k(f"v_mul_u32_u24 v5, {CP}, v5")
    k("v_lshrrev_b32 v6, 3, v2")
    k("v_sub_u32 v6, v3, v6")
    k("v_add_u32 v6, 1, v6")
    k("v_lshl_add_u32 v5, v6, 4, v5")
    k(f"v_mul_u32_u24 v6, {UP}, v2")
    k("v_lshl_add_u32 v6, v3, 4, v6")
    k(f"v_add_u32 v6, {UB}, v6")
    k("v_lshrrev_b32 v7, 3, v0")
    k(f"v_mul_u32_u24 v7, {UP}, v7")
    k("v_and_b32 v21, 7, v0")
    k("v_lshl_add_u32 v7, v21, 4, v7")
    k("s_waitcnt vmcnt(3)")
    k.lines.append("    ;@ST")
    E, O, O2 = 44, 52, 60
    k("ds_write_b128 v1, v[8:11]")
    k(f"ds_write_b128 v1, v[10:13] offset:{4*CP}")
    for j in range(6): k(f"v_mov_b32 v{E+j}, v{9+j}")
    k(f"ds_write_b128 v1, v[{E}:{E+3}] offset:{2*CP}")
    k(f"ds_write_b128 v1, v[{E+2}:{E+5}] offset:{6*CP}")
    for j in range(6): k(f"v_alignbit_b32 v{O+j}, v{9+j}, v{8+j}, 16")
    k(f"ds_write_b128 v1, v[{O}:{O+3}] offset:{1*CP}")
    k(f"ds_write_b128 v1, v[{O+2}:{O+5}] offset:{5*CP}")
    for j in range(6): k(f"v_alignbit_b32 v{O2+j}, v{10+j}, v{9+j}, 16")
    k(f"ds_write_b128 v1, v[{O2}:{O2+3}] offset:{3*CP}")
    k(f"ds_write_b128 v1, v[{O2+2}:{O2+5}] offset:{7*CP}")
    k("s_waitcnt vmcnt(2)")
    k(f"ds_write_b128 v7, v[24:27] offset:{UB + 16*UP}")
    XF, UF, SK = 96, 68, 104
    k("s_waitcnt vmcnt(0)")
    k("v_lshlrev_b32 v36, 16, v36")
    for j in range(4):
        k(f"v_lshlrev_b32 v{UF+2*j}, 16, v{24+j}")
        k(f"v_and_b32 v{UF+2*j+1}, 0xffff0000, v{24+j}")
    for e in range(8): k(f"v_mul_f32 v{UF+e}, v{UF+e}, v36")
    for j in range(4): k(f"v_cvt_pk_bf16_f32 v{SK+j}, v{UF+2*j}, v{UF+2*j+1}")
    for j in range(4):
        k(f"v_lshlrev_b32 v{XF+2*j}, 16, v{16+j}")
        k(f"v_and_b32 v{XF+2*j+1}, 0xffff0000, v{16+j}")
    k("s_waitcnt lgkmcnt(0)")
    k.lines.append("    ;@ST")
    k("s_barrier")
    k.lines.append("    ;@ST")
    ACC, AF, BF = 8, 40, 72
    ranges = [(0, 12), (12, 24), (24, 40), (40, 64)]
    labs = [k.label('cw') for _ in range(4)]
    ljoin = k.label('cj')
    for w in range(1, 4):
        k(f"s_cmp_eq_u32 s15, {w}")
        k(f"s_cbranch_scc1 {labs[w]}")
    def ra(phi):
        r = AF + 4*(phi % 8)
        return f"ds_read_b128 v[{r}:{r+3}], v5 offset:{32*(127-phi)}"
    def rb(kap, nt):
        r = BF + 8*(kap % 3) + 4*nt
        off = (16*nt + 16 - (kap >> 1))*UP + (64 if kap % 2 == 0 else 0)
        return f"ds_read_b128 v[{r}:{r+3}], v6 offset:{off}"
    for w in range(4):
        k(f"{labs[w]}:")
        k0, k1_ = ranges[w]
        nts = lambda kap: [0, 1] if kap < 32 else [1]
        def loads(kap):
            if kap >= k1_: return []
            out = [rb(kap, nt) for nt in nts(kap)]
            for mt in (range(4) if kap == k0 else (2, 3)):
                p = 2*kap - 2 + mt
                if p >= 0: out.append(ra(p))
            return out
        inited = set()
        for ins in loads(k0) + loads(k0+1): k(ins)
        for kap in range(k0, k1_):
            k(f"s_waitcnt lgkmcnt({len(loads(kap+1))})")
            nxt = loads(kap+2)
            ms = []
            for mt in range(4):
                phi = 2*kap - 2 + mt
                if phi < 0: continue
                for nt in nts(kap):
                    a = ACC + (mt*2+nt)*4
                    ar = AF + 4*(phi % 8); br = BF + 8*(kap % 3) + 4*nt
                    c = f"v[{a}:{a+3}]" if (mt, nt) in inited else "0"
                    inited.add((mt, nt))
                    ms.append(f"v_mfma_f32_16x16x32_bf16 v[{a}:{a+3}], v[{ar}:{ar+3}], v[{br}:{br+3}], {c}")
            for i_, m in enumerate(ms):
                k(m)
                if i_ < len(nxt): k(nxt[i_])
            for ins in nxt[len(ms):]: k(ins)
        k(f"v_mul_u32_u24 v7, {YP}, v2")
        k("v_lshl_add_u32 v7, v3, 4, v7")
        k("s_barrier")
        k.nop(8)
        for mt in range(4):
            for nt in range(2):
                if (mt, nt) not in inited: continue
                a = ACC + (mt*2+nt)*4
                off = w*32*YP + 16*nt*YP + 64*mt - (16*YP if w == 3 else 0)
                k(f"ds_write_b128 v7, v[{a}:{a+3}] offset:{off}")
        if w < 3: k(f"s_branch {ljoin}")
    k(f"{ljoin}:")
    k.lines.append("    ;@ST")
    k("v_lshrrev_b32 v5, 3, v0")
    k(f"v_mul_u32_u24 v5, {YP}, v5")
    k("v_and_b32 v6, 7, v0")
    k("v_lshl_add_u32 v5, v6, 5, v5")
    k("s_lshl_b32 s3, s2, 12")
    k("s_waitcnt lgkmcnt(0)")
    k("s_barrier")
    k.lines.append("    ;@ST")
    for w in range(3):
        k(f"ds_read_b128 v[{8+8*w}:{11+8*w}], v5 offset:{w*32*YP}")
        k(f"ds_read_b128 v[{12+8*w}:{15+8*w}], v5 offset:{w*32*YP+16}")
    for r in range(32, 40): k(f"v_mov_b32 v{r}, 0")
    sk = k.label('sk')
    k("s_cmp_lt_u32 s15, 2")
    k(f"s_cbranch_scc1 {sk}")
    k(f"ds_read_b128 v[32:35], v5 offset:{3*32*YP - 16*YP}")
    k(f"ds_read_b128 v[36:39], v5 offset:{3*32*YP - 16*YP + 16}")
    k(f"{sk}:")
    for j in range(4):
        k(f"v_lshlrev_b32 v{40+2*j}, 16, v{SK+j}")
        k(f"v_and_b32 v{41+2*j}, 0xffff0000, v{SK+j}")
    k("s_waitcnt lgkmcnt(0)")
    for e in range(8):
        k(f"v_add_f32 v{8+e}, v{8+e}, v{16+e}")
        k(f"v_add_f32 v{24+e}, v{24+e}, v{32+e}")
    for e in range(8): k(f"v_add_f32 v{8+e}, v{8+e}, v{24+e}")
    for j in range(4): k(f"v_cvt_pk_bf16_f32 v{16+j}, v{8+2*j}, v{9+2*j}")
    for j in range(4):
        k(f"v_lshlrev_b32 v{8+2*j}, 16, v{16+j}")
        k(f"v_and_b32 v{9+2*j}, 0xffff0000, v{16+j}")
    for e in range(8): k(f"v_add_f32 v{8+e}, v{8+e}, v{40+e}")
    for j in range(4): k(f"v_cvt_pk_bf16_f32 v{16+j}, v{8+2*j}, v{9+2*j}")
    for j in range(4):
        k(f"v_lshlrev_b32 v{8+2*j}, 16, v{16+j}")
        k(f"v_and_b32 v{9+2*j}, 0xffff0000, v{16+j}")
    for e in range(8): k(f"v_add_f32 v{8+e}, v{8+e}, v{XF+e}")
    for j in range(4): k(f"v_cvt_pk_bf16_f32 v{16+j}, v{8+2*j}, v{9+2*j}")
    k("buffer_store_dwordx4 v[16:19], v1, s[44:47], s3 offen")
    k("s_endpgm")
    k.lines.append("    ;@ST0")

def emit_cw(k, done, idreg, cw_off):
    k("v_lshrrev_b32 v1, 3, v0")
    k("v_and_b32 v2, 7, v0")
    k(f"v_mul_u32_u24 v3, {F*2}, v1")
    k("v_lshl_add_u32 v3, v2, 4, v3")
    k(f"s_lshl_b32 s8, s{idreg}, 7")
    k("s_waitcnt lgkmcnt(0)")
    k.srd(16, 64, D*F*2)
    k.srd(20, 6, F*4, cw_off)
    for q in range(18):
        k(f"buffer_load_dwordx4 v[{24+4*q}:{27+4*q}], v3, s[16:19], s8 offen")
        k(f"s_add_u32 s8, s8, {32*F*2}")
    for e in range(8): k(f"v_mov_b32 v{8+e}, 0")
    for q in range(18):
        k(f"s_waitcnt vmcnt({17-q})")
        for j in range(4):
            k(f"v_lshlrev_b32 v4, 16, v{24+4*q+j}")
            k(f"v_and_b32 v5, 0xffff0000, v{24+4*q+j}")
            k(f"v_add_f32 v{8+2*j}, v{8+2*j}, v4")
            k(f"v_add_f32 v{9+2*j}, v{9+2*j}, v5")
    k("v_lshlrev_b32 v4, 5, v0")
    k("ds_write_b128 v4, v[8:11]")
    k("ds_write_b128 v4, v[12:15] offset:16")
    k("s_waitcnt lgkmcnt(0)")
    k("s_barrier")
    k("v_cmp_gt_u32 vcc, 64, v0")
    k("s_and_saveexec_b64 s[10:11], vcc")
    k(f"s_cbranch_execz {done}")
    k("v_lshlrev_b32 v4, 2, v0")
    for g in range(32): k(f"ds_read_b32 v{24+g}, v4 offset:{256*g}")
    k("s_waitcnt lgkmcnt(0)")
    for g in range(1, 32): k(f"v_add_f32 v24, v24, v{24+g}")
    k("v_cvt_pk_bf16_f32 v5, v24, v24")
    k("v_lshlrev_b32 v5, 16, v5")
    k("v_sub_f32 v6, v24, v5")
    k("v_cvt_pk_bf16_f32 v5, v24, v6")
    k(f"s_lshl_b32 s8, s{idreg}, 8")
    k("buffer_store_dword v5, v4, s[20:23], s8 offen")
    k("s_endpgm")

def emit_pf(k, idreg):
    k(f"s_lshl_b32 s3, s{idreg}, 16")
    k("v_lshlrev_b32 v1, 4, v0")
    k("s_waitcnt lgkmcnt(0)")
    k.srd(8, 66, L*L*2)
    for j in range(16):
        k(f"buffer_load_dwordx4 v[{8+4*j}:{11+4*j}], v1, s[8:11], s3 offen")
        k("s_add_u32 s3, s3, 4096")
    k("s_waitcnt vmcnt(0)")
    k("s_endpgm")

def k2_kernel(name='k2_kernel', clear=None, cw_off=None, ht_off=WS_HT2, order=('cw', 'w1', 'w2', 'pf')):
    k = Kernel(name, vgpr=112, sgpr=80)
    cnt = dict(cw=72, w1=216, w2=108, pf=128, ww=128)
    done = k.label('done'); lS = k.label('side')
    bounds = [D]
    for o in order: bounds.append(bounds[-1] + cnt[o])
    k(f"s_cmp_ge_u32 s2, {bounds[-1]}")
    k(f"s_cbranch_scc1 {done}")
    k(f"s_load_dwordx2 s[6:7], s[0:1], {KA['ws']}")
    k(f"s_cmp_ge_u32 s2, {D}")
    k(f"s_cbranch_scc1 {lS}")
    k(f"s_load_dwordx2 s[8:9], s[0:1], {KA['Dskip']}")
    emit_conv(k, ht_off)
    k(f"{lS}:")
    k("s_load_dwordx8 s[64:71], s[0:1], 80")
    labs = {o: k.label(o) for o in order}
    for i in range(len(order)-1, 0, -1):
        k(f"s_cmp_ge_u32 s2, {bounds[i]}")
        k(f"s_cbranch_scc1 {labs[order[i]]}")
    roles = [["conv", 0, D]]
    for i, o in enumerate(order):
        k(f"{labs[o]}:")
        k(f"s_sub_u32 s3, s2, {bounds[i]}")
        roles.append([o, bounds[i], bounds[i+1]])
        if o == 'w1':
            emit_w1(k, clear, cw_off)
        elif o == 'w2':
            k("s_waitcnt lgkmcnt(0)")
            strip_transpose(k, 70, FH, D, WS_WOUTT, 3, kperm=KPERM)
        elif o == 'cw':
            emit_cw(k, done, 3, cw_off)
        elif o == 'pf':
            emit_pf(k, 3)
        elif o == 'ww':
            k("s_and_b32 s8, s2, 3")
            k(f"s_mul_i32 s8, s8, {576*D*2}")
            k("s_lshr_b32 s9, s3, 3")
            k("s_lshr_b32 s10, s9, 3")
            k(f"s_mul_i32 s10, s10, {FH*D*2}")
            k("s_add_u32 s8, s8, s10")
            k("s_and_b32 s9, s9, 7")
            k("s_mul_i32 s9, s9, 82944")
            k("s_add_u32 s8, s8, s9")
            k("v_lshlrev_b32 v1, 4, v0")
            k("s_waitcnt lgkmcnt(0)")
            k.srd(12, 6, F*D*2, WS_WINT)
            for j in range(21):
                k(f"buffer_load_dwordx4 v[{8+4*j}:{11+4*j}], v1, s[12:15], s8 offen")
                k("s_add_u32 s8, s8, 4096")
            k("s_waitcnt vmcnt(0)")
            k("s_endpgm")
    k(f"{done}:")
    k("s_endpgm")
    return k, bounds[-1], 40960, roles
```

```python
from asmlib import *
def apply(k, base_off, nmax=8):
    V = (k.vgpr + 3)//4*4
    k.vgpr = V + 12
    k.sgpr = 102
    STR = [84 + 2*i for i in range(8)]
    out = ["    s_memrealtime s[84:85]", f"    v_lshrrev_b32 v{V+8}, 6, v0", "    s_mov_b32 s83, s2", f"    s_load_dwordx2 s[100:101], s[0:1], {KA['ws']}"]
    n = 1
    L = k.lines
    for i, l in enumerate(L):
        t = l.strip()
        if t.startswith(';@ST0'):
            n = 1; continue
        if t.startswith(';@ST'):
            out.append(f"    s_memrealtime s[{STR[n]}:{STR[n]+1}]"); n += 1; continue
        if t == 's_endpgm' and i != len(L)-1:
            out += ["    s_mov_b64 exec, -1", "    s_waitcnt vmcnt(0)", f"    s_memrealtime s[{STR[7]}:{STR[7]+1}]", "    s_waitcnt lgkmcnt(0)"]
            for j in range(8):
                out.append(f"    v_mov_b32 v{V+j}, s{STR[j] if (j < n or j == 7) else STR[n-1]}")
            out += [f"    s_add_u32 s76, s100, 0x{base_off:x}", "    s_addc_u32 s77, s101, 0", "    s_mov_b32 s78, 0x100000", "    s_mov_b32 s79, 0x00020000",
                    "    s_lshl_b32 s83, s83, 4", f"    v_add_u32 v{V+9}, s83, v{V+8}", f"    v_lshlrev_b32 v{V+9}, 5, v{V+9}",
                    f"    buffer_store_dwordx4 v[{V}:{V+3}], v{V+9}, s[76:79], 0 offen",
                    f"    buffer_store_dwordx4 v[{V+4}:{V+7}], v{V+9}, s[76:79], 0 offen offset:16"]
        out.append(l)
    k.lines = out
```

```python
import sys, json
sys.path.insert(0, 'work')
from gcore import *
import gen_p as gp, gen_m3 as gm, tl
gp.KPERM = True
def main(out, timeline=False, pstamp=False, order=('w2',), **kw):
    gm.WS_HT = gp.WS_HT2
    k1, n1, l1, r1 = gp.k1_kernel(clear=(gm.HO_BASE, gm.HO_BYTES), cw_off=gm.WS_CWP)
    k2, n2, l2, r2 = gp.k2_kernel(clear=(gm.HO_BASE, gm.HO_BYTES), cw_off=gm.WS_CWP, order=order)
    km, lm = gm.mega_kernel(**kw)
    ks = [k1, k2, km]
    launches = [('k1_kernel', n1, 256, l1), ('k2_kernel', n2, 256, l2), ('mega_kernel', 256, 704, lm)]
    if pstamp:
        import stamp_tool
        stamp_tool.apply(k1, 120 << 20); stamp_tool.apply(k2, 121 << 20)
    if timeline or pstamp or kw.get('stamps'):
        if timeline:
            for i, kk in enumerate(ks): tl.instrument(kk, i)
        ks.append(tl.blocker_kernel()); ks.append(tl.scrub_kernel())
        launches = [('blocker_kernel', 1, 64, 0)] + launches + [('scrub_kernel', 1024, 64, 0)]
    open(out, 'w').write(build_file(ks, launches))
    open('roles.json', 'w').write(json.dumps({'k1_kernel': r1, 'k2_kernel': r2}))
if __name__ == '__main__':
    O = dict(order=('ww', 'w2'), WARMP=False, ROT3=False)
    main('v6.s', **O)
    main('v6t.s', timeline=True, **O)
    main('v6s.s', stamps=True, **O)
    main('v6s_b.s', stamps=True, PSPREAD=13, **O)
    main('v6s_c.s', stamps=True, MAP3=False, **O)
    main('v6s_d.s', stamps=True, RINGS=(12,6), **O)
    main('v6s_fq.s', stamps=True, FAKEQ=True, **O)
    main('v6s_fp.s', stamps=True, FAKEP=True, **O)
    main('v6s_fpq.s', stamps=True, FAKEP=True, FAKEQ=True, **O)
    main('v6s_z1.s', stamps=True, ZEXP=1, **O)
    main('v6s_z2.s', stamps=True, ZEXP=2, **O)
```

```python
import sys, json
sys.path.insert(0, 'work')
from gcore import *
import gen_p as gp, gen_m3 as gm, tl
gp.KPERM = True
def main(out, timeline=False, pstamp=False, report=None, order=('w2',), **kw):
    gm.WS_HT = gp.WS_HT2
    k1, n1, l1, r1 = gp.k1_kernel(clear=(gm.HO_BASE, gm.HO_BYTES), cw_off=gm.WS_CWP)
    k2, n2, l2, r2 = gp.k2_kernel(clear=(gm.HO_BASE, gm.HO_BYTES), cw_off=gm.WS_CWP, order=order)
    km, lm = gm.mega_kernel(**kw)
    ks = [k1, k2, km]
    launches = [('k1_kernel', n1, 256, l1), ('k2_kernel', n2, 256, l2), ('mega_kernel', 256, 704, lm)]
    if report is not None:
        for i, kk in enumerate(ks): tl.instrument(kk, i)
        ks.append(tl.report_kernel(len(launches), report))
        launches = launches + [('report_kernel', 1, 64, 0)]
    if pstamp:
        import stamp_tool
        stamp_tool.apply(k1, 120 << 20); stamp_tool.apply(k2, 121 << 20)
    if timeline or pstamp or kw.get('stamps'):
        if timeline:
            for i, kk in enumerate(ks): tl.instrument(kk, i)
        ks.append(tl.blocker_kernel()); ks.append(tl.scrub_kernel())
        launches = [('blocker_kernel', 1, 64, 0)] + launches + [('scrub_kernel', 1024, 64, 0)]
    open(out, 'w').write(build_file(ks, launches))
    open('roles.json', 'w').write(json.dumps({'k1_kernel': r1, 'k2_kernel': r2}))
if __name__ == '__main__':
    O = dict(order=('ww', 'w2'), WARMP=False, ROT3=False)
    main('v6.s', **O)
    main('v6t.s', timeline=True, **O)
    main('v6s.s', stamps=True, **O)
    main('v6s_b.s', stamps=True, PSPREAD=13, **O)
    main('v6s_c.s', stamps=True, MAP3=False, **O)
    main('v6s_d.s', stamps=True, RINGS=(12,6), **O)
    main('v6s_fq.s', stamps=True, FAKEQ=True, **O)
    main('v6s_fp.s', stamps=True, FAKEP=True, **O)
    main('v6s_fpq.s', stamps=True, FAKEP=True, FAKEQ=True, **O)
    main('v6s_z1.s', stamps=True, ZEXP=1, **O)
    main('v6s_z2.s', stamps=True, ZEXP=2, **O)
    main('v6r.s', report=0, **O)
```

```python
import sys, math
sys.path.insert(0, 'work')
from gcore import *
import gen_v0 as v0
from gen1 import PAIR9, PLAIN, PAIR5, groups_of, decode_16x16
rbf = v0.rbf

HO_BASE = WS_STAT
HO_ST3 = 0
HO_LN2 = 256*1024
HO_Z2F = HO_LN2 + 9*16*1024
HO_ZGF = HO_Z2F + 2048
HO_BYTES = HO_ZGF + 2048
WS_CWP = 32*MB
WS_HTM = 72*MB
SC = "sc1"
SPIN = 0x100000

class Role:
    def __init__(self, k, name):
        self.k, self.name, self.nb = k, name, 0
    def bar(self, n=1):
        for _ in range(n):
            self.k("s_barrier"); self.nb += 1

def pk(op, d, a, b, c=None, mods=''):
    def r(x): return x if isinstance(x, str) else f"v[{x}:{x+1}]"
    s = f"v_pk_{op}_f32 {r(d)}, {r(a)}, {r(b)}"
    if c is not None: s += f", {r(c)}"
    return s + (' ' + mods if mods else '')

def mega_kernel(name='mega_kernel', NA=4, stamps=False, PF=True, DET=False, GF=16, RINGS=(10, 8), ROT3=True, WARMP=True, LSC=SC, MAP3=True, WARM2=False, PSPREAD=15, FAKEQ=False, FAKEP=False, ZEXP=0, HWARM=False, P1DET=False, GINT=False):
    cA = Cfg([0,1,2,3,4], [5,6,7,8], 2, 144, 4, PAIR9, PLAIN, swap=False)
    P5S, Q5S = 9216, 8192
    P5N, Q5N = RINGS
    Q5B = P5S*P5N
    SCR = cA.LDS
    SC_RS2 = SCR
    SC_NM2 = SC_RS2 + 512
    SC_P3 = SC_NM2 + 512
    SC_RS3 = SC_P3 + 2048
    SC_MR3 = SC_RS3 + 512
    SC_CW1 = SC_MR3 + 512
    SC_CW2 = SC_CW1 + 768
    LDS = max(SC_CW2 + 768, Q5B + Q5S*Q5N)
    k = Kernel(name, vgpr=164, sgpr=96)
    done = k.label('done'); lP = k.label('ldP'); lQ = k.label('ldQ'); lX = k.label('aux'); c1 = k.label('c1')
    k("s_cmp_ge_u32 s2, 256")
    k(f"s_cbranch_scc1 {done}")
    k(f"s_load_dwordx2 s[6:7], s[0:1], {KA['ws']}")
    k(f"s_load_dwordx4 s[72:75], s[0:1], {KA['wsp']}")
    k(f"s_load_dwordx2 s[4:5], s[0:1], {KA['out']}")
    if stamps:
        k("s_memrealtime s[48:49]")
        k.sgpr = 102
    k("v_lshrrev_b32 v1, 6, v0")
    k("v_and_b32 v2, 63, v0")
    decode_16x16(k)
    k("v_readfirstlane_b32 s15, v1")
    if MAP3:
        k("s_lshr_b32 s77, s2, 3")
        k("s_and_b32 s76, s77, 7")
        k("s_mul_i32 s76, s76, 72")
        k("s_lshr_b32 s77, s77, 3")
        k("s_and_b32 s14, s2, 7")
        k("s_lshl_b32 s14, s14, 2")
        k("s_add_u32 s77, s77, s14")
        k("s_lshl_b32 s77, s77, 6")
    else:
        k("s_and_b32 s76, s10, 7")
        k("s_mul_i32 s76, s76, 72")
        k("s_lshr_b32 s77, s10, 3")
        k("s_lshl_b32 s77, s77, 6")
        k("s_add_u32 s77, s77, s13")
    k("s_cmp_eq_u32 s15, 8")
    k(f"s_cbranch_scc1 {lP}")
    k("s_cmp_eq_u32 s15, 9")
    k(f"s_cbranch_scc1 {lQ}")
    k("s_cmp_eq_u32 s15, 10")
    k(f"s_cbranch_scc1 {lX}")
    nbs = {}
    STR = [48+2*i for i in range(8)] + [84+2*i for i in range(8)]
    class Stamper:
        def __init__(self): self.n = 1
        def __call__(self):
            if stamps:
                r = STR[self.n]; self.n += 1
                k(f"s_memrealtime s[{r}:{r+1}]")
        def dump(self):
            if not stamps: return
            k("s_waitcnt vmcnt(0)")
            self()
            k("s_waitcnt lgkmcnt(0)")
            k.srd(24, 6, 1 << 20, WS_STAMP)
            k("s_lshl_b32 s42, s2, 4")
            k("s_add_u32 s42, s42, s15")
            k("s_lshl_b32 s42, s42, 6")
            k("v_mov_b32 v10, 0")
            for i in range(16): k(f"v_mov_b32 v{16+i}, s{STR[i] if i < self.n else STR[0]}")
            for i in range(4): k(f"buffer_store_dwordx4 v[{16+4*i}:{19+4*i}], v10, s[24:27], s42 offen offset:{16*i}")
    masks = {3: 64, 2: 66, 1: 68, 0: 70}
    def make_masks():
        for b, sr in masks.items():
            k(f"v_and_b32 v12, {1 << b}, v3")
            k(f"v_cmp_ne_u32 s[{sr}:{sr+1}], 0, v12")
    def reduce_scatter(V, W):
        cnt = 16
        for b, ctl in [(3, "row_ror:8"), (2, "row_half_mirror"), (1, "quad_perm:[2,3,0,1]"), (0, "quad_perm:[1,0,3,2]")]:
            half = cnt//2; sr = masks[b]
            for j in range(half):
                k(f"v_cndmask_b32 v{W+j}, v{V+j+half}, v{V+j}, s[{sr}:{sr+1}]")
                k(f"v_cndmask_b32 v{V+j}, v{V+j}, v{V+j+half}, s[{sr}:{sr+1}]")
            k.nop(2)
            for j in range(half):
                k(f"v_add_f32_dpp v{V+j}, v{W+j}, v{V+j} {ctl} row_mask:0xf bank_mask:0xf")
            cnt = half

    comp_addrs(k, cA)
    k("v_lshrrev_b32 v12, 2, v3")
    k("v_and_b32 v13, 3, v3")
    k("v_and_b32 v14, 1, v4")
    k("v_lshl_or_b32 v14, v14, 2, v12")
    k("v_lshlrev_b32 v14, 1, v14")
    k("v_lshrrev_b32 v15, 1, v13")
    k("s_lshl_b32 s42, s40, 2")
    k("v_add_u32 v15, s42, v15")
    k("v_xor_b32 v15, v15, v14")
    k("v_lshlrev_b32 v15, 4, v15")
    k("v_and_b32 v13, 1, v13")
    k("v_lshl_add_u32 v15, v13, 3, v15")
    k("v_lshl_add_u32 v12, v4, 3, v12")
    k("v_lshl_add_u32 v10, v12, 8, v15")
    k(f"v_add_u32 v10, {cA.Q_BASE}, v10")
    k("v_xor_b32 v11, 32, v10")
    make_masks()
    k(f"s_mov_b32 s78, {fhex(-GC2 if ZEXP else GC2)}")
    k(f"s_mov_b32 s79, {fhex(-GC1 if ZEXP else GC1)}")
    k("s_waitcnt lgkmcnt(0)")
    k.srd(20, 6, D*L*2, WS_HTM)
    if HWARM:
        k("v_lshrrev_b32 v12, 1, v0")
        k("v_lshlrev_b32 v12, 12, v12")
        k("v_and_b32 v13, 1, v0")
        k("v_lshl_add_u32 v12, v13, 7, v12")
        k("s_and_b32 s42, s10, 3")
        k(f"s_mul_i32 s42, s42, {144*4096}")
        k("s_lshl_b32 s43, s13, 1")
        k("s_add_u32 s42, s42, s43")
        k("v_cmp_gt_u32 vcc, 288, v0")
        k("s_and_saveexec_b64 s[44:45], vcc")
        lnw = k.label('nw')
        k(f"s_cbranch_execz {lnw}")
        k("buffer_load_dword v160, v12, s[20:23], s42 offen")
        k(f"{lnw}:")
        k("s_mov_b64 exec, s[44:45]")
    k.srd(24, 6, FH*L*2, WS_Z2T)
    k.srd(28, 6, L*FH*2, WS_ZG)
    k.srd(32, 74, L*2)
    k.srd(80, 4, L*D*2)
    k("s_cmp_eq_u32 s41, 1")
    k(f"s_cbranch_scc1 {c1}")

    def compute(ci):
        R = Role(k, f'c{ci}')
        ST = Stamper()
        A1 = 16; A2 = 56; S0 = 96; S1 = 124; T = 152
        nm = len(cA.cls[ci])
        class CompM(Comp):
            tr = False
            def reads(self, si, slot, ks):
                if not self.tr: return Comp.reads(self, si, slot, ks)
                c = self.cfg; S = self.S[si]; out = []
                for n in range(2):
                    for x in range(2):
                        out.append(f"ds_read_b64_tr_b16 v[{S+4*n+2*x}:{S+4*n+2*x+1}], v{10+n} offset:{slot*c.Q_SLOT + (32*ks+4*x)*256}")
                for m in range(self.nm):
                    r = S + 8 + 4*m
                    out.append(f"ds_read_b128 v[{r}:{r+3}], v{self.va+ks} offset:{slot*c.P_SLOT + m*2048}")
                return out
            def st(self, slot, ACC, zero=False, last=False, swap=False, pre_bar=None, extra=None, per=(1, 2)):
                self.cfg.swap = swap
                self.interleave(self.mfmas(0, ACC, zero), self.reads(1, slot, 1), extra, per[0])
                k("s_waitcnt lgkmcnt(0)")
                if pre_bar:
                    if DET: ST()
                    k(pre_bar)
                    if DET: ST()
                R.bar()
                self.interleave(self.mfmas(1, ACC), [] if last else self.reads(0, (slot+1) % self.cfg.NS, 0), extra, per[1])
                if not last: k("s_waitcnt lgkmcnt(0)")
                self.cfg.swap = False
        def loop(n, body):
            k(f"s_mov_b32 s43, {n}")
            lp = k.label('lp'); k(f"{lp}:")
            nb0 = R.nb
            body()
            R.nb += (n-1)*(R.nb - nb0)
            k("s_sub_u32 s43, s43, 1")
            k("s_cmp_lg_u32 s43, 0")
            k(f"s_cbranch_scc1 {lp}")
        C = CompM(k, cA, ci, S0, S1)
        C.tr = True
        R.bar()
        ST()
        for r in C.reads(0, 0, 0): k(r)
        k("s_waitcnt lgkmcnt(0)")
        C.st(0, A2, zero=True, swap=True)
        if P1DET:
            for g in range(1, 9):
                ST(); C.st(g % 4, A2, swap=True)
            ST()
            _st = ST
            class _N:
                def __call__(self): pass
                def dump(self): _st.dump()
            ST = _N()
        else:
            loop(2, lambda: [C.st((1+i) % 4, A2, swap=True) for i in range(4)])
            ST()
        def ext_step(ACC, swap):
            QX = S1; PX = S1 + 4
            k("v_lshlrev_b32 v12, 2, v3")
            k("s_lshl_b32 s42, s40, 7")
            k(f"s_add_u32 s42, s42, {SC_NM2}")
            k("v_add_u32 v13, s42, v12")
            k(f"ds_read_b32 v{QX}, v13")
            k(f"ds_read_b32 v{QX+2}, v13 offset:64")
            k(f"v_add_u32 v12, {SC_CW2 if swap else SC_CW1}, v12")
            if not swap:
                k("v_lshrrev_b32 v13, 2, v3")
                k("v_lshlrev_b32 v13, 4, v13")
                k("v_add_u32 v13, v13, v12")
            for m in range(nm):
                if swap:
                    k(f"ds_read_b32 v{PX+2*m}, v12 offset:{cA.cls[ci][m]*64}")
                else:
                    base, e = PAIR9[cA.cls[ci][m]]
                    if e is None: k(f"ds_read_b32 v{PX+2*m}, v12 offset:{base*4}")
                    else:         k(f"ds_read_b32 v{PX+2*m}, v13 offset:{(base+4*e)*4}")
                k(f"v_mov_b32 v{PX+2*m+1}, 0")
            k(f"v_mov_b32 v{QX+1}, 0"); k(f"v_mov_b32 v{QX+3}, 0")
            k("v_cmp_eq_u32 vcc, 0, v4")
            k("s_nop 0")
            k("s_waitcnt lgkmcnt(0)")
            k(f"v_cndmask_b32 v{QX}, 0, v{QX}, vcc")
            k(f"v_cndmask_b32 v{QX+2}, 0, v{QX+2}, vcc")
            k.nop(2)
            for m in range(nm):
                for n in range(2):
                    a = ACC + (m*2+n)*4
                    p = PX + 2*m; q = QX + 2*n
                    x, y = (q, p) if swap else (p, q)
                    k(f"v_mfma_f32_16x16x16_bf16 v[{a}:{a+3}], v[{x}:{x+1}], v[{y}:{y+1}], v[{a}:{a+3}]")
        RS = S1 + 16
        k("v_lshlrev_b32 v14, 4, v4")
        k("s_lshl_b32 s42, s40, 7")
        k("v_add_u32 v14, s42, v14")
        k(f"v_add_u32 v15, {SC_RS2}, v14")
        k(f"ds_read_b128 v[{RS}:{RS+3}], v15")
        k(f"ds_read_b128 v[{RS+4}:{RS+7}], v15 offset:64")
        ext_step(A2, True)
        Vv = S1; Ww = S1 + 16
        k("v_bfe_u32 v12, v3, 2, 1")
        k("v_lshlrev_b32 v12, 4, v12")
        k("v_lshl_add_u32 v12, v4, 2, v12")
        k("v_and_b32 v13, 3, v3")
        k("v_add_u32 v12, v12, v13")
        k("v_lshrrev_b32 v13, 3, v3")
        k("v_lshl_add_u32 v12, v12, 1, v13")
        k("v_lshlrev_b32 v12, 2, v12")
        k("s_lshl_b32 s42, s40, 8")
        k(f"s_add_u32 s42, s42, {SC_P3 + ci*1024}")
        k("v_add_u32 v12, s42, v12")
        for m in range(nm):
            xs = [A2 + m*8 + 2*j for j in range(4)]
            ts = [T + 2*j for j in range(4)]
            for j, x in enumerate(xs): k(pk('mul', x, x, RS + 2*j))
            for x, t in zip(xs, ts): k(pk('mul', t, x, x))
            for x, t in zip(xs, ts): k(pk('fma', t, t, "s[78:79]", "s[78:79]", "op_sel:[0,0,1] op_sel_hi:[1,0,1]"))
            for x, t in zip(xs, ts): k(pk('mul', t, t, x))
            for t in ts: k(f"v_exp_f32 v{t}, v{t}"); k(f"v_exp_f32 v{t+1}, v{t+1}")
            for t in ts: k(pk('add', t, t, "1.0", None, "op_sel_hi:[1,0]"))
            for t in ts: k(f"v_rcp_f32 v{t}, v{t}"); k(f"v_rcp_f32 v{t+1}, v{t+1}")
            for x, t in zip(xs, ts):
                k(pk('fma', x, x, t, x, "neg_lo:[1,0,0] neg_hi:[1,0,0]") if ZEXP else pk('mul', x, x, t))
            for j, x in enumerate(xs):
                if m == 0:
                    k(f"v_pk_mov_b32 v[{Vv+2*j}:{Vv+2*j+1}], v[{x}:{x+1}], v[{x}:{x+1}] op_sel:[0,1]")
                    k(pk('mul', Vv+8+2*j, x, x))
                else:
                    k(pk('add', Vv+2*j, Vv+2*j, x))
                    k(pk('fma', Vv+8+2*j, x, x, Vv+8+2*j))
        reduce_scatter(Vv, Ww)
        k(f"ds_write_b32 v12, v{Vv}")
        k("s_waitcnt lgkmcnt(0)")
        R.bar()
        ST()
        for g in range(9, 9+NA):
            C.st(g % 4, A1, zero=(g == 9))
        ST()
        CR = S1; CM = S1 + 8
        k(f"v_add_u32 v15, {SC_RS3}, v14")
        for n in range(2):
            k(f"ds_read_b128 v[{CR+4*n}:{CR+4*n+3}], v15 offset:{64*n}")
            k(f"ds_read_b128 v[{CM+4*n}:{CM+4*n+3}], v15 offset:{512 + 64*n}")
        k("v_lshlrev_b32 v13, 6, v3")
        k("v_lshl_add_u32 v13, v4, 4, v13")
        k("s_lshl_b32 s42, s10, 6")
        k("s_lshl_b32 s44, s11, 2")
        k("s_add_u32 s42, s42, s44")
        k("s_add_u32 s42, s42, s40")
        k("s_mul_i32 s42, s42, 9216")
        k("v_add_u32 v13, s42, v13")
        k("s_waitcnt lgkmcnt(0)")
        for m in range(nm):
            a = A2 + m*8
            for j in range(4):
                k(pk('mul', a+2*j, a+2*j, CR+2*j) if ZEXP == 2 else pk('fma', a+2*j, a+2*j, CR+2*j, CM+2*j, "neg_lo:[0,0,1] neg_hi:[0,0,1]"))
            for j in range(4):
                k(f"v_cvt_pk_bf16_f32 v{a+j}, v{a+2*j}, v{a+2*j+1}")
            k(f"s_mov_b32 s44, {cA.cls[ci][m]*1024}")
            k("s_nop 0")
            k(f"v_permlane32_swap_b32 v{a}, v{a+2}")
            k(f"v_permlane32_swap_b32 v{a+1}, v{a+3}")
            k("s_nop 0")
            k(f"v_permlane16_swap_b32 v{a}, v{a+2}")
            k(f"v_permlane16_swap_b32 v{a+1}, v{a+3}")
            k(f"buffer_store_dwordx4 v[{a}:{a+3}], v13, s[24:27], s44 offen {SC}")
        ST()
        for g in range(9+NA, 18):
            C.st(g % 4, A1, last=(g == 17), pre_bar="s_waitcnt vmcnt(0)" if g == GF else None)
        ST()
        KC = S1 + 16
        k("v_lshlrev_b32 v12, 2, v3")
        k("s_lshl_b32 s42, s40, 7")
        k(f"s_add_u32 s42, s42, {SC_RS2}")
        k("v_add_u32 v12, s42, v12")
        k(f"ds_read_b32 v{KC+2}, v12")
        k(f"ds_read_b32 v{KC+6}, v12 offset:64")
        k("s_lshl_b32 s42, s40, 5")
        k("s_add_u32 s42, s42, s13")
        k("v_add_u32 v14, s42, v3")
        k("v_lshlrev_b32 v15, 1, v14")
        k(f"buffer_load_ushort v{T+8}, v15, s[32:35], 0 offen")
        k(f"buffer_load_ushort v{T+10}, v15, s[32:35], 0 offen offset:32")
        ext_step(A1, False)
        for n in range(2):
            b = KC + 4*n
            k(f"v_mul_f32 v{b+1}, {fhex(GC1)}, v{b+2}")
            k(f"v_mul_f32 v{b}, v{b+2}, v{b+2}")
            k(f"v_mul_f32 v{b}, v{b}, v{b+2}")
            k(f"v_mul_f32 v{b}, {fhex(GC2)}, v{b}")
            k(f"v_rcp_f32 v{b+2}, v{b+2}")
        k.nop(2)
        if not GINT:
            for m in range(nm):
                xs = [A1 + m*8 + 2*j for j in range(4)]
                ts = [T + 2*j for j in range(4)]
                bs = [KC + 4*(j >> 1) for j in range(4)]
                for x, t in zip(xs, ts): k(pk('mul', t, x, x))
                for t, b in zip(ts, bs): k(pk('fma', t, t, b, b, "op_sel:[0,0,1] op_sel_hi:[1,0,1]"))
                for x, t in zip(xs, ts): k(pk('mul', t, t, x))
                for t in ts: k(f"v_exp_f32 v{t}, v{t}"); k(f"v_exp_f32 v{t+1}, v{t+1}")
                for t, b in zip(ts, bs): k(pk('fma', t, t, b+2, b+2, "op_sel_hi:[1,0,0]"))
                for t in ts: k(f"v_rcp_f32 v{t}, v{t}"); k(f"v_rcp_f32 v{t+1}, v{t+1}")
                for x, t in zip(xs, ts): k(pk('mul', x, x, t))
            ex = []
        else:
            CN = [(T+4, T+5, T+6), (T+7, T+9, T+11)]
            for n in range(2):
                for j in range(3): k(f"v_mov_b32 v{CN[n][j]}, v{KC+4*n+j}")
            ex = []
            for m in range(nm):
                for n in range(2):
                    k2, k1, sd = CN[n]
                    xs = [A1 + (m*2+n)*4 + r for r in range(4)]
                    for step in range(7):
                        for r, x in enumerate(xs):
                            t = T + r
                            ex.append([f"v_mul_f32 v{t}, v{x}, v{x}", f"v_fma_f32 v{t}, v{t}, v{k2}, v{k1}", f"v_mul_f32 v{t}, v{t}, v{x}",
                                       f"v_exp_f32 v{t}, v{t}", f"v_fma_f32 v{t}, v{t}, v{sd}, v{sd}", f"v_rcp_f32 v{t}, v{t}",
                                       f"v_mul_f32 v{x}, v{x}, v{t}"][step])
        C.tr = False
        ST()
        R.bar()
        ST()
        for r in C.reads(0, 2, 0): k(r)
        k("s_waitcnt lgkmcnt(0)")
        if GINT:
            for i in range(12): C.st((2+i) % 4, A2, zero=(i == 0), extra=ex, per=(1, 1) if i % 2 else (1, 2))
            assert not ex, len(ex)
            loop(5, lambda: [C.st((2+i) % 4, A2) for i in range(4)])
        else:
            C.st(2, A2, zero=True)
            for i in range(3): C.st((3+i) % 4, A2)
            loop(7, lambda: [C.st((2+i) % 4, A2) for i in range(4)])
        ST()
        k("s_lshl_b32 s42, s11, 3")
        k("s_lshl_b32 s44, s40, 1")
        k("s_add_u32 s42, s42, s44")
        k("s_lshl_b32 s42, s42, 4")
        k("s_add_u32 s42, s42, s10")
        k("s_mul_i32 s42, s42, 4608")
        k("v_lshlrev_b32 v14, 6, v3")
        k("v_lshl_add_u32 v14, v4, 4, v14")
        k("v_add_u32 v14, s42, v14")
        k("v_lshlrev_b32 v15, 5, v3")
        k("v_lshl_add_u32 v15, v4, 3, v15")
        k("v_add_u32 v15, s42, v15")
        k("v_add_u32 v15, 4096, v15")
        k("s_waitcnt vmcnt(0)")
        k(f"v_lshlrev_b32 v{T+8}, 16, v{T+8}")
        k(f"v_lshlrev_b32 v{T+10}, 16, v{T+10}")
        k(f"s_mov_b32 s44, {16*4608}")
        k.nop(2)
        O = S0
        PB = {0: 0, 32: 1024, 80: 2048, 112: 3072}
        for gi, (ms, base) in enumerate(groups_of(cA.cls[ci], PAIR9)):
            for n in range(2):
                for mi, m in enumerate(ms):
                    a = (m*2+n)*4
                    for j in range(2): k(pk('add', A2+a+2*j, A2+a+2*j, T+8+2*n, None, "op_sel_hi:[1,0]"))
                    for j in range(2): k(pk('mul', A2+a+2*j, A2+a+2*j, A1+a+2*j))
                    for j in range(2): k(f"v_cvt_pk_bf16_f32 v{O+mi*2+j}, v{A2+a+2*j}, v{A2+a+2*j+1}")
                so = "s44" if n else "0"
                if len(ms) == 2: k(f"buffer_store_dwordx4 v[{O}:{O+3}], v14, s[28:31], {so} offen offset:{PB[base]} {SC}")
                else:            k(f"buffer_store_dwordx2 v[{O}:{O+1}], v15, s[28:31], {so} offen {SC}")
                O += 4
        if not DET: ST()
        k("s_waitcnt vmcnt(0)")
        R.bar()
        if not DET: ST()
        tiles5 = [[0, 1], [2, 3, 4]][ci]
        n5 = len(tiles5)
        ACC = 16; ACX = 28
        BANKS = [[48, 68], [88, 108]]
        grp = groups_of(tiles5, PAIR5)
        k("s_lshl_b32 s42, s40, 4")
        k("s_add_u32 s42, s42, s77")
        k("v_add_u32 v10, s42, v3")
        k("v_lshlrev_b32 v12, 1, v10")
        k("v_lshl_add_u32 v13, v4, 14, v12")
        k("v_lshl_add_u32 v12, v4, 15, v12")
        for gi, (ms, base) in enumerate(grp):
            for e in range(4*len(ms)):
                k(f"s_add_u32 s42, s76, {base+e}")
                k("s_lshl_b32 s42, s42, 12")
                k(f"buffer_load_ushort v{ACC+4*ms[0]+e}, v{12 if len(ms)==2 else 13}, s[20:23], s42 offen")
        k("s_and_b32 s42, s40, 1")
        k("s_lshl_b32 s42, s42, 6")
        k("v_xor_b32 v14, s42, v5")
        k(f"v_add_u32 v6, {tiles5[0]*2048}, v14")
        k(f"v_add_u32 v7, {6*P5S}, v6")
        k("s_lshl_b32 s42, s40, 11")
        k(f"s_add_u32 s42, s42, {Q5B}")
        k("v_add_u32 v8, s42, v14")
        k("s_xor_b32 s42, s40, 1")
        k("s_lshl_b32 s42, s42, 11")
        k(f"s_add_u32 s42, s42, {Q5B}")
        k("v_add_u32 v9, s42, v14")
        k(f"v_mul_u32_u24 v10, {D*2}, v10")
        k("s_lshl_b32 s42, s76, 1")
        k("v_add_u32 v10, s42, v10")
        k("v_lshl_add_u32 v11, v4, 3, v10")
        k("v_lshl_add_u32 v10, v4, 4, v10")
        k("v_mov_b32 v12, 0x7ffffff0")
        k("v_cmp_gt_u32 vcc, 2, v4")
        k("v_lshlrev_b32 v13, 4, v2")
        k("s_mul_i32 s42, s15, 3072")
        k("v_cndmask_b32 v11, v12, v11, vcc")
        k("v_add_u32 v12, s42, v13")
        k("s_xor_b32 s42, s15, 1")
        k("s_mul_i32 s42, s42, 3072")
        k("v_add_u32 v13, s42, v13")
        for r in range(n5*4): k(f"v_mov_b32 v{ACX+r}, 0")
        k("s_waitcnt vmcnt(0)")
        for r in range(n5*4): k(f"v_lshlrev_b32 v{ACC+r}, 16, v{ACC+r}")
        assert Q5N <= 8
        def rd5(b, mu):
            out = []
            for q in range(2):
                st = 2*mu + q
                S = BANKS[b][q]; ps = st % P5N; qs = st % Q5N
                out.append(f"ds_read_b128 v[{S}:{S+3}], v8 offset:{qs*Q5S}")
                out.append(f"ds_read_b128 v[{S+4}:{S+7}], v9 offset:{qs*Q5S}")
                for m in range(n5):
                    out.append(f"ds_read_b128 v[{S+8+4*m}:{S+11+4*m}], v{6 if ps < 6 else 7} offset:{(ps % 6)*P5S + m*2048}")
            return out
        def mf5(b):
            out = []
            for q in range(2):
                S = BANKS[b][q]
                for m in range(n5):
                    for x, A in enumerate((ACC, ACX)):
                        out.append(f"v_mfma_f32_16x16x32_bf16 v[{A+4*m}:{A+4*m+3}], v[{S+8+4*m}:{S+11+4*m}], v[{S+4*x}:{S+4*x+3}], v[{A+4*m}:{A+4*m+3}]")
            return out
        def mst(i):
            rs = rd5((i+1) & 1, i+1) if i < 17 else []; ms_ = mf5(i & 1)
            j = 0
            for m in ms_:
                k(m)
                for _ in range(2):
                    if j < len(rs): k(rs[j]); j += 1
            assert j == len(rs)
            if i < 16:
                k("s_waitcnt lgkmcnt(0)")
                R.bar()
            elif i == 16:
                k("s_waitcnt lgkmcnt(0)")
        R.bar()
        ST()
        for r in rd5(0, 0): k(r)
        k("s_waitcnt lgkmcnt(0)")
        R.bar()
        for i in range(18): mst(i)
        ST()
        k.nop(8)
        for m in range(n5): k(f"ds_write_b128 v12, v[{ACX+4*m}:{ACX+4*m+3}] offset:{1024*m}")
        k("s_waitcnt lgkmcnt(0)")
        k("s_barrier")
        for m in range(n5): k(f"ds_read_b128 v[{ACX+4*m}:{ACX+4*m+3}], v13 offset:{1024*m}")
        k("s_waitcnt lgkmcnt(0)")
        TT = 48
        for gi, (ms, base) in enumerate(grp):
            for mi, m in enumerate(ms):
                for pr in range(2):
                    a = ACC + 4*m + 2*pr
                    k(pk('add', a, a, ACX + 4*m + 2*pr))
                    k(f"v_cvt_pk_bf16_f32 v{TT+4*gi+2*mi+pr}, v{a}, v{a+1}")
            o = TT + 4*gi
            if len(ms) == 2: k(f"buffer_store_dwordx4 v[{o}:{o+3}], v10, s[80:83], 0 offen offset:{base*2}")
            else:            k(f"buffer_store_dwordx2 v[{o}:{o+1}], v11, s[80:83], 0 offen offset:{base*2}")
        ST.dump()
        k("s_endpgm")
        nbs[R.name] = R.nb
    compute(0)
    k(f"{c1}:")
    compute(1)

    def poll_flags(setup):
        k.srd(84, 6, HO_BYTES, HO_BASE)
        setup()
        k("v_and_b32 v12, 15, v2")
        k("v_lshlrev_b32 v12, 2, v12")
        k(f"s_mov_b32 s47, {SPIN}")
        pl = k.label('poll'); pd = k.label('pd')
        k(f"{pl}:")
        k(f"buffer_load_dword v13, v12, s[84:87], s45 offen {SC}")
        k("s_waitcnt vmcnt(0)")
        k("v_and_b32 v13, 1, v13")
        k("v_cmp_ne_u32 vcc, 0, v13")
        k("s_sub_u32 s47, s47, 1")
        k("s_cmp_eq_u32 s47, 0")
        k(f"s_cbranch_scc1 {pd}")
        k("s_nop 3")
        k(f"s_cbranch_vccz {pd}")
        k("s_sleep 1")
        k(f"s_branch {pl}")
        k(f"{pd}:")

    class Ld:
        def __init__(self, R, n, base, slotb, NS, V=16, step=128, flags='', rot=False):
            self.R, self.n, self.base, self.slotb, self.NS, self.V, self.step, self.flags, self.rot = R, n, base, slotb, NS, V, step, flags, rot
        def issue(self, slot):
            for j in range(self.n):
                k(f"s_mov_b32 m0, {self.base + slot*self.slotb + j*1024}")
                k("s_nop 0")
                k(f"buffer_load_dwordx4 v{self.V+j}, s[16:19], s44 offen {self.flags} lds")
            if getattr(self, 'mod9', False):
                k("s_add_u32 s46, s46, 1")
                k("s_cmp_eq_u32 s46, 9")
                k("s_cselect_b32 s46, 0, s46")
                k(f"s_mul_i32 s44, s46, {self.step}")
                k("s_add_u32 s44, s44, s45")
            elif getattr(self, 'tiled', False):
                k("s_add_u32 s46, s46, 1")
                k("s_and_b32 s46, s46, 31")
                k(f"s_mul_i32 s44, s46, {2*9216}")
                k("s_add_u32 s44, s44, s45")
            elif self.rot:
                k("s_add_u32 s46, s46, 128")
                k("s_and_b32 s46, s46, 4095")
                k("s_add_u32 s44, s45, s46")
            else:
                k(f"s_add_u32 s44, s44, {self.step}")
        def wait(self, stages):
            k(f"s_waitcnt vmcnt({min(stages*self.n, 63 - self.n)})")
        def prologue(self, slot0):
            NS = self.NS
            infl = min(NS-1, 63//self.n)
            for s in range(infl): self.issue((slot0+s) % NS)
            for s in range(infl, NS):
                self.wait(infl-1)
                self.issue((slot0+s) % NS)
        def steady(self, slot0, count):
            NS = self.NS
            nl = count//NS
            if nl >= 2:
                k(f"s_mov_b32 s43, {nl}")
                lp = k.label('lpl'); k(f"{lp}:")
                for s in range(NS):
                    self.wait(NS-2); self.R.bar(); self.issue((slot0+s) % NS)
                self.R.nb += (nl-1)*NS
                k("s_sub_u32 s43, s43, 1")
                k("s_cmp_lg_u32 s43, 0")
                k(f"s_cbranch_scc1 {lp}")
                rest = count - nl*NS
            else:
                rest = count
            for s in range(rest):
                self.wait(NS-2); self.R.bar(); self.issue((slot0+s) % NS)
        def tail(self):
            for r in range(self.NS):
                self.wait(max(self.NS-2-r, 0)); self.R.bar()

    k(f"{lP}:")
    k("s_setprio 3")
    R = Role(k, 'P')
    ld = Ld(R, 18, cA.P_BASE, cA.P_SLOT, 4)
    k(f"s_add_u32 s45, s12, {FH}")
    k(f"s_mul_i32 s45, s45, {D*2}")
    k("s_lshr_b32 s46, s10, 1")
    k("s_lshl_b32 s44, s46, 7")
    k("s_add_u32 s44, s44, s45")
    ld.mod9 = True
    STP = Stamper()
    STP()
    loader_voffs(k, 16, 18, PLAIN, D*2)
    k("s_waitcnt lgkmcnt(0)")
    STP()
    k.srd(16, 6, F*D*2, WS_WINT)
    ld.issue(0); STP(); ld.issue(1); STP()
    loader_voffs(k, 48, 18, PAIR9, D*2)
    ld.wait(1); STP()
    R.bar()
    STP()
    ld.issue(2)
    STP()
    for i in range(9):
        ld.wait(1); R.bar()
        if i == 6:
            k(f"s_mul_i32 s45, s12, {D*2}")
            k("s_lshl_b32 s44, s46, 7")
            k("s_add_u32 s44, s44, s45")
            ld.V = 48
        ld.issue((i+3) % 4)
    ld.wait(2); ld.issue(0)
    R.bar()
    ld.steady(1, 5)
    loader_voffs(k, 16, 18, PAIR9, 64, chunkmap=9216)
    ld.V = 16
    ld.tail()
    k.srd(16, 6, FH*L*2, WS_Z2T)
    k(f"s_mul_i32 s45, s10, {64*9216}")
    k("s_lshl_b32 s46, s11, 1")
    k(f"s_mul_i32 s44, s46, {2*9216}")
    k("s_add_u32 s44, s44, s45")
    ld.tiled = True; ld.mod9 = False
    ld.flags = LSC; ld.rot = True
    ld.issue(2); ld.issue(3)
    ld.wait(1)
    R.bar()
    ld.issue(0)
    ld.wait(1); R.bar(); ld.issue(1)
    ld.wait(1); R.bar(); ld.issue(2)
    ld.wait(1); R.bar(); ld.issue(3)
    ld.wait(1); R.bar(); ld.issue(0); ld.issue(1)
    ld.steady(2, 24)
    loader_voffs(k, 48, 9, PAIR5, FH*2)
    ld.tail()
    k.srd(16, 6, D*FH*2, WS_WOUTT)
    k(f"s_mul_i32 s44, s76, {FH*2}")
    pis = 0
    def ip(n):
        nonlocal pis
        for _ in range(n):
            if pis >= 36: return
            if pis >= 6: k("s_waitcnt vmcnt(54)")
            for j in range(9):
                k(f"s_mov_b32 m0, {(pis % P5N)*P5S + j*1024}")
                k("s_nop 0")
                k(f"buffer_load_dwordx4 v{48+j}, s[16:19], s44 offen lds")
            if not FAKEP: k("s_add_u32 s44, s44, 128")
            pis += 1
    def wp(last_needed):
        k(f"s_waitcnt vmcnt({min(max(pis-1-last_needed, 0)*9, 63)})")
    ip(4)
    R.bar()
    ip(P5N-4)
    wp(1)
    R.bar()
    for i in range(17):
        wp(2*i+3)
        R.bar()
        rem = 36 - P5N
        target = P5N + min(rem, -(-rem*(i+1)//PSPREAD))
        target = min(target, P5N + 2*(i+1))
        ip(target - pis)
    assert pis == 36
    STP.dump()
    k("s_endpgm")
    nbs['P'] = R.nb

    k(f"{lQ}:")
    k("s_setprio 3")
    R = Role(k, 'Q')
    ld = Ld(R, 16, cA.Q_BASE, cA.Q_SLOT, 4, step=64*4096)
    k("s_lshl_b32 s45, s13, 1")
    k("s_lshr_b32 s46, s10, 1")
    k("s_lshl_b32 s44, s46, 18")
    k("s_add_u32 s44, s44, s45")
    ld.mod9 = True
    k("v_lshrrev_b32 v3, 4, v2")
    k("v_and_b32 v4, 15, v2")
    k("v_lshlrev_b32 v5, 1, v3")
    k("v_xor_b32 v4, v4, v5")
    k("v_lshlrev_b32 v4, 4, v4")
    k("v_lshl_add_u32 v4, v3, 12, v4")
    k("v_xor_b32 v5, 128, v4")
    for j in range(16):
        k(f"v_add_u32 v{16+j}, {4*j*4096}, v{5 if (j>>1)&1 else 4}")
    k("s_waitcnt lgkmcnt(0)")
    k.srd(16, 6, D*L*2, WS_HTM)
    ld.issue(0); ld.issue(1)
    loader_voffs(k, 48, 16, PLAIN, 4096)
    ld.wait(1)
    R.bar()
    ld.issue(2)
    for i in range(9):
        ld.wait(1); R.bar()
        ld.issue((i+3) % 4)
    ld.wait(2); ld.issue(0)
    k("v_lshrrev_b32 v3, 3, v2")
    k("v_and_b32 v4, 7, v2")
    k("v_lshrrev_b32 v5, 4, v2")
    k("v_xor_b32 v4, v4, v5")
    for par in range(2):
        k(f"v_xor_b32 v6, {4*par}, v4")
        k(f"v_add_u32 v7, {8*par}, v3")
        k("v_lshrrev_b32 v8, 2, v6")
        k("v_lshlrev_b32 v8, 10, v8")
        k("v_lshl_add_u32 v8, v7, 6, v8")
        k("v_and_b32 v9, 3, v6")
        k(f"v_lshl_add_u32 v{80+par}, v9, 4, v8")
        k("v_lshrrev_b32 v8, 1, v6")
        k("v_mul_u32_u24 v8, 4608, v8")
        k("v_lshl_add_u32 v8, v7, 5, v8")
        k("v_and_b32 v9, 1, v6")
        k("v_lshl_add_u32 v8, v9, 4, v8")
        k(f"v_add_u32 v{82+par}, 4096, v8")
    R.bar()
    ld.steady(1, 5)
    k.srd(16, 72, L*L*2)
    k("s_lshl_b32 s45, s13, 12")
    k("s_lshl_b32 s46, s11, 8")
    k("s_add_u32 s44, s45, s46")
    ld.V = 48; ld.rot = True; ld.mod9 = False
    ld.steady(2, 3)
    R.bar(); ld.wait(2); ld.issue(1)
    R.bar()
    ld.steady(2, 28)
    ld.tail()
    k("s_lshr_b32 s60, s77, 4")
    k(f"s_mul_i32 s60, s60, {16*4608}")
    for j in range(1, 4): k(f"s_add_u32 s{60+j}, s60, {j*16*4608}")
    for j in range(4):
        k(f"s_add_u32 s{56+j}, s10, {j}" if ROT3 else f"s_mov_b32 s{56+j}, {j}")
        k(f"s_and_b32 s{56+j}, s{56+j}, 3")
        k(f"s_mul_i32 s{56+j}, s{56+j}, {4*4608}")
    R.bar()
    poll_flags(lambda: (k("s_and_b32 s45, s77, 0xffffff80"), k(f"s_add_u32 s45, s45, {HO_ZGF}")))
    k.srd(16, 6, L*FH*2, WS_ZG)
    def iq(mu):
        for hf in range(2):
            st = 2*mu + hf
            ph = st % 9
            cst = ((2*ph) >> 2)*4608 + ((2*ph) & 3)*1024 if ph < 8 else 0
            k(f"s_add_u32 s43, s{56 + st//9}, {cst}" if not FAKEQ else f"s_mov_b32 s43, {(st%2)*2048}")
            for j in range(8):
                if j % 2 == 0: k(f"s_add_u32 s44, s{60 + (j>>1)}, s43")
                k(f"s_mov_b32 m0, {Q5B + (st % Q5N)*Q5S + j*1024}")
                k("s_nop 0")
                k(f"buffer_load_dwordx4 v{(80 if ph < 8 else 82) + (j&1)}, s[16:19], s44 offen {LSC} lds")
    NQ = Q5N//2
    iq(0); iq(1)
    k("s_waitcnt vmcnt(16)")
    R.bar()
    issued = 2
    def top_up(limit):
        nonlocal issued
        while issued < min(limit, 18):
            k("s_waitcnt vmcnt(47)")
            iq(issued); issued += 1
    top_up(min(NQ, 4))
    for i in range(17):
        k(f"s_waitcnt vmcnt({min((issued-1-(i+1))*16, 63)})")
        R.bar()
        top_up(min(i+1+NQ, issued+2))
    k("s_endpgm")
    nbs['Q'] = R.nb

    k(f"{lX}:")
    k("s_setprio 3")
    R = Role(k, 'X')
    k("v_and_b32 v3, 15, v2")
    k("v_lshrrev_b32 v4, 4, v2")
    k("v_add_u32 v5, s12, v2")
    k("v_lshlrev_b32 v5, 2, v5")
    k("v_lshrrev_b32 v12, 2, v3")
    k("v_and_b32 v13, 3, v3")
    k("v_and_b32 v14, 1, v4")
    k("v_lshl_or_b32 v14, v14, 2, v12")
    k("v_lshlrev_b32 v14, 1, v14")
    k("v_lshrrev_b32 v15, 1, v13")
    k("s_and_b32 s43, s10, 1")
    k("s_lshl_b32 s43, s43, 3")
    k("v_add_u32 v15, s43, v15")
    k("v_xor_b32 v15, v15, v14")
    k("v_lshlrev_b32 v15, 4, v15")
    k("v_and_b32 v13, 1, v13")
    k("v_lshl_add_u32 v15, v13, 3, v15")
    k("v_lshl_add_u32 v14, v4, 3, v12")
    k("v_lshl_add_u32 v8, v14, 8, v15")
    k(f"v_add_u32 v8, {cA.Q_BASE}, v8")
    for st in range(1, 4): k(f"v_xor_b32 v{8+st}, {32*st}, v8")
    k("v_cmp_eq_u32 s[62:63], v12, v4")
    make_masks()
    for r in range(4): k(f"v_mov_b32 v{36+r}, 0x3f803f80")
    k("v_lshlrev_b32 v14, 3, v3")
    k("s_waitcnt lgkmcnt(0)")
    k.srd(36, 6, 3*F*4, WS_CWP)
    k.srd(84, 6, HO_BYTES, HO_BASE)
    HX = 40; HY = 104; GA = 72
    def rd_half(H, slot):
        for st in range(4):
            for ks in range(2):
                for x in range(2):
                    r = H + 8*st + 4*ks + 2*x
                    k(f"ds_read_b64_tr_b16 v[{r}:{r+1}], v{8+st} offset:{slot*cA.Q_SLOT + (32*ks+4*x)*256}")
    def stat_half(H, plane_setup):
        for ks in range(2):
            for st in range(4):
                f_ = H + 8*st + 4*ks; a = GA + 8*st
                c0 = "0" if ks == 0 else f"v[{a}:{a+3}]"
                c1 = "0" if ks == 0 else f"v[{a+4}:{a+7}]"
                k(f"v_mfma_f32_16x16x32_bf16 v[{a}:{a+3}], v[36:39], v[{f_}:{f_+3}], {c0}")
                k(f"v_mfma_f32_16x16x32_bf16 v[{a+4}:{a+7}], v[{f_}:{f_+3}], v[{f_}:{f_+3}], {c1}")
        plane_setup()
        k("s_lshl_b32 s42, s42, 14")
        k("s_and_b32 s43, s10, 1")
        k("s_lshl_b32 s43, s43, 6")
        k("s_add_u32 s43, s43, s13")
        k("s_lshl_b32 s43, s43, 3")
        k("s_add_u32 s42, s42, s43")
        k(f"s_add_u32 s42, s42, {HO_LN2}")
        k.nop(2)
        m0, m1 = masks[0], masks[1]
        for st in range(4):
            a = GA + 8*st
            k(f"v_cndmask_b32 v{a+4}, v{a+4}, v{a+5}, s[{m0}:{m0+1}]")
            k(f"v_cndmask_b32 v{a+6}, v{a+6}, v{a+7}, s[{m0}:{m0+1}]")
            k(f"v_cndmask_b32 v{a+1}, v{a+4}, v{a+6}, s[{m1}:{m1+1}]")
            k(f"v_and_b32 v{a}, 0xfffffffe, v{a}")
            k(f"v_and_b32 v{a+1}, 0xfffffffe, v{a+1}")
        k("s_mov_b64 exec, s[62:63]")
        for st in range(4):
            a = GA + 8*st
            k(f"buffer_store_dwordx2 v[{a}:{a+1}], v14, s[84:87], s42 offen offset:{128*st} {SC}")
        k("s_mov_b64 exec, -1")
    R.bar()
    rd_half(HX, 0)
    for a in range(2):
        for p in range(3):
            k(f"s_mov_b32 s42, {(p*F + a*FH)*4}")
            for q in range(3):
                k(f"buffer_load_dword v{16+(a*3+p)*3+q}, v5, s[36:39], s42 offen offset:{256*q}")
    k("v_lshlrev_b32 v6, 2, v2")
    k(f"v_add_u32 v6, {SC_CW1}, v6")
    k("s_waitcnt lgkmcnt(0)")
    R.bar()
    sk1 = k.label('sk'); sk2 = k.label('sk')
    k("s_cmp_lt_u32 s10, 14")
    k(f"s_cbranch_scc1 {sk1}")
    rd_half(HY, 1)
    k(f"{sk1}:")
    stat_half(HX, lambda: k("s_lshr_b32 s42, s10, 1"))
    k("s_waitcnt lgkmcnt(0)")
    R.bar()
    k("s_cmp_lt_u32 s10, 14")
    k(f"s_cbranch_scc1 {sk2}")
    stat_half(HY, lambda: k("s_mov_b32 s42, 8"))
    k(f"{sk2}:")
    R.bar(2)
    def ln_finish(S, Q, n, mrs):
        k(f"v_mul_f32 v{S}, {fhex(1.0/n)}, v{S}")
        k(f"v_mul_f32 v{Q}, {fhex(1.0/n)}, v{Q}")
        k(f"v_fma_f32 v{Q}, -v{S}, v{S}, v{Q}")
        k(f"v_max_f32 v{Q}, 0, v{Q}")
        rbf(k, S, S); rbf(k, Q, Q)
        k(f"v_add_f32 v{Q}, {fhex(1e-5)}, v{Q}")
        rbf(k, Q, Q)
        k(f"v_sqrt_f32 v{Q}, v{Q}")
        k.nop(1)
        rbf(k, Q, Q)
        k(f"v_rcp_f32 v{Q}, v{Q}")
        k.nop(1)
        if mrs: k(f"v_mul_f32 v{S}, v{S}, v{Q}")
    R.bar()
    k("s_waitcnt vmcnt(0)")
    for a in range(2):
        for q in range(3):
            r = 16 + a*9 + q
            k(f"v_add_f32 v{r}, v{r}, v{r+3}")
            k(f"v_add_f32 v{r}, v{r}, v{r+6}")
            k(f"v_cvt_pk_bf16_f32 v7, v{r}, v{r}")
            k("v_lshlrev_b32 v7, 16, v7")
            k(f"v_sub_f32 v7, v{r}, v7")
            k(f"v_cvt_pk_bf16_f32 v{r}, v{r}, v7")
            k(f"ds_write_b32 v6, v{r} offset:{a*768 + 256*q}")
    def poll_sum(nbar, issue, base, nplanes, dst):
        k(f"s_mov_b32 s47, {SPIN}")
        pl = k.label('poll'); pd = k.label('pd'); pc = k.label('pc')
        issue()
        R.bar(nbar)
        k(f"s_branch {pc}")
        k(f"{pl}:")
        k("s_sleep 1")
        issue()
        k(f"{pc}:")
        k("s_waitcnt vmcnt(0)")
        for j in range(4): k(f"v_add_f32 v{dst+j}, v{base+j}, v{base+4+j}")
        for p in range(2, nplanes):
            for j in range(4): k(f"v_add_f32 v{dst+j}, v{dst+j}, v{base+4*p+j}")
        k(f"v_add_f32 v12, v{dst}, v{dst+1}")
        k(f"v_add_f32 v13, v{dst+2}, v{dst+3}")
        k("v_cmp_u_f32 vcc, v12, v13")
        k("s_nop 4")
        k(f"s_cbranch_vccz {pd}")
        regs = list(range(base, base+4*nplanes))
        k(f"v_or_b32 v13, v{regs[0]}, v{regs[1]}")
        rest = regs[2:]
        while rest:
            k(f"v_or3_b32 v13, v13, v{rest[0]}, v{rest[1]}"); rest = rest[2:]
        k("v_and_b32 v13, 1, v13")
        k("v_cmp_ne_u32 vcc, 0, v13")
        k("s_sub_u32 s47, s47, 1")
        k("s_cmp_eq_u32 s47, 0")
        k(f"s_cbranch_scc1 {pd}")
        k("s_nop 3")
        k(f"s_cbranch_vccnz {pl}")
        k(f"{pd}:")
    R.bar(1)
    k("v_lshlrev_b32 v5, 4, v2")
    k("s_lshl_b32 s42, s13, 3")
    k(f"s_add_u32 s42, s42, {HO_LN2}")
    def iss2():
        for p in range(9):
            k(f"s_add_u32 s43, s42, {p << 14}")
            k(f"buffer_load_dwordx4 v[{40+4*p}:{43+4*p}], v5, s[84:87], s43 offen {SC}")
    poll_sum(1, iss2, 40, 9, 24)
    R.bar()
    ln_finish(24, 25, D, False)
    ln_finish(26, 27, D, False)
    k("v_cvt_pk_bf16_f32 v20, -v24, -v24")
    k("v_cvt_pk_bf16_f32 v21, -v26, -v26")
    k("v_mov_b32 v22, v25")
    k("v_mov_b32 v23, v27")
    k("v_lshlrev_b32 v6, 3, v2")
    k(f"v_add_u32 v6, {SC_RS2}, v6")
    k("ds_write_b64 v6, v[22:23]")
    k("ds_write_b64 v6, v[20:21] offset:512")
    k("s_waitcnt lgkmcnt(0)")
    R.bar()
    if PF:
        k.srd(36, 72, L*L*2)
        k("s_lshl_b32 s42, s2, 15")
        for j in range(32):
            r = 96 + 4*(j % 16)
            k(f"buffer_load_dwordx4 v[{r}:{r+3}], v5, s[36:39], s42 offen")
            k("s_add_u32 s42, s42, 1024")
    k(f"v_add_u32 v7, {SC_P3}, v5")
    k("s_lshl_b32 s42, s13, 3")
    k("s_lshl_b32 s43, s10, 14")
    k("s_add_u32 s43, s43, s42")
    R.bar()
    k("ds_read_b128 v[16:19], v7")
    k("ds_read_b128 v[20:23], v7 offset:1024")
    k("s_waitcnt lgkmcnt(0)")
    for j in range(4):
        k(f"v_add_f32 v{16+j}, v{16+j}, v{20+j}")
        k(f"v_and_b32 v{16+j}, 0xfffffffe, v{16+j}")
    k(f"buffer_store_dwordx4 v[16:19], v5, s[84:87], s43 offen {SC}")
    R.bar(NA-2)
    def iss():
        for p in range(16):
            k(f"s_add_u32 s43, s42, {p << 14}")
            k(f"buffer_load_dwordx4 v[{32+4*p}:{35+4*p}], v5, s[84:87], s43 offen {SC}")
    poll_sum(1, iss, 32, 16, 24)
    ln_finish(24, 25, FH, True)
    ln_finish(26, 27, FH, True)
    k("v_mov_b32 v16, v25"); k("v_mov_b32 v17, v27"); k("v_mov_b32 v18, v24"); k("v_mov_b32 v19, v26")
    k("v_lshlrev_b32 v6, 3, v2")
    k(f"v_add_u32 v6, {SC_RS3}, v6")
    k("ds_write_b64 v6, v[16:17]")
    k("ds_write_b64 v6, v[18:19] offset:512")
    k("s_waitcnt lgkmcnt(0)")
    k("v_mov_b32 v16, 0")
    k("v_mov_b32 v5, 0")
    k("s_lshl_b32 s42, s10, 7")
    k("s_lshl_b32 s43, s11, 2")
    k("s_add_u32 s42, s42, s43")
    k(f"s_add_u32 s42, s42, {HO_Z2F}")
    R.bar(GF + 1 - (8+NA))
    k("s_mov_b64 exec, 1")
    k(f"buffer_store_dword v16, v5, s[84:87], s42 offen {SC}")
    k("s_mov_b64 exec, -1")
    R.bar(17 - GF)
    poll_flags(lambda: (k("s_lshl_b32 s45, s10, 7"), k(f"s_add_u32 s45, s45, {HO_Z2F}")))
    R.bar()
    k("s_mov_b32 s43, 7")
    lp = k.label('lp'); k(f"{lp}:")
    R.bar(4); R.nb += 24
    k("s_sub_u32 s43, s43, 1")
    k("s_cmp_lg_u32 s43, 0")
    k(f"s_cbranch_scc1 {lp}")
    if WARM2:
        k.srd(36, 6, D*FH*2, WS_WOUTT)
        k("v_lshlrev_b32 v6, 7, v2")
        k("s_lshr_b32 s42, s2, 3")
        k("s_mul_i32 s42, s42, 82944")
    for b in range(4):
        if WARM2:
            for j in range(3 if b < 3 else 2):
                k(f"buffer_load_dword v{20+3*b+j}, v6, s[36:39], s42 offen")
                k("s_add_u32 s42, s42, 8192")
        R.bar()
    k("s_lshl_b32 s42, s11, 7")
    k("s_lshl_b32 s43, s10, 2")
    k("s_add_u32 s42, s42, s43")
    k(f"s_add_u32 s42, s42, {HO_ZGF}")
    k("s_mov_b64 exec, 1")
    R.bar()
    k(f"buffer_store_dword v16, v5, s[84:87], s42 offen {SC}")
    if WARMP:
        k("s_mov_b64 exec, -1")
        k.srd(36, 6, D*FH*2, WS_WOUTT)
        k("v_lshrrev_b32 v6, 3, v2")
        k("v_and_b32 v7, 7, v2")
        k("v_min_u32 v7, 5, v7")
        k(f"v_mul_u32_u24 v6, {FH*2}, v6")
        k("v_lshl_add_u32 v6, v7, 7, v6")
        k("s_and_b32 s42, s11, 7")
        k("s_mul_i32 s42, s42, 576")
        k("s_and_b32 s42, s42, 0xffffff80")
        k(f"s_mul_i32 s43, s76, {FH*2}")
        k("s_add_u32 s42, s42, s43")
        for j in range(9):
            k(f"buffer_load_dword v{20+j}, v6, s[36:39], s42 offen")
            k(f"s_add_u32 s42, s42, {8*FH*2}")
    k("s_endpgm")
    nbs['X'] = R.nb
    assert nbs['c0'] == nbs['c1'] == nbs['P'] == nbs['Q'] == nbs['X'] + 18, nbs
    k(f"{done}:")
    k("s_endpgm")
    return k, LDS
```

```python
import sys, math
sys.path.insert(0, 'work')
from gcore import *
import gen_v0 as v0
from gen_a import cexp, INV2PI, CP, UB, UP, YP
from gen_ka import strip_transpose
rbf = v0.rbf
def cmul(k, dr, di, ar, ai, br, bi):
    assert di == dr+1 and ai == ar+1 and bi == br+1 and dr % 2 == 0 and ar % 2 == 0 and br % 2 == 0
    k(f"v_pk_mul_f32 v[{dr}:{di}], v[{ar}:{ai}], v[{br}:{bi}] op_sel:[0,0] op_sel_hi:[0,1]")
    k(f"v_pk_fma_f32 v[{dr}:{di}], v[{ar}:{ai}], v[{br}:{bi}], v[{dr}:{di}] op_sel:[1,1,0] op_sel_hi:[1,0,1] neg_lo:[0,1,0]")
WS_UX = 64*MB
UXP = 8448
WS_HT2 = 72*MB
WS_KR = 80*MB
KR_PITCH = 4224
KPERM = False
KPF = False
CPF = 0
WT = ''
WTH = ''
CONVWW = False
CONVPF = False
CPF_BYTES = 98304

def emit_R(k, idreg):
    RP = 1184
    k("s_setprio 3")
    k(f"s_and_b32 s13, s{idreg}, 7")
    k("s_lshl_b32 s13, s13, 4")
    k(f"s_lshr_b32 s3, s{idreg}, 3")
    k("s_add_u32 s13, s13, s3")
    k("s_lshl_b32 s3, s13, 4")
    k("v_lshrrev_b32 v1, 4, v0")
    k("v_add_u32 v5, s3, v1")
    k("v_and_b32 v2, 15, v0")
    k(f"v_mul_u32_u24 v3, {D*2}, v5")
    k("v_lshl_add_u32 v3, v2, 3, v3")
    k("s_waitcnt lgkmcnt(0)")
    k.lines.append("    ;@ST")
    k.srd(32, 16, L*D*2)
    for q in range(9):
        k(f"buffer_load_dwordx2 v[{8+2*q}:{9+2*q}], v3, s[32:35], 0 offen offset:{128*q}")
    k.srd(36, 6, 128*D*64, WS_UX)
    k(f"v_mul_u32_u24 v66, {RP}, v1")
    k("v_lshl_add_u32 v66, v2, 3, v66")
    X = 30
    k("v_mov_b32 v4, 0")
    k("v_mov_b32 v7, 0")
    for q in range(9):
        k(f"s_waitcnt vmcnt({8-q})")
        k(f"ds_write_b64 v66, v[{8+2*q}:{9+2*q}] offset:{16*RP + 128*q}")
        for j in range(2):
            r = 8 + 2*q + j
            k(f"v_lshlrev_b32 v{X+4*q+2*j}, 16, v{r}")
            k(f"v_and_b32 v{X+4*q+2*j+1}, 0xffff0000, v{r}")
            k(f"v_add_f32 v4, v4, v{X+4*q+2*j}")
            k(f"v_add_f32 v7, v7, v{X+4*q+2*j+1}")
    k("v_add_f32 v4, v4, v7")
    k.lines.append("    ;@ST")
    def red16(v):
        for ctl in ["quad_perm:[1,0,3,2]", "quad_perm:[2,3,0,1]", "row_half_mirror", "row_mirror"]:
            k.nop(2)
            k(f"v_add_f32_dpp v{v}, v{v}, v{v} {ctl} row_mask:0xf bank_mask:0xf")
    red16(4)
    k(f"v_mul_f32 v4, {fhex(1.0/D)}, v4")
    k("v_mov_b32 v6, 0")
    k("v_mov_b32 v7, 0")
    for i in range(36):
        k(f"v_sub_f32 v{68+(i&3)}, v{X+i}, v4")
        k(f"v_fmac_f32 v{6 + (i&1)}, v{68+(i&3)}, v{68+(i&3)}")
    k("v_add_f32 v6, v6, v7")
    red16(6)
    k(f"v_mul_f32 v6, {fhex(1.0/D)}, v6")
    rbf(k, 4, 4); rbf(k, 6, 6)
    k(f"v_add_f32 v6, {fhex(1e-5)}, v6")
    rbf(k, 6, 6)
    k("v_sqrt_f32 v6, v6")
    k.nop(1)
    rbf(k, 6, 6)
    k("v_rcp_f32 v5, v6")
    k.lines.append("    ;@ST")
    for i in range(36): k(f"v_sub_f32 v{X+i}, v{X+i}, v4")
    for j in range(18): k(f"v_cvt_pk_bf16_f32 v{8+j}, v{X+2*j}, v{X+2*j+1}")
    for j in range(18):
        k(f"v_lshlrev_b32 v{X+2*j}, 16, v{8+j}")
        k(f"v_and_b32 v{X+2*j+1}, 0xffff0000, v{8+j}")
    for i in range(36): k(f"v_mul_f32 v{X+i}, v{X+i}, v5")
    for j in range(18): k(f"v_cvt_pk_bf16_f32 v{8+j}, v{X+2*j}, v{X+2*j+1}")
    for q in range(9):
        k(f"ds_write_b64 v66, v[{8+2*q}:{9+2*q}] offset:{128*q}")
    k("v_and_b32 v2, 63, v0")
    k("v_lshrrev_b32 v1, 6, v0")
    k("v_and_b32 v3, 15, v2")
    k("v_lshrrev_b32 v4, 4, v2")
    k("v_lshrrev_b32 v5, 2, v3")
    k("v_lshl_add_u32 v5, v4, 3, v5")
    k(f"v_mul_u32_u24 v5, {RP}, v5")
    k("v_and_b32 v6, 3, v3")
    k("v_lshl_add_u32 v5, v6, 3, v5")
    k(f"v_mul_u32_u24 v6, {9*32}, v1")
    k("v_add_u32 v5, v5, v6")
    k(f"v_mul_u32_u24 v6, {9*16}, v1")
    k("v_add_u32 v6, v6, v3")
    k("v_lshlrev_b32 v6, 6, v6")
    k("v_lshl_add_u32 v6, v4, 4, v6")
    k(f"s_mul_i32 s3, s13, {D*64}")
    k("s_waitcnt lgkmcnt(0)")
    k.lines.append("    ;@ST")
    k("s_barrier")
    k.lines.append("    ;@ST")
    for g in range(9):
        for x in range(2):
            k(f"ds_read_b64_tr_b16 v[{8+4*g+2*x}:{9+4*g+2*x}], v5 offset:{32*g + 4*x*RP}")
    for g in range(9):
        k(f"s_waitcnt lgkmcnt({min(16-2*g, 15)})")
        k(f"buffer_store_dwordx4 v[{8+4*g}:{11+4*g}], v6, s[36:39], s3 offen {WT}")
        k(f"s_add_u32 s3, s3, 1024")
    k("s_endpgm")
    k.lines.append("    ;@ST0")

def emit_kgen(k, done):
    lX = k.label('xw'); lJ = k.label('join'); lPC = k.label('pc')
    XP = 528
    XA, YB = 0, 21*XP
    TB = YB + 32*XP
    k("v_and_b32 v1, 127, v0")
    k("v_lshlrev_b32 v2, 1, v1")
    k("s_lshl_b32 s3, s14, 8")
    k("v_add_u32 v2, s3, v2")
    k("s_lshl_b32 s3, s14, 1")
    k("v_mov_b32 v3, s3")
    k("v_lshrrev_b32 v4, 6, v0")
    k("s_waitcnt lgkmcnt(0)")
    k.lines.append("    ;@ST")
    k("v_readfirstlane_b32 s15, v4")
    k.srd(56, 30, D*2)
    k("buffer_load_ushort v16, v3, s[56:59], 0 offen")
    for i in range(6):
        k.srd(32+4*i, 18+2*i, D*N*2)
        k(f"buffer_load_ushort v{10+i}, v2, s[{32+4*i}:{35+4*i}], 0 offen")
    G = 56
    k("s_getpc_b64 s[60:61]")
    k(f"{lPC}:")
    k(f"s_add_u32 s60, s60, gtab_{k.name}-{lPC}")
    k("s_addc_u32 s61, s61, 0")
    k("s_mov_b32 s62, 4096")
    k("s_mov_b32 s63, 0x00020000")
    k("v_lshlrev_b32 v5, 4, v0")
    k(f"buffer_load_dwordx4 v[{G}:{G+3}], v5, s[60:63], 0 offen")
    k("v_and_b32 v64, 15, v0")
    k("v_bfe_u32 v65, v0, 4, 2")
    k(f"v_mul_u32_u24 v4, {XP}, v64")
    k("v_lshl_add_u32 v4, v65, 4, v4")
    k("s_lshr_b32 s3, s15, 1")
    k(f"s_mul_i32 s3, s3, {16*XP}")
    k("v_add_u32 v66, s3, v4")
    k("s_and_b32 s10, s15, 1")
    k(f"s_mul_i32 s11, s10, {16*XP}")
    k(f"s_add_u32 s11, s11, {YB}")
    k("v_add_u32 v67, s11, v4")
    k("s_lshr_b32 s3, s15, 1")
    k("s_lshl_b32 s3, s3, 4")
    k("v_add_u32 v7, s3, v64")
    k("v_mov_b32 v68, v7")
    for sh, sub in ((1, 8), (2, 32), (3, 96)):
        k(f"v_lshlrev_b32 v8, {sh}, v7")
        k(f"v_subrev_u32 v8, {sub}, v8")
        k("v_max_i32 v68, v68, v8")
    k("v_min_i32 v68, 71, v68")
    k("v_lshlrev_b32 v68, 6, v68")
    k("v_lshl_add_u32 v68, v65, 3, v68")
    k("s_lshl_b32 s10, s10, 5")
    k("v_add_u32 v68, s10, v68")
    k("v_lshlrev_b32 v9, 2, v1")
    Lhi = struct.unpack('<f', struct.pack('<f', LOG2E))[0]
    Llo = LOG2E - Lhi
    k(f"s_mov_b32 s8, {fhex(Lhi)}")
    k(f"s_mov_b32 s9, {fhex(Llo)}")
    k("s_waitcnt vmcnt(5)")
    k.lines.append("    ;@ST")
    for r in (16, 10, 11): k(f"v_lshlrev_b32 v{r}, 16, v{r}")
    k("v_mul_f32 v17, s8, v16")
    k("v_fma_f32 v18, v16, s8, -v17")
    k("v_fma_f32 v18, v16, s9, v18")
    k("v_exp_f32 v17, v17")
    k(f"v_mul_f32 v18, {fhex(math.log(2.0))}, v18")
    k("v_fma_f32 v17, v17, v18, v17")
    rbf(k, 17, 17)
    k("v_mul_f32 v20, v17, v10")
    k("v_mul_f32 v21, v17, v11")
    k(f"v_mul_f32 v20, {fhex(LOG2E)}, v20")
    k(f"v_mul_f32 v21, {fhex(INV2PI)}, v21")
    if KPF:
        lpf = k.label('pf'); lp2 = k.label('pf2')
        k("s_waitcnt vmcnt(0) lgkmcnt(0)")
        k("v_lshlrev_b32 v6, 7, v0")
        k("s_cmp_ge_u32 s14, 256")
        k(f"s_cbranch_scc1 {lp2}")
        k.srd(32, 66, L*L*2)
        k("s_lshl_b32 s3, s14, 15")
        k("buffer_load_dword v70, v6, s[32:35], s3 offen")
        k(f"s_branch {lpf}")
        k(f"{lp2}:")
        k.srd(32, 70, FH*D*2)
        k("s_sub_u32 s3, s14, 256")
        k("s_lshl_b32 s3, s3, 15")
        k("buffer_load_dword v70, v6, s[32:35], s3 offen")
        k(f"{lpf}:")
    k("s_cmp_ge_u32 s15, 2")
    k(f"s_cbranch_scc1 {lX}")
    cexp(k, 22, 23, 20, 21, 8, 24)
    k("v_mov_b32 v30, 0x00003f80")
    k(f"ds_write_b32 v9, v30 offset:{YB}")
    k("v_cvt_pk_bf16_f32 v31, v22, v23")
    k(f"ds_write_b32 v9, v31 offset:{YB+XP}")
    cmul(k, 24, 25, 22, 23, 22, 23)
    k("v_cvt_pk_bf16_f32 v30, v24, v25")
    k(f"ds_write_b32 v9, v30 offset:{YB+2*XP}")
    cur = {1: (22, 23), 0: (24, 25)}
    free = [(26, 27), (28, 29), (32, 33), (34, 35)]
    fi = 0
    for b in range(3, 32):
        a = cur[b & 1]; d_ = free[fi % 4]; fi += 1
        cmul(k, d_[0], d_[1], a[0], a[1], 24, 25)
        k(f"v_cvt_pk_bf16_f32 v{30 + (b&1)}, v{d_[0]}, v{d_[1]}")
        k(f"ds_write_b32 v9, v{30 + (b&1)} offset:{YB+b*XP}")
        cur[b & 1] = d_
    k(f"s_branch {lJ}")
    k(f"{lX}:")
    cexp(k, 22, 23, 20, 21, 1, 40)
    cexp(k, 42, 43, 20, 21, 256, 40)
    cexp(k, 44, 45, 20, 21, 512, 40)
    cexp(k, 46, 47, 20, 21, 1024, 40)
    if not KPF: k("s_waitcnt vmcnt(0)")
    for r in (12, 13, 14, 15): k(f"v_lshlrev_b32 v{r}, 16, v{r}")
    k("v_mul_f32 v12, v17, v12")
    k("v_mul_f32 v13, v17, v13")
    X0 = 24
    cmul(k, X0, X0+1, 14, 15, 12, 13)
    def putX(row, r, i_):
        k(f"v_cvt_pk_bf16_f32 v{40 + (row&1)}, v{r}, -v{i_}")
        k(f"ds_write_b32 v9, v{40 + (row&1)} offset:{XA+row*XP}")
    putX(0, X0, X0+1)
    for h in range(1, 8):
        cmul(k, X0+2*h, X0+2*h+1, X0+2*h-2, X0+2*h-1, 22, 23)
        putX(h, X0+2*h, X0+2*h+1)
    for i, h in enumerate((0, 2, 4, 6)):
        cmul(k, 48, 49, X0+2*h, X0+2*h+1, 42, 43); putX(8+i, 48, 49)
    for i, h in enumerate((0, 4)):
        cmul(k, 48, 49, X0+2*h, X0+2*h+1, 44, 45); putX(12+i, 48, 49)
        cmul(k, 50, 51, 48, 49, 42, 43); putX(14+i, 50, 51)
    cmul(k, 48, 49, X0, X0+1, 46, 47); putX(16, 48, 49)
    cmul(k, 50, 51, 48, 49, 42, 43); putX(17, 50, 51)
    cmul(k, 50, 51, 48, 49, 44, 45); putX(18, 50, 51)
    cmul(k, 52, 53, 50, 51, 42, 43); putX(19, 52, 53)
    cmul(k, 52, 53, 48, 49, 46, 47); putX(20, 52, 53)
    k(f"{lJ}:")
    k("s_waitcnt lgkmcnt(0)" if KPF else "s_waitcnt vmcnt(0) lgkmcnt(0)")
    k.lines.append("    ;@ST")
    k("s_barrier")
    k.lines.append("    ;@ST")
    for ks in range(4):
        k(f"ds_read_b128 v[{8+8*ks}:{11+8*ks}], v67 offset:{64*ks}")
        k(f"ds_read_b128 v[{12+8*ks}:{15+8*ks}], v66 offset:{64*ks}")
    for ks in range(8):
        r = 8 + 8*(ks % 4)
        k(f"s_waitcnt lgkmcnt({6 if ks < 5 else (7-ks)*2})")
        c = "0" if ks == 0 else "v[40:43]"
        k(f"v_mfma_f32_16x16x32_bf16 v[40:43], v[{r}:{r+3}], v[{r+4}:{r+7}], {c}")
        if ks < 4:
            k(f"ds_read_b128 v[{r}:{r+3}], v67 offset:{64*(ks+4)}")
            k(f"ds_read_b128 v[{r+4}:{r+7}], v66 offset:{64*(ks+4)}")
    k.srd(32, 6, D*KR_PITCH, WS_KR)
    k(f"s_mul_i32 s3, s14, {KR_PITCH}")
    for j in range(4):
        k(f"v_and_b32 v{48+2*j}, 0xffff, v{G+j}")
        k(f"v_lshrrev_b32 v{49+2*j}, 16, v{G+j}")
    for r in range(20, 24): k(f"v_mov_b32 v{r}, 0")
    k("v_cvt_pk_bf16_f32 v46, v40, v41")
    k("v_cvt_pk_bf16_f32 v47, v42, v43")
    k(f"ds_write_b64 v68, v[46:47] offset:{TB}")
    k("s_waitcnt lgkmcnt(0)")
    k("s_barrier")
    k.lines.append("    ;@ST")
    for e in range(8): k(f"ds_read_u16 v{8+e}, v{48+e} offset:{TB}")
    k("s_waitcnt lgkmcnt(0)")
    for j in range(4): k(f"v_lshl_or_b32 v{16+j}, v{9+2*j}, 16, v{8+2*j}")
    k(f"buffer_store_dwordx4 v[16:19], v5, s[32:35], s3 offen {WT}")
    k("v_cmp_gt_u32 vcc, 8, v0")
    k("s_and_saveexec_b64 s[4:5], vcc")
    k(f"s_cbranch_execz {done}")
    k("s_add_u32 s3, s3, 4096")
    k("buffer_store_dwordx4 v[20:23], v5, s[32:35], s3 offen")
    k("s_endpgm")
    k.lines.append("    ;@ST0")
    return TB + 72*64

def code_prefetch(k, sym, endsym, nbytes, vtmp, vdst, S=72, lanes=64):
    lp = k.label('cp')
    k(f"s_getpc_b64 s[{S}:{S+1}]")
    k(f"{lp}:")
    k(f"s_add_u32 s{S}, s{S}, {sym}-{lp}")
    k(f"s_addc_u32 s{S+1}, s{S+1}, {'-1' if sym == k.name else '0'}")
    k(f"s_mov_b32 s{S+2}, {endsym}-{sym}")
    k(f"s_mov_b32 s{S+3}, 0x00020000")
    k(f"v_lshlrev_b32 v{vtmp}, 7, v0")
    per = lanes*128
    for j in range(-(-nbytes//per)):
        k(f"s_mov_b32 s{S+4}, {j*per}")
        k(f"buffer_load_dword v{vdst}, v{vtmp}, s[{S}:{S+3}], s{S+4} offen")

def gather_table(name):
    import numpy as np
    def rb(l):
        u = struct.unpack('<I', struct.pack('<f', float(l)))[0]
        u = (u + 0x7fff + ((u >> 16) & 1)) & 0xffff0000
        return int(struct.unpack('<f', struct.pack('<I', u))[0])
    vals = []
    for x in range(2048):
        v = rb(2047 - x)
        vals.append((((v >> 8)*8 + (v & 7)) << 6) + ((v >> 3) & 31)*2)
    out = [".p2align 6", f".type gtab_{name},@object", f"gtab_{name}:"]
    for i in range(0, 2048, 16):
        out.append("    .short " + ", ".join(str(v) for v in vals[i:i+16]))
    out.append(f".size gtab_{name}, 4096")
    return out

def emit_w1(k, clear, cw_off):
    k("s_waitcnt lgkmcnt(0)")
    k.srd(32, 6, clear[1], clear[0])
    for r in range(20, 24): k(f"v_mov_b32 v{r}, -1")
    k("s_lshl_b32 s13, s3, 12")
    k("v_lshlrev_b32 v24, 4, v0")
    k("buffer_store_dwordx4 v[20:23], v24, s[32:35], s13 offen")
    strip_transpose(k, 64, D, F, WS_WINT, 3, cw_off=cw_off)

def k1_kernel(name='k1_kernel', clear=None, cw_off=None, w1=True):
    k = Kernel(name, vgpr=72, sgpr=80)
    done = k.label('done'); lK = k.label('kg'); lW = k.label('w1'); lN = k.label('nocp')
    NC_ = 32 if CPF else 0
    NR = 128; NW = 216 if w1 else 0
    if CPF:
        k(f"s_cmp_ge_u32 s2, {NC_}")
        k(f"s_cbranch_scc1 {lN}")
        lp = k.label('cp')
        k("s_getpc_b64 s[4:5]")
        k(f"{lp}:")
        k(f"s_add_u32 s4, s4, {name}-{lp}")
        k("s_addc_u32 s5, s5, -1")
        k(f"s_mov_b32 s6, all_code_end-{name}")
        k("s_mov_b32 s7, 0x00020000")
        k("v_lshlrev_b32 v1, 7, v0")
        k("s_lshr_b32 s3, s2, 3")
        k("s_lshl_b32 s3, s3, 15")
        k("buffer_load_dword v2, v1, s[4:7], s3 offen")
        k("s_endpgm")
        k(f"{lN}:")
        k(f"s_sub_u32 s2, s2, {NC_}")
    k(f"s_cmp_ge_u32 s2, {NR+D+NW}")
    k(f"s_cbranch_scc1 {done}")
    k(f"s_load_dwordx2 s[6:7], s[0:1], {KA['ws']}")
    k(f"s_cmp_ge_u32 s2, {NR+D}")
    k(f"s_cbranch_scc1 {lW}")
    k("s_load_dwordx16 s[16:31], s[0:1], 0")
    k(f"s_cmp_ge_u32 s2, {NR}")
    k(f"s_cbranch_scc1 {lK}")
    emit_R(k, 2)
    k(f"{lK}:")
    k(f"s_sub_u32 s14, s2, {NR}")
    lds = emit_kgen(k, done)
    k(f"{lW}:")
    k("s_load_dwordx8 s[64:71], s[0:1], 80")
    k(f"s_sub_u32 s3, s2, {NR+D}")
    emit_w1(k, clear, cw_off)
    k(f"{done}:")
    k("s_endpgm")
    k.tail = gather_table(k.name)
    b = NC_
    return k, b+NR+D+NW, max(lds, 32*1184), [["R", b, b+NR], ["kgen", b+NR, b+NR+D]] + ([["w1", b+NR+D, b+NR+D+NW]] if w1 else [])

def emit_conv(k, ht_off):
    k("s_and_b32 s14, s2, 0xfffffff0")
    k("s_and_b32 s3, s2, 7")
    k("s_lshl_b32 s3, s3, 1")
    k("s_add_u32 s14, s14, s3")
    k("s_bfe_u32 s3, s2, 0x10003")
    k("s_add_u32 s14, s14, s3")
    k("v_lshlrev_b32 v1, 4, v0")
    k("v_lshrrev_b32 v3, 6, v0")
    k("v_lshrrev_b32 v20, 1, v0")
    k(f"v_mul_u32_u24 v20, {D*64}, v20")
    k("v_and_b32 v21, 1, v0")
    k("v_lshl_add_u32 v20, v21, 4, v20")
    k("s_lshl_b32 s3, s14, 6")
    k(f"s_mul_i32 s4, s14, {KR_PITCH}")
    k("s_lshl_b32 s5, s14, 1")
    k("v_mov_b32 v4, s5")
    k("v_readfirstlane_b32 s15, v3")
    k("s_waitcnt lgkmcnt(0)")
    k.lines.append("    ;@ST")
    k.srd(28, 6, D*KR_PITCH, WS_KR)
    k("buffer_load_dwordx4 v[8:11], v1, s[28:31], s4 offen")
    k("buffer_load_dwordx4 v[12:15], v1, s[28:31], s4 offen offset:16")
    k.srd(32, 6, 128*D*64, WS_UX)
    k("buffer_load_dwordx4 v[24:27], v20, s[32:35], s3 offen")
    k("buffer_load_dwordx4 v[16:19], v20, s[32:35], s3 offen offset:32")
    k.srd(40, 8, D*2)
    k("buffer_load_ushort v36, v4, s[40:43], 0 offen")
    k.srd(44, 6, D*L*2, ht_off)
    for r in range(40, 44): k(f"v_mov_b32 v{r}, 0")
    k("v_cmp_gt_u32 vcc, 160, v0")
    k("s_and_saveexec_b64 s[10:11], vcc")
    k(f"ds_write_b128 v1, v[40:43] offset:{UB}")
    k("s_mov_b64 exec, s[10:11]")
    k("v_lshrrev_b32 v5, 2, v0")
    k(f"v_mul_u32_u24 v5, {CP}, v5")
    k("v_and_b32 v6, 3, v0")
    k("v_lshl_add_u32 v5, v6, 4, v5")
    k("v_cmp_gt_u32 vcc, 32, v0")
    k("s_and_saveexec_b64 s[10:11], vcc")
    k("ds_write_b128 v5, v[40:43] offset:4096")
    k("s_mov_b64 exec, s[10:11]")
    k("v_and_b32 v2, 15, v0")
    k("v_bfe_u32 v3, v0, 4, 2")
    k("v_and_b32 v5, 7, v2")
    k("v_sub_u32 v5, 7, v5")
    k(f"v_mul_u32_u24 v5, {CP}, v5")
    k("v_lshrrev_b32 v6, 3, v2")
    k("v_sub_u32 v6, v3, v6")
    k("v_add_u32 v6, 1, v6")
    k("v_lshl_add_u32 v5, v6, 4, v5")
    k(f"v_mul_u32_u24 v6, {UP}, v2")
    k("v_lshl_add_u32 v6, v3, 4, v6")
    k(f"v_add_u32 v6, {UB}, v6")
    k("v_lshrrev_b32 v7, 3, v0")
    k(f"v_mul_u32_u24 v7, {UP}, v7")
    k("v_and_b32 v21, 7, v0")
    k("v_lshl_add_u32 v7, v21, 4, v7")
    k("s_waitcnt vmcnt(3)")
    k.lines.append("    ;@ST")
    E, O, O2 = 44, 52, 60
    k("ds_write_b128 v1, v[8:11]")
    k(f"ds_write_b128 v1, v[10:13] offset:{4*CP}")
    for j in range(6): k(f"v_mov_b32 v{E+j}, v{9+j}")
    k(f"ds_write_b128 v1, v[{E}:{E+3}] offset:{2*CP}")
    k(f"ds_write_b128 v1, v[{E+2}:{E+5}] offset:{6*CP}")
    for j in range(6): k(f"v_alignbit_b32 v{O+j}, v{9+j}, v{8+j}, 16")
    k(f"ds_write_b128 v1, v[{O}:{O+3}] offset:{1*CP}")
    k(f"ds_write_b128 v1, v[{O+2}:{O+5}] offset:{5*CP}")
    for j in range(6): k(f"v_alignbit_b32 v{O2+j}, v{10+j}, v{9+j}, 16")
    k(f"ds_write_b128 v1, v[{O2}:{O2+3}] offset:{3*CP}")
    k(f"ds_write_b128 v1, v[{O2+2}:{O2+5}] offset:{7*CP}")
    k("s_waitcnt vmcnt(2)")
    k(f"ds_write_b128 v7, v[24:27] offset:{UB + 16*UP}")
    XF, UF, SK = 96, 68, 104
    k("s_waitcnt vmcnt(0)")
    if CONVWW:
        k.srd(48, 6, F*D*2, WS_WINT)
        k("s_lshr_b32 s10, s2, 3")
        k("s_cmp_ge_u32 s10, 36")
        k(f"s_cselect_b32 s11, {FH*D*2 - 36*144*128}, 0")
        k(f"s_mul_i32 s10, s10, {144*128}")
        k("s_add_u32 s10, s10, s11")
        k("s_and_b32 s11, s2, 3")
        k(f"s_mul_i32 s11, s11, {576*D*2}")
        k("s_add_u32 s10, s10, s11")
        k("v_lshlrev_b32 v21, 7, v0")
        k("v_cmp_gt_u32 vcc, 144, v0")
        k("s_and_saveexec_b64 s[12:13], vcc")
        lnw = k.label('nw')
        k(f"s_cbranch_execz {lnw}")
        k("buffer_load_dword v110, v21, s[48:51], s10 offen")
        k(f"{lnw}:")
        k("s_mov_b64 exec, s[12:13]")
    if CONVPF:
        lnp = k.label('np')
        k("s_cmp_lt_u32 s15, 2")
        k(f"s_cbranch_scc1 {lnp}")
        k("s_cmp_ge_u32 s2, 512")
        k(f"s_cbranch_scc1 {lnp}")
        k.srd(52, 56, L*L*2)
        k("s_lshl_b32 s10, s2, 14")
        k("v_subrev_u32 v21, 128, v0")
        k("v_lshlrev_b32 v21, 7, v21")
        k("buffer_load_dword v111, v21, s[52:55], s10 offen")
        k(f"{lnp}:")
    k("v_lshlrev_b32 v36, 16, v36")
    for j in range(4):
        k(f"v_lshlrev_b32 v{UF+2*j}, 16, v{24+j}")
        k(f"v_and_b32 v{UF+2*j+1}, 0xffff0000, v{24+j}")
    for e in range(8): k(f"v_mul_f32 v{UF+e}, v{UF+e}, v36")
    for j in range(4): k(f"v_cvt_pk_bf16_f32 v{SK+j}, v{UF+2*j}, v{UF+2*j+1}")
    for j in range(4):
        k(f"v_lshlrev_b32 v{XF+2*j}, 16, v{16+j}")
        k(f"v_and_b32 v{XF+2*j+1}, 0xffff0000, v{16+j}")
    k("s_waitcnt lgkmcnt(0)")
    k.lines.append("    ;@ST")
    k("s_barrier")
    k.lines.append("    ;@ST")
    ACC, AF, BF = 8, 40, 72
    ranges = [(0, 12), (12, 24), (24, 40), (40, 64)]
    labs = [k.label('cw') for _ in range(4)]
    ljoin = k.label('cj')
    for w in range(1, 4):
        k(f"s_cmp_eq_u32 s15, {w}")
        k(f"s_cbranch_scc1 {labs[w]}")
    def ra(phi):
        r = AF + 4*(phi % 8)
        return f"ds_read_b128 v[{r}:{r+3}], v5 offset:{32*(127-phi)}"
    def rb(kap, nt):
        r = BF + 8*(kap % 3) + 4*nt
        off = (16*nt + 16 - (kap >> 1))*UP + (64 if kap % 2 == 0 else 0)
        return f"ds_read_b128 v[{r}:{r+3}], v6 offset:{off}"
    for w in range(4):
        k(f"{labs[w]}:")
        k0, k1_ = ranges[w]
        nts = lambda kap: [0, 1] if kap < 32 else [1]
        def loads(kap):
            if kap >= k1_: return []
            out = [rb(kap, nt) for nt in nts(kap)]
            for mt in (range(4) if kap == k0 else (2, 3)):
                p = 2*kap - 2 + mt
                if p >= 0: out.append(ra(p))
            return out
        inited = set()
        for ins in loads(k0) + loads(k0+1): k(ins)
        for kap in range(k0, k1_):
            k(f"s_waitcnt lgkmcnt({len(loads(kap+1))})")
            nxt = loads(kap+2)
            ms = []
            for mt in range(4):
                phi = 2*kap - 2 + mt
                if phi < 0: continue
                for nt in nts(kap):
                    a = ACC + (mt*2+nt)*4
                    ar = AF + 4*(phi % 8); br = BF + 8*(kap % 3) + 4*nt
                    c = f"v[{a}:{a+3}]" if (mt, nt) in inited else "0"
                    inited.add((mt, nt))
                    ms.append(f"v_mfma_f32_16x16x32_bf16 v[{a}:{a+3}], v[{ar}:{ar+3}], v[{br}:{br+3}], {c}")
            for i_, m in enumerate(ms):
                k(m)
                if i_ < len(nxt): k(nxt[i_])
            for ins in nxt[len(ms):]: k(ins)
        k(f"v_mul_u32_u24 v7, {YP}, v2")
        k("v_lshl_add_u32 v7, v3, 4, v7")
        k("s_barrier")
        k.nop(8)
        for mt in range(4):
            for nt in range(2):
                if (mt, nt) not in inited: continue
                a = ACC + (mt*2+nt)*4
                off = w*32*YP + 16*nt*YP + 64*mt - (16*YP if w == 3 else 0)
                k(f"ds_write_b128 v7, v[{a}:{a+3}] offset:{off}")
        if w < 3: k(f"s_branch {ljoin}")
    k(f"{ljoin}:")
    k.lines.append("    ;@ST")
    k("v_lshrrev_b32 v5, 3, v0")
    k(f"v_mul_u32_u24 v5, {YP}, v5")
    k("v_and_b32 v6, 7, v0")
    k("v_lshl_add_u32 v5, v6, 5, v5")
    k("s_lshl_b32 s3, s14, 12")
    k("s_waitcnt lgkmcnt(0)")
    k("s_barrier")
    k.lines.append("    ;@ST")
    for w in range(3):
        k(f"ds_read_b128 v[{8+8*w}:{11+8*w}], v5 offset:{w*32*YP}")
        k(f"ds_read_b128 v[{12+8*w}:{15+8*w}], v5 offset:{w*32*YP+16}")
    for r in range(32, 40): k(f"v_mov_b32 v{r}, 0")
    sk = k.label('sk')
    k("s_cmp_lt_u32 s15, 2")
    k(f"s_cbranch_scc1 {sk}")
    k(f"ds_read_b128 v[32:35], v5 offset:{3*32*YP - 16*YP}")
    k(f"ds_read_b128 v[36:39], v5 offset:{3*32*YP - 16*YP + 16}")
    k(f"{sk}:")
    for j in range(4):
        k(f"v_lshlrev_b32 v{40+2*j}, 16, v{SK+j}")
        k(f"v_and_b32 v{41+2*j}, 0xffff0000, v{SK+j}")
    k("s_waitcnt lgkmcnt(0)")
    for e in range(8):
        k(f"v_add_f32 v{8+e}, v{8+e}, v{16+e}")
        k(f"v_add_f32 v{24+e}, v{24+e}, v{32+e}")
    for e in range(8): k(f"v_add_f32 v{8+e}, v{8+e}, v{24+e}")
    for j in range(4): k(f"v_cvt_pk_bf16_f32 v{16+j}, v{8+2*j}, v{9+2*j}")
    for j in range(4):
        k(f"v_lshlrev_b32 v{8+2*j}, 16, v{16+j}")
        k(f"v_and_b32 v{9+2*j}, 0xffff0000, v{16+j}")
    for e in range(8): k(f"v_add_f32 v{8+e}, v{8+e}, v{40+e}")
    for j in range(4): k(f"v_cvt_pk_bf16_f32 v{16+j}, v{8+2*j}, v{9+2*j}")
    for j in range(4):
        k(f"v_lshlrev_b32 v{8+2*j}, 16, v{16+j}")
        k(f"v_and_b32 v{9+2*j}, 0xffff0000, v{16+j}")
    for e in range(8): k(f"v_add_f32 v{8+e}, v{8+e}, v{XF+e}")
    for j in range(4): k(f"v_cvt_pk_bf16_f32 v{16+j}, v{8+2*j}, v{9+2*j}")
    k(f"buffer_store_dwordx4 v[16:19], v1, s[44:47], s3 offen {WTH}")
    k("s_endpgm")
    k.lines.append("    ;@ST0")

def emit_cw(k, done, idreg, cw_off):
    k("v_lshrrev_b32 v1, 3, v0")
    k("v_and_b32 v2, 7, v0")
    k(f"v_mul_u32_u24 v3, {F*2}, v1")
    k("v_lshl_add_u32 v3, v2, 4, v3")
    k(f"s_lshl_b32 s8, s{idreg}, 7")
    k("s_waitcnt lgkmcnt(0)")
    k.srd(16, 64, D*F*2)
    k.srd(20, 6, F*4, cw_off)
    for q in range(18):
        k(f"buffer_load_dwordx4 v[{24+4*q}:{27+4*q}], v3, s[16:19], s8 offen")
        k(f"s_add_u32 s8, s8, {32*F*2}")
    for e in range(8): k(f"v_mov_b32 v{8+e}, 0")
    for q in range(18):
        k(f"s_waitcnt vmcnt({17-q})")
        for j in range(4):
            k(f"v_lshlrev_b32 v4, 16, v{24+4*q+j}")
            k(f"v_and_b32 v5, 0xffff0000, v{24+4*q+j}")
            k(f"v_add_f32 v{8+2*j}, v{8+2*j}, v4")
            k(f"v_add_f32 v{9+2*j}, v{9+2*j}, v5")
    k("v_lshlrev_b32 v4, 5, v0")
    k("ds_write_b128 v4, v[8:11]")
    k("ds_write_b128 v4, v[12:15] offset:16")
    k("s_waitcnt lgkmcnt(0)")
    k("s_barrier")
    k("v_cmp_gt_u32 vcc, 64, v0")
    k("s_and_saveexec_b64 s[10:11], vcc")
    k(f"s_cbranch_execz {done}")
    k("v_lshlrev_b32 v4, 2, v0")
    for g in range(32): k(f"ds_read_b32 v{24+g}, v4 offset:{256*g}")
    k("s_waitcnt lgkmcnt(0)")
    for g in range(1, 32): k(f"v_add_f32 v24, v24, v{24+g}")
    k("v_cvt_pk_bf16_f32 v5, v24, v24")
    k("v_lshlrev_b32 v5, 16, v5")
    k("v_sub_f32 v6, v24, v5")
    k("v_cvt_pk_bf16_f32 v5, v24, v6")
    k(f"s_lshl_b32 s8, s{idreg}, 8")
    k("buffer_store_dword v5, v4, s[20:23], s8 offen")
    k("s_endpgm")

def emit_pf(k, idreg):
    k(f"s_lshl_b32 s3, s{idreg}, 16")
    k("v_lshlrev_b32 v1, 4, v0")
    k("s_waitcnt lgkmcnt(0)")
    k.srd(8, 66, L*L*2)
    for j in range(16):
        k(f"buffer_load_dwordx4 v[{8+4*j}:{11+4*j}], v1, s[8:11], s3 offen")
        k("s_add_u32 s3, s3, 4096")
    k("s_waitcnt vmcnt(0)")
    k("s_endpgm")

def k2_kernel(name='k2_kernel', clear=None, cw_off=None, ht_off=WS_HT2, order=('cw', 'w1', 'w2', 'pf')):
    k = Kernel(name, vgpr=112, sgpr=80)
    cnt = dict(cw=72, w1=216, w2=108, pf=128, ww=128)
    done = k.label('done'); lS = k.label('side')
    bounds = [D]
    for o in order: bounds.append(bounds[-1] + cnt[o])
    k(f"s_cmp_ge_u32 s2, {bounds[-1]}")
    k(f"s_cbranch_scc1 {done}")
    k(f"s_load_dwordx2 s[6:7], s[0:1], {KA['ws']}")
    k(f"s_cmp_ge_u32 s2, {D}")
    k(f"s_cbranch_scc1 {lS}")
    k(f"s_load_dwordx2 s[8:9], s[0:1], {KA['Dskip']}")
    k(f"s_load_dwordx2 s[56:57], s[0:1], {KA['wsp']}")
    emit_conv(k, ht_off)
    k(f"{lS}:")
    k("s_load_dwordx8 s[64:71], s[0:1], 80")
    labs = {o: k.label(o) for o in order}
    for i in range(len(order)-1, 0, -1):
        k(f"s_cmp_ge_u32 s2, {bounds[i]}")
        k(f"s_cbranch_scc1 {labs[order[i]]}")
    roles = [["conv", 0, D]]
    for i, o in enumerate(order):
        k(f"{labs[o]}:")
        k(f"s_sub_u32 s3, s2, {bounds[i]}")
        roles.append([o, bounds[i], bounds[i+1]])
        if o == 'w1':
            emit_w1(k, clear, cw_off)
        elif o == 'w2':
            k("s_waitcnt lgkmcnt(0)")
            strip_transpose(k, 70, FH, D, WS_WOUTT, 3, kperm=KPERM)
        elif o == 'cw':
            emit_cw(k, done, 3, cw_off)
        elif o == 'pf':
            emit_pf(k, 3)
        elif o == 'ww':
            k("s_and_b32 s8, s2, 3")
            k(f"s_mul_i32 s8, s8, {576*D*2}")
            k("s_lshr_b32 s9, s3, 3")
            k("s_lshr_b32 s10, s9, 3")
            k(f"s_mul_i32 s10, s10, {FH*D*2}")
            k("s_add_u32 s8, s8, s10")
            k("s_and_b32 s9, s9, 7")
            k("s_mul_i32 s9, s9, 82944")
            k("s_add_u32 s8, s8, s9")
            k("v_lshlrev_b32 v1, 4, v0")
            k("s_waitcnt lgkmcnt(0)")
            k.srd(12, 6, F*D*2, WS_WINT)
            for j in range(21):
                k(f"buffer_load_dwordx4 v[{8+4*j}:{11+4*j}], v1, s[12:15], s8 offen")
                k("s_add_u32 s8, s8, 4096")
            k("s_waitcnt vmcnt(0)")
            k("s_endpgm")
    k(f"{done}:")
    k("s_endpgm")
    return k, bounds[-1], 40960, roles
```

```python
import sys, json
sys.path.insert(0, 'work')
from gcore import *
import gen_p as gp, gen_m4 as gm, tl
gp.KPERM = True
def main(out, CPF=3, WT='', WTH='', CONVWW=False, CONVPF=False, timeline=False, pstamp=False, report=None, order=('w2',), **kw):
    gm.WS_HT = gp.WS_HT2
    gp.CPF = CPF; gp.WT = WT; gp.WTH = WTH; gp.CONVWW = CONVWW; gp.CONVPF = CONVPF
    k1, n1, l1, r1 = gp.k1_kernel(clear=(gm.HO_BASE, gm.HO_BYTES), cw_off=gm.WS_CWP)
    k2, n2, l2, r2 = gp.k2_kernel(clear=(gm.HO_BASE, gm.HO_BYTES), cw_off=gm.WS_CWP, order=order)
    km, lm = gm.mega_kernel(**kw)
    km.tail = ['all_code_end:']
    ks = [k1, k2, km]
    launches = [('k1_kernel', n1, 256, l1), ('k2_kernel', n2, 256, l2), ('mega_kernel', 256, 704, lm)]
    if report is not None:
        for i, kk in enumerate(ks): tl.instrument(kk, i)
        ks.append(tl.report_kernel(len(launches), report))
        launches = launches + [('report_kernel', 1, 64, 0)]
    if pstamp:
        import stamp_tool
        stamp_tool.apply(k1, 120 << 20); stamp_tool.apply(k2, 121 << 20)
    if timeline or pstamp or kw.get('stamps'):
        if timeline:
            for i, kk in enumerate(ks): tl.instrument(kk, i)
        ks.append(tl.blocker_kernel()); ks.append(tl.scrub_kernel())
        launches = [('blocker_kernel', 1, 64, 0)] + launches + [('scrub_kernel', 1024, 64, 0)]
    open(out, 'w').write(build_file(ks, launches))
    open('roles.json', 'w').write(json.dumps({'k1_kernel': r1, 'k2_kernel': r2}))
if __name__ == '__main__':
    O = dict(WARMP=False, ROT3=False, MAP3=False, order=('w2',), CONVWW=True, WTH='sc1')
    V = dict(a=dict(GF=14, GINT=True), b=dict(GF=14, CONVPF=True, PF=False, GINT=True), c=dict(GF=15, NA=5, GINT=True), d=dict(GF=16), e=dict(GF=14, GINT=True, CPF=0))
    for t, kw in V.items():
        main(f'v7_{t}.s', **kw, **O)
```

```python
import sys, math
sys.path.insert(0, 'work')
from gcore import *
import gen_v0 as v0
from gen_a import cexp, cmul, INV2PI, CP, UB, UP, YP
rbf = v0.rbf
SC = "sc1"
WS_UX = 64*MB
WS_HT2 = 72*MB
SPIN = 0x8000
UXP = 8448
POLL_SLEEP = 64

def strip_transpose(k, src_base, R, Cc, dst_off, id_sgpr, cw_off=None, kperm=False, st='', tiled=False, lb=None):
    tc = Cc//64
    k(f"s_mov_b32 s10, {(1<<32)//tc + 1}")
    k(f"s_mul_hi_u32 s11, s{id_sgpr}, s10")
    k(f"s_mul_i32 s12, s11, {tc}")
    k(f"s_sub_u32 s12, s{id_sgpr}, s12")
    k.srd(16, src_base, R*Cc*2)
    k.srd(20, 6, R*Cc*2, dst_off)
    k("v_and_b32 v2, 63, v0")
    k("v_lshrrev_b32 v1, 6, v0")
    k("s_nop 0")
    k("v_readfirstlane_b32 s15, v1")
    k("v_lshrrev_b32 v3, 3, v2")
    k("v_and_b32 v4, 7, v2")
    k("v_bfe_u32 v5, v2, 4, 1")
    k("v_lshlrev_b32 v5, 1, v5")
    k("v_xor_b32 v4, v4, v5")
    k("v_lshlrev_b32 v4, 4, v4")
    k(f"v_mul_u32_u24 v3, {Cc*2}, v3")
    k("v_add_u32 v4, v4, v3")
    k("v_xor_b32 v5, 64, v4")
    k(f"s_mul_i32 s13, s11, {192*Cc*2}")
    k("s_lshl_b32 s14, s12, 7")
    k("s_add_u32 s13, s13, s14")
    k(f"s_mul_i32 s14, s15, {48*Cc*2}")
    k("s_add_u32 s13, s13, s14")
    k("s_mul_i32 s14, s15, 6144")
    if lb: k(f"s_add_u32 s14, s14, s{lb}")
    for j in range(6):
        k(f"s_add_u32 m0, s14, {j*1024}")
        k("s_nop 0")
        k(f"buffer_load_dwordx4 v{5 if j&1 else 4}, s[16:19], s13 offen lds")
        k(f"s_add_u32 s13, s13, {8*Cc*2}")
    k("v_and_b32 v3, 15, v2")
    k("v_lshrrev_b32 v6, 4, v2")
    k("v_lshrrev_b32 v7, 2, v3")
    k("v_bfe_u32 v8, v3, 1, 1")
    k("s_lshl_b32 s13, s15, 1")
    k("v_add_u32 v8, s13, v8")
    k("v_and_b32 v9, 2, v7")
    k("v_xor_b32 v8, v8, v9")
    k("v_and_b32 v9, 1, v6")
    k("v_lshlrev_b32 v9, 2, v9")
    k("v_xor_b32 v8, v8, v9")
    k("v_lshlrev_b32 v8, 4, v8")
    k("v_and_b32 v9, 1, v3")
    k("v_lshl_add_u32 v8, v9, 3, v8")
    k("v_lshl_add_u32 v7, v6, 3, v7")
    k("v_lshl_add_u32 v8, v7, 7, v8")
    if lb: k(f"v_add_u32 v8, s{lb}, v8")
    k("s_lshl_b32 s13, s12, 6")
    k("s_lshl_b32 s14, s15, 4")
    k("s_add_u32 s13, s13, s14")
    k("v_add_u32 v9, s13, v3")
    k(f"v_mul_u32_u24 v9, {R*2}, v9")
    k("v_lshl_add_u32 v9, v6, 4, v9")
    k(f"s_mul_i32 s13, s11, {192*2}")
    if tiled:
        k("v_lshlrev_b32 v9, 6, v3")
        k("v_lshl_add_u32 v9, v6, 4, v9")
        k("s_lshl_b32 s13, s12, 2")
        k("s_add_u32 s13, s13, s15")
        k(f"s_mul_i32 s13, s13, {R//32*1024}")
        k("s_mul_i32 s14, s11, 6144")
        k("s_add_u32 s13, s13, s14")
        k("v_add_u32 v10, 4096, v9")
    if kperm:
        k("v_lshlrev_b32 v10, 4, v6")
        k("v_sub_u32 v9, v9, v10")
        k("s_mul_i32 s14, s11, 43")
        k("s_lshr_b32 s14, s14, 7")
        k("s_mul_i32 s13, s14, 3")
        k("s_sub_u32 s13, s11, s13")
        k("s_mul_i32 s13, s13, 24")
        for b in range(6):
            k(f"s_add_u32 s10, s13, {4*b}")
            k("v_add_u32 v10, s10, v6")
            k("v_mul_u32_u24 v11, 57, v10")
            k("v_lshrrev_b32 v11, 10, v11")
            k("v_mul_u32_u24 v12, 18, v11")
            k("v_sub_u32 v10, v10, v12")
            k("v_cmp_lt_u32 vcc, 9, v10")
            k("v_subrev_u32 v12, 2, v10")
            k("v_lshlrev_b32 v13, 1, v11")
            k("v_cndmask_b32 v12, v10, v12, vcc")
            k("v_lshl_add_u32 v12, v11, 4, v12")
            k("v_add3_u32 v13, v13, v10, 56")
            k("v_and_b32 v14, 0x1e, v10")
            k("v_cmp_eq_u32 vcc, 8, v14")
            k("s_nop 1")
            k("v_cndmask_b32 v12, v12, v13, vcc")
            k(f"v_lshl_add_u32 v{40+b}, v12, 4, v9")
        k(f"s_mul_i32 s13, s14, {72*16}")
    k("s_waitcnt vmcnt(0)")
    k("s_barrier")
    for b in range(6):
        for x in range(2):
            k(f"ds_read_b64_tr_b16 v[{16+4*b+2*x}:{17+4*b+2*x}], v8 offset:{(32*b+4*x)*128}")
    for b in range(6):
        k(f"s_waitcnt lgkmcnt({10-2*b})")
        if kperm: k(f"buffer_store_dwordx4 v[{16+4*b}:{19+4*b}], v{40+b}, s[20:23], s13 offen {st}")
        elif tiled: k(f"buffer_store_dwordx4 v[{16+4*b}:{19+4*b}], v{9 if b < 4 else 10}, s[20:23], s13 offen offset:{1024*(b%4)} {st}")
        else: k(f"buffer_store_dwordx4 v[{16+4*b}:{19+4*b}], v9, s[20:23], s13 offen offset:{64*b} {st}")
    if cw_off is not None:
        k.srd(24, 6, 3*Cc*4, cw_off)
        k("v_mov_b32 v10, 0"); k("v_mov_b32 v11, 0")
        k("s_mov_b32 s14, 0x3f803f80")
        for i in range(24):
            k(f"v_dot2_f32_bf16 v{10+(i&1)}, v{16+i}, s14, v{10+(i&1)}")
        k.nop(3)
        k("v_add_f32 v10, v10, v11")
        k("v_mov_b32 v11, v10")
        k.nop(2)
        k("v_permlane32_swap_b32 v10, v11")
        k("v_add_f32 v10, v10, v11")
        k("v_mov_b32 v11, v10")
        k.nop(2)
        k("v_permlane16_swap_b32 v10, v11")
        k("v_add_f32 v10, v10, v11")
        k(f"s_mul_i32 s13, s11, {Cc*4}")
        k("s_lshl_b32 s14, s12, 8")
        k("s_add_u32 s13, s13, s14")
        k("s_lshl_b32 s14, s15, 6")
        k("s_add_u32 s13, s13, s14")
        k("v_lshlrev_b32 v11, 2, v3")
        k("s_mov_b64 exec, 0xffff")
        k("buffer_store_dword v10, v11, s[24:27], s13 offen")
    k("s_endpgm")

KR_PITCH = 4224
WS_KR = 80*MB
def ka_kernel(name='ka_kernel', clear=None, cw_off=None, ht_off=WS_HT2, mode='fused'):
    k = Kernel(name, vgpr=112 if mode != 'k1' else 72, sgpr=80)
    NR, NC, N1, N2, N3, NPF = 128, D, 216, 108, 72, 128
    if mode == 'k1': N1 = N2 = N3 = NPF = 0
    if mode == 'k2': NR = 0
    SC = globals()['SC'] if mode == 'fused' else ''
    b1 = NR; b2 = b1+NC; b3 = b2+N1; b4 = b3+N2; b5 = b4+N3; b6 = b5+NPF
    done = k.label('done'); lC = k.label('conv'); lW1 = k.label('w1'); lW2 = k.label('w2'); lCW = k.label('cw'); lPF = k.label('pf')
    lX = k.label('xw'); lJ = k.label('join')
    k(f"s_cmp_ge_u32 s2, {b6}")
    k(f"s_cbranch_scc1 {done}")
    k("s_load_dwordx16 s[16:31], s[0:1], 0")
    k("s_load_dwordx4 s[4:7], s[0:1], 120")
    k(f"s_cmp_ge_u32 s2, {b2}")
    k(f"s_cbranch_scc1 {lW1}")
    k(f"s_cmp_ge_u32 s2, {b1}")
    k(f"s_cbranch_scc1 {lC}")
    RP = 1184
    k("s_and_b32 s13, s2, 7")
    k("s_lshl_b32 s13, s13, 4")
    k("s_lshr_b32 s3, s2, 3")
    k("s_add_u32 s13, s13, s3")
    k("s_lshl_b32 s3, s13, 4")
    k("v_lshrrev_b32 v1, 4, v0")
    k("v_add_u32 v5, s3, v1")
    k("v_and_b32 v2, 15, v0")
    k(f"v_mul_u32_u24 v3, {D*2}, v5")
    k("v_lshl_add_u32 v3, v2, 3, v3")
    k("s_waitcnt lgkmcnt(0)")
    k.srd(32, 16, L*D*2)
    for q in range(9):
        k(f"buffer_load_dwordx2 v[{8+2*q}:{9+2*q}], v3, s[32:35], 0 offen offset:{128*q}")
    k.srd(36, 6, D*UXP, WS_UX)
    k.srd(40, 4, 256)
    k(f"v_mul_u32_u24 v66, {RP}, v1")
    k("v_lshl_add_u32 v66, v2, 3, v66")
    X = 30
    k("v_mov_b32 v4, 0")
    k("v_mov_b32 v7, 0")
    for q in range(9):
        k(f"s_waitcnt vmcnt({8-q})")
        k(f"ds_write_b64 v66, v[{8+2*q}:{9+2*q}] offset:{16*RP + 128*q}")
        for j in range(2):
            r = 8 + 2*q + j
            k(f"v_lshlrev_b32 v{X+4*q+2*j}, 16, v{r}")
            k(f"v_and_b32 v{X+4*q+2*j+1}, 0xffff0000, v{r}")
            k(f"v_add_f32 v4, v4, v{X+4*q+2*j}")
            k(f"v_add_f32 v7, v7, v{X+4*q+2*j+1}")
    k("v_add_f32 v4, v4, v7")
    def red16(v):
        for ctl in ["quad_perm:[1,0,3,2]", "quad_perm:[2,3,0,1]", "row_half_mirror", "row_mirror"]:
            k.nop(2)
            k(f"v_add_f32_dpp v{v}, v{v}, v{v} {ctl} row_mask:0xf bank_mask:0xf")
    red16(4)
    k(f"v_mul_f32 v4, {fhex(1.0/D)}, v4")
    k("v_mov_b32 v6, 0")
    k("v_mov_b32 v7, 0")
    for i in range(36):
        k(f"v_sub_f32 v{68+(i&3)}, v{X+i}, v4")
        k(f"v_fmac_f32 v{6 + (i&1)}, v{68+(i&3)}, v{68+(i&3)}")
    k("v_add_f32 v6, v6, v7")
    red16(6)
    k(f"v_mul_f32 v6, {fhex(1.0/D)}, v6")
    rbf(k, 4, 4); rbf(k, 6, 6)
    k(f"v_add_f32 v6, {fhex(1e-5)}, v6")
    rbf(k, 6, 6)
    k("v_sqrt_f32 v6, v6")
    k.nop(1)
    rbf(k, 6, 6)
    k("v_rcp_f32 v5, v6")
    for i in range(36): k(f"v_sub_f32 v{X+i}, v{X+i}, v4")
    for j in range(18): k(f"v_cvt_pk_bf16_f32 v{8+j}, v{X+2*j}, v{X+2*j+1}")
    for j in range(18):
        k(f"v_lshlrev_b32 v{X+2*j}, 16, v{8+j}")
        k(f"v_and_b32 v{X+2*j+1}, 0xffff0000, v{8+j}")
    for i in range(36): k(f"v_mul_f32 v{X+i}, v{X+i}, v5")
    for j in range(18): k(f"v_cvt_pk_bf16_f32 v{8+j}, v{X+2*j}, v{X+2*j+1}")
    for q in range(9):
        k(f"ds_write_b64 v66, v[{8+2*q}:{9+2*q}] offset:{128*q}")
    k("v_and_b32 v2, 63, v0")
    k("v_lshrrev_b32 v1, 6, v0")
    k("v_and_b32 v3, 15, v2")
    k("v_lshrrev_b32 v4, 4, v2")
    k("v_lshrrev_b32 v5, 2, v3")
    k("v_lshl_add_u32 v5, v4, 3, v5")
    k(f"v_mul_u32_u24 v5, {RP}, v5")
    k("v_and_b32 v6, 3, v3")
    k("v_lshl_add_u32 v5, v6, 3, v5")
    k(f"v_mul_u32_u24 v6, {9*32}, v1")
    k("v_add_u32 v5, v5, v6")
    k(f"v_mul_u32_u24 v6, {9*16}, v1")
    k("v_add_u32 v6, v6, v3")
    k(f"v_mul_u32_u24 v6, {UXP}, v6")
    k("v_lshl_add_u32 v6, v4, 4, v6")
    k("s_lshl_b32 s3, s13, 6")
    k("s_waitcnt lgkmcnt(0)")
    k("s_barrier")
    for g in range(9):
        for x in range(2):
            k(f"ds_read_b64_tr_b16 v[{8+4*g+2*x}:{9+4*g+2*x}], v5 offset:{32*g + 4*x*RP}")
    for g in range(9):
        k(f"s_waitcnt lgkmcnt({min(16-2*g, 15)})")
        k(f"buffer_store_dwordx4 v[{8+4*g}:{11+4*g}], v6, s[36:39], s3 offen {SC}")
        k(f"s_add_u32 s3, s3, {16*UXP}")
    if mode == 'fused':
        k("s_waitcnt vmcnt(0)")
        k("s_barrier")
        k("v_cmp_eq_u32 vcc, 0, v0")
        k("s_and_saveexec_b64 s[8:9], vcc")
        k(f"s_cbranch_execz {done}")
        k("v_mov_b32 v1, 1")
        k("s_lshl_b32 s3, s2, 1")
        k(f"buffer_store_short v1, v0, s[40:43], s3 offen {SC}")
    k("s_endpgm")

    k(f"{lC}:")
    k(f"s_load_dwordx2 s[8:9], s[0:1], {KA['Dskip']}")
    k(f"s_sub_u32 s14, s2, {b1}")
    XP = 528
    XA, YB, TB = 0, 21*XP, UB
    k("v_and_b32 v1, 127, v0")
    k("v_lshlrev_b32 v2, 1, v1")
    k("s_lshl_b32 s3, s14, 8")
    k("v_add_u32 v2, s3, v2")
    k("s_lshl_b32 s3, s14, 1")
    k("v_mov_b32 v3, s3")
    k("v_lshrrev_b32 v4, 6, v0")
    k("s_waitcnt lgkmcnt(0)")
    k("v_readfirstlane_b32 s15, v4")
    for i in range(6): k.srd(32+4*i, 18+2*i, D*N*2)
    k.srd(56, 30, D*2)
    k.srd(60, 8, D*2)
    k("buffer_load_ushort v16, v3, s[56:59], 0 offen")
    for i in range(6):
        k(f"buffer_load_ushort v{10+i}, v2, s[{32+4*i}:{35+4*i}], 0 offen")
    k("buffer_load_ushort v104, v3, s[60:63], 0 offen")
    G = 56
    k("v_lshlrev_b32 v5, 3, v0")
    for e in range(8):
        k(f"v_sub_u32 v6, {2047-e}, v5")
        k("v_cvt_f32_u32 v6, v6")
        k("v_cvt_pk_bf16_f32 v6, v6, v6")
        k("v_lshlrev_b32 v6, 16, v6")
        k("v_cvt_u32_f32 v6, v6")
        k("v_lshrrev_b32 v7, 8, v6")
        k("v_and_b32 v8, 7, v6")
        k("v_lshl_add_u32 v7, v7, 3, v8")
        k("v_bfe_u32 v8, v6, 3, 5")
        k("v_lshlrev_b32 v8, 1, v8")
        k(f"v_lshl_add_u32 v{G+e}, v7, 6, v8")
    k("s_waitcnt vmcnt(0)")
    k.srd(32, 6, D*UXP, WS_UX)
    k.srd(36, 4, 256)
    k.srd(44, 6, D*L*2, ht_off)
    for i in range(7): k(f"v_lshlrev_b32 v{10+i}, 16, v{10+i}")
    Lhi = struct.unpack('<f', struct.pack('<f', LOG2E))[0]
    Llo = LOG2E - Lhi
    k(f"s_mov_b32 s8, {fhex(Lhi)}")
    k(f"s_mov_b32 s9, {fhex(Llo)}")
    k("v_mul_f32 v17, s8, v16")
    k("v_fma_f32 v18, v16, s8, -v17")
    k("v_fma_f32 v18, v16, s9, v18")
    k("v_exp_f32 v17, v17")
    k(f"v_mul_f32 v18, {fhex(math.log(2.0))}, v18")
    k("v_fma_f32 v17, v17, v18, v17")
    rbf(k, 17, 17)
    k("v_mul_f32 v20, v17, v10")
    k("v_mul_f32 v21, v17, v11")
    k(f"v_mul_f32 v20, {fhex(LOG2E)}, v20")
    k(f"v_mul_f32 v21, {fhex(INV2PI)}, v21")
    k("v_lshlrev_b32 v9, 2, v1")
    k("s_cmp_ge_u32 s15, 2")
    k(f"s_cbranch_scc1 {lX}")
    cexp(k, 22, 23, 20, 21, 8, 24)
    k("v_mov_b32 v30, 0x00003f80")
    k(f"ds_write_b32 v9, v30 offset:{YB}")
    k("v_cvt_pk_bf16_f32 v31, v22, v23")
    k(f"ds_write_b32 v9, v31 offset:{YB+XP}")
    cmul(k, 24, 25, 22, 23, 22, 23)
    k("v_cvt_pk_bf16_f32 v30, v24, v25")
    k(f"ds_write_b32 v9, v30 offset:{YB+2*XP}")
    cur = {1: (22, 23), 0: (24, 25)}
    free = [(26, 27), (28, 29), (32, 33), (34, 35)]
    fi = 0
    for b in range(3, 32):
        a = cur[b & 1]; d_ = free[fi % 4]; fi += 1
        cmul(k, d_[0], d_[1], a[0], a[1], 24, 25)
        k(f"v_cvt_pk_bf16_f32 v{30 + (b&1)}, v{d_[0]}, v{d_[1]}")
        k(f"ds_write_b32 v9, v{30 + (b&1)} offset:{YB+b*XP}")
        cur[b & 1] = d_
    k(f"s_branch {lJ}")
    k(f"{lX}:")
    k("v_mul_f32 v12, v17, v12")
    k("v_mul_f32 v13, v17, v13")
    X0 = 24
    cmul(k, X0, X0+1, 14, 15, 12, 13)
    cexp(k, 22, 23, 20, 21, 1, 40)
    cexp(k, 42, 43, 20, 21, 256, 40)
    cexp(k, 44, 45, 20, 21, 512, 40)
    cexp(k, 46, 47, 20, 21, 1024, 40)
    def putX(row, r, i_):
        k(f"v_cvt_pk_bf16_f32 v{40 + (row&1)}, v{r}, -v{i_}")
        k(f"ds_write_b32 v9, v{40 + (row&1)} offset:{XA+row*XP}")
    putX(0, X0, X0+1)
    for h in range(1, 8):
        cmul(k, X0+2*h, X0+2*h+1, X0+2*h-2, X0+2*h-1, 22, 23)
        putX(h, X0+2*h, X0+2*h+1)
    for i, h in enumerate((0, 2, 4, 6)):
        cmul(k, 48, 49, X0+2*h, X0+2*h+1, 42, 43); putX(8+i, 48, 49)
    for i, h in enumerate((0, 4)):
        cmul(k, 48, 49, X0+2*h, X0+2*h+1, 44, 45); putX(12+i, 48, 49)
        cmul(k, 50, 51, 48, 49, 42, 43); putX(14+i, 50, 51)
    cmul(k, 48, 49, X0, X0+1, 46, 47); putX(16, 48, 49)
    cmul(k, 50, 51, 48, 49, 42, 43); putX(17, 50, 51)
    cmul(k, 50, 51, 48, 49, 44, 45); putX(18, 50, 51)
    cmul(k, 52, 53, 50, 51, 42, 43); putX(19, 52, 53)
    cmul(k, 52, 53, 48, 49, 46, 47); putX(20, 52, 53)
    k(f"{lJ}:")
    k("v_and_b32 v2, 15, v0")
    k("v_bfe_u32 v3, v0, 4, 2")
    k(f"v_mul_u32_u24 v4, {XP}, v2")
    k("v_lshl_add_u32 v4, v3, 4, v4")
    k("s_lshr_b32 s3, s15, 1")
    k(f"s_mul_i32 s3, s3, {16*XP}")
    k("v_add_u32 v5, s3, v4")
    k("s_and_b32 s10, s15, 1")
    k(f"s_mul_i32 s11, s10, {16*XP}")
    k(f"s_add_u32 s11, s11, {YB}")
    k("v_add_u32 v6, s11, v4")
    k("s_waitcnt lgkmcnt(0)")
    k("s_barrier")
    for ks in range(4):
        k(f"ds_read_b128 v[{8+8*ks}:{11+8*ks}], v6 offset:{64*ks}")
        k(f"ds_read_b128 v[{12+8*ks}:{15+8*ks}], v5 offset:{64*ks}")
    for ks in range(8):
        r = 8 + 8*(ks % 4)
        k(f"s_waitcnt lgkmcnt({6 if ks < 5 else (7-ks)*2})")
        c = "0" if ks == 0 else "v[40:43]"
        k(f"v_mfma_f32_16x16x32_bf16 v[40:43], v[{r}:{r+3}], v[{r+4}:{r+7}], {c}")
        if ks < 4:
            k(f"ds_read_b128 v[{r}:{r+3}], v6 offset:{64*(ks+4)}")
            k(f"ds_read_b128 v[{r+4}:{r+7}], v5 offset:{64*(ks+4)}")
    k("s_lshr_b32 s3, s15, 1")
    k("s_lshl_b32 s3, s3, 4")
    k("v_add_u32 v7, s3, v2")
    k("v_mov_b32 v44, v7")
    k("v_lshlrev_b32 v45, 1, v7")
    k("v_subrev_u32 v45, 8, v45")
    k("v_max_i32 v44, v44, v45")
    k("v_lshlrev_b32 v45, 2, v7")
    k("v_subrev_u32 v45, 32, v45")
    k("v_max_i32 v44, v44, v45")
    k("v_lshlrev_b32 v45, 3, v7")
    k("v_subrev_u32 v45, 96, v45")
    k("v_max_i32 v44, v44, v45")
    k("v_min_i32 v44, 71, v44")
    k("v_lshlrev_b32 v44, 6, v44")
    k("v_lshl_add_u32 v44, v3, 3, v44")
    k("s_lshl_b32 s10, s10, 5")
    k("v_add_u32 v44, s10, v44")
    k("v_cvt_pk_bf16_f32 v46, v40, v41")
    k("v_cvt_pk_bf16_f32 v47, v42, v43")
    k(f"ds_write_b64 v44, v[46:47] offset:{TB}")
    k("s_waitcnt lgkmcnt(0)")
    k("s_barrier")
    for e in range(8): k(f"ds_read_u16 v{16+e}, v{G+e} offset:{TB}")
    k("v_lshlrev_b32 v1, 4, v0")
    for r in range(40, 44): k(f"v_mov_b32 v{r}, 0")
    k("v_lshrrev_b32 v5, 2, v0")
    k(f"v_mul_u32_u24 v5, {CP}, v5")
    k("v_and_b32 v6, 3, v0")
    k("v_lshl_add_u32 v5, v6, 4, v5")
    k("v_cmp_gt_u32 vcc, 32, v0")
    k("s_and_saveexec_b64 s[10:11], vcc")
    k("ds_write_b128 v5, v[40:43] offset:4096")
    k("s_mov_b64 exec, s[10:11]")
    k("s_waitcnt lgkmcnt(0)")
    for j in range(4): k(f"v_lshl_or_b32 v{8+j}, v{17+2*j}, 16, v{16+2*j}")
    k("ds_write_b128 v1, v[8:11]")
    k("s_waitcnt lgkmcnt(0)")
    k("s_barrier")
    k("ds_read_b128 v[12:15], v1 offset:16")
    k("v_cmp_gt_u32 vcc, 160, v0")
    k("s_and_saveexec_b64 s[10:11], vcc")
    k(f"ds_write_b128 v1, v[40:43] offset:{UB}")
    k("s_mov_b64 exec, s[10:11]")
    k("s_waitcnt lgkmcnt(0)")
    E, O, O2 = 44, 52, 60
    for j in range(6): k(f"v_mov_b32 v{E+j}, v{9+j}")
    for j in range(6): k(f"v_alignbit_b32 v{O+j}, v{9+j}, v{8+j}, 16")
    for j in range(6): k(f"v_alignbit_b32 v{O2+j}, v{10+j}, v{9+j}, 16")
    src = {4: 10, 2: E, 6: E+2, 1: O, 5: O+2, 3: O2, 7: O2+2}
    for c, r in src.items():
        k(f"ds_write_b128 v1, v[{r}:{r+3}] offset:{c*CP}")
    k("v_and_b32 v5, 7, v2")
    k("v_sub_u32 v5, 7, v5")
    k(f"v_mul_u32_u24 v5, {CP}, v5")
    k("v_lshrrev_b32 v6, 3, v2")
    k("v_sub_u32 v6, v3, v6")
    k("v_add_u32 v6, 1, v6")
    k("v_lshl_add_u32 v5, v6, 4, v5")
    k(f"v_mul_u32_u24 v6, {UP}, v2")
    k("v_lshl_add_u32 v6, v3, 4, v6")
    k(f"v_add_u32 v6, {UB}, v6")
    k("v_lshrrev_b32 v7, 3, v0")
    k(f"v_mul_u32_u24 v7, {UP}, v7")
    k("v_and_b32 v20, 7, v0")
    k("v_lshl_add_u32 v7, v20, 4, v7")
    k("v_lshrrev_b32 v20, 1, v0")
    k("v_lshlrev_b32 v20, 6, v20")
    k("v_and_b32 v21, 1, v0")
    k("v_lshl_add_u32 v20, v21, 4, v20")
    k(f"s_mul_i32 s3, s14, {UXP}")
    k("v_and_b32 v21, 63, v0")
    k("v_lshlrev_b32 v21, 2, v21")
    k("v_lshlrev_b32 v104, 16, v104")
    k(f"s_mov_b32 s12, {SPIN}")
    pl = k.label('poll'); pd = k.label('pd')
    k("s_cmp_lg_u32 s15, 0")
    k(f"s_cbranch_scc1 {pd}")
    k(f"{pl}:")
    k(f"buffer_load_dword v22, v21, s[36:39], 0 offen {SC}")
    k("s_waitcnt vmcnt(0)")
    k("v_cmp_ne_u32 vcc, 0x00010001, v22")
    k("s_sub_u32 s12, s12, 1")
    k("s_cmp_eq_u32 s12, 0")
    k(f"s_cbranch_scc1 {pd}")
    k("s_nop 3")
    k(f"s_cbranch_vccz {pd}")
    k(f"s_sleep {POLL_SLEEP}")
    k(f"s_branch {pl}")
    k(f"{pd}:")
    k("s_barrier")
    k(f"buffer_load_dwordx4 v[40:43], v20, s[32:35], s3 offen {SC}")
    k(f"buffer_load_dwordx4 v[16:19], v20, s[32:35], s3 offen offset:32 {SC}")
    XF, UF = 68, 76
    k("s_waitcnt vmcnt(1)")
    k(f"ds_write_b128 v7, v[40:43] offset:{UB + 16*UP}")
    k("s_waitcnt lgkmcnt(0)")
    k("s_barrier")
    for j in range(4):
        k(f"v_lshlrev_b32 v{UF+2*j}, 16, v{40+j}")
        k(f"v_and_b32 v{UF+2*j+1}, 0xffff0000, v{40+j}")
    for e in range(8): k(f"v_mul_f32 v{UF+e}, v{UF+e}, v104")
    for j in range(4): k(f"v_cvt_pk_bf16_f32 v{84+j}, v{UF+2*j}, v{UF+2*j+1}")
    k("s_waitcnt vmcnt(0)")
    for j in range(4):
        k(f"v_lshlrev_b32 v{XF+2*j}, 16, v{16+j}")
        k(f"v_and_b32 v{XF+2*j+1}, 0xffff0000, v{16+j}")
    ACC, AF, BF = 8, 40, 88
    ranges = [(0, 12), (12, 24), (24, 40), (40, 64)]
    labs = [k.label('cw') for _ in range(4)]
    ljoin = k.label('cj')
    for w in range(1, 4):
        k(f"s_cmp_eq_u32 s15, {w}")
        k(f"s_cbranch_scc1 {labs[w]}")
    def ra(phi):
        r = AF + 4*(phi % 6)
        return f"ds_read_b128 v[{r}:{r+3}], v5 offset:{32*(127-phi)}"
    def rb(kap, nt):
        r = BF + 8*(kap & 1) + 4*nt
        off = (16*nt + 16 - (kap >> 1))*UP + (64 if kap % 2 == 0 else 0)
        return f"ds_read_b128 v[{r}:{r+3}], v6 offset:{off}"
    for w in range(4):
        k(f"{labs[w]}:")
        k0, k1_ = ranges[w]
        nts = lambda kap: [0, 1] if kap < 32 else [1]
        def loads(kap, first):
            out = [rb(kap, nt) for nt in nts(kap)]
            for mt in (range(4) if first else (2, 3)):
                p = 2*kap - 2 + mt
                if p >= 0: out.append(ra(p))
            return out
        inited = set()
        for ins in loads(k0, True): k(ins)
        for kap in range(k0, k1_):
            k("s_waitcnt lgkmcnt(0)")
            nxt = loads(kap+1, False) if kap+1 < k1_ else []
            ms = []
            for mt in range(4):
                phi = 2*kap - 2 + mt
                if phi < 0: continue
                for nt in nts(kap):
                    a = ACC + (mt*2+nt)*4
                    ar = AF + 4*(phi % 6); br = BF + 8*(kap & 1) + 4*nt
                    c = f"v[{a}:{a+3}]" if (mt, nt) in inited else "0"
                    inited.add((mt, nt))
                    ms.append(f"v_mfma_f32_16x16x32_bf16 v[{a}:{a+3}], v[{ar}:{ar+3}], v[{br}:{br+3}], {c}")
            for i_, m in enumerate(ms):
                k(m)
                if i_ < len(nxt): k(nxt[i_])
            for ins in nxt[len(ms):]: k(ins)
        k(f"v_mul_u32_u24 v7, {YP}, v2")
        k("v_lshl_add_u32 v7, v3, 4, v7")
        k("s_barrier")
        k.nop(8)
        for mt in range(4):
            for nt in range(2):
                if (mt, nt) not in inited: continue
                a = ACC + (mt*2+nt)*4
                off = w*32*YP + 16*nt*YP + 64*mt - (16*YP if w == 3 else 0)
                k(f"ds_write_b128 v7, v[{a}:{a+3}] offset:{off}")
        if w < 3: k(f"s_branch {ljoin}")
    k(f"{ljoin}:")
    k("v_lshrrev_b32 v5, 3, v0")
    k(f"v_mul_u32_u24 v5, {YP}, v5")
    k("v_and_b32 v6, 7, v0")
    k("v_lshl_add_u32 v5, v6, 5, v5")
    k("s_lshl_b32 s3, s14, 12")
    k("s_waitcnt lgkmcnt(0)")
    k("s_barrier")
    for w in range(3):
        k(f"ds_read_b128 v[{8+8*w}:{11+8*w}], v5 offset:{w*32*YP}")
        k(f"ds_read_b128 v[{12+8*w}:{15+8*w}], v5 offset:{w*32*YP+16}")
    for r in range(32, 40): k(f"v_mov_b32 v{r}, 0")
    sk = k.label('sk')
    k("s_cmp_lt_u32 s15, 2")
    k(f"s_cbranch_scc1 {sk}")
    k(f"ds_read_b128 v[32:35], v5 offset:{3*32*YP - 16*YP}")
    k(f"ds_read_b128 v[36:39], v5 offset:{3*32*YP - 16*YP + 16}")
    k(f"{sk}:")
    k("s_waitcnt lgkmcnt(0)")
    for e in range(8):
        k(f"v_add_f32 v{8+e}, v{8+e}, v{16+e}")
        k(f"v_add_f32 v{24+e}, v{24+e}, v{32+e}")
    for e in range(8): k(f"v_add_f32 v{8+e}, v{8+e}, v{24+e}")
    for j in range(4): k(f"v_cvt_pk_bf16_f32 v{16+j}, v{8+2*j}, v{9+2*j}")
    for j in range(4):
        k(f"v_lshlrev_b32 v{8+2*j}, 16, v{16+j}")
        k(f"v_and_b32 v{9+2*j}, 0xffff0000, v{16+j}")
        k(f"v_lshlrev_b32 v{24+2*j}, 16, v{84+j}")
        k(f"v_and_b32 v{25+2*j}, 0xffff0000, v{84+j}")
    for e in range(8): k(f"v_add_f32 v{8+e}, v{8+e}, v{24+e}")
    for j in range(4): k(f"v_cvt_pk_bf16_f32 v{16+j}, v{8+2*j}, v{9+2*j}")
    for j in range(4):
        k(f"v_lshlrev_b32 v{8+2*j}, 16, v{16+j}")
        k(f"v_and_b32 v{9+2*j}, 0xffff0000, v{16+j}")
    for e in range(8): k(f"v_add_f32 v{8+e}, v{8+e}, v{XF+e}")
    for j in range(4): k(f"v_cvt_pk_bf16_f32 v{16+j}, v{8+2*j}, v{9+2*j}")
    k("buffer_store_dwordx4 v[16:19], v1, s[44:47], s3 offen")
    k("s_endpgm")

    k(f"{lW1}:")
    k("s_load_dwordx8 s[64:71], s[0:1], 80")
    k(f"s_cmp_ge_u32 s2, {b5}")
    k(f"s_cbranch_scc1 {lPF}")
    k(f"s_cmp_ge_u32 s2, {b4}")
    k(f"s_cbranch_scc1 {lCW}")
    k(f"s_cmp_ge_u32 s2, {b3}")
    k(f"s_cbranch_scc1 {lW2}")
    k(f"s_sub_u32 s3, s2, {b2}")
    k("s_waitcnt lgkmcnt(0)")
    k.srd(32, 6, clear[1], clear[0])
    for r in range(20, 24): k(f"v_mov_b32 v{r}, -1")
    k("s_lshl_b32 s13, s3, 12")
    k("v_lshlrev_b32 v24, 4, v0")
    k("buffer_store_dwordx4 v[20:23], v24, s[32:35], s13 offen")
    strip_transpose(k, 64, D, F, WS_WINT, 3)
    k(f"{lW2}:")
    k(f"s_sub_u32 s3, s2, {b3}")
    k("s_waitcnt lgkmcnt(0)")
    strip_transpose(k, 70, FH, D, WS_WOUTT, 3)
    k(f"{lCW}:")
    k(f"s_sub_u32 s3, s2, {b4}")
    k("v_lshrrev_b32 v1, 3, v0")
    k("v_and_b32 v2, 7, v0")
    k(f"v_mul_u32_u24 v3, {F*2}, v1")
    k("v_lshl_add_u32 v3, v2, 4, v3")
    k("s_lshl_b32 s8, s3, 7")
    k("s_waitcnt lgkmcnt(0)")
    k.srd(16, 64, D*F*2)
    k.srd(20, 6, F*4, cw_off)
    for q in range(18):
        k(f"buffer_load_dwordx4 v[{24+4*q}:{27+4*q}], v3, s[16:19], s8 offen")
        k(f"s_add_u32 s8, s8, {32*F*2}")
    for e in range(8): k(f"v_mov_b32 v{8+e}, 0")
    for q in range(18):
        k(f"s_waitcnt vmcnt({17-q})")
        for j in range(4):
            k(f"v_lshlrev_b32 v4, 16, v{24+4*q+j}")
            k(f"v_and_b32 v5, 0xffff0000, v{24+4*q+j}")
            k(f"v_add_f32 v{8+2*j}, v{8+2*j}, v4")
            k(f"v_add_f32 v{9+2*j}, v{9+2*j}, v5")
    k("v_lshlrev_b32 v4, 5, v0")
    k("ds_write_b128 v4, v[8:11]")
    k("ds_write_b128 v4, v[12:15] offset:16")
    k("s_waitcnt lgkmcnt(0)")
    k("s_barrier")
    k("v_cmp_gt_u32 vcc, 64, v0")
    k("s_and_saveexec_b64 s[10:11], vcc")
    k(f"s_cbranch_execz {done}")
    k("v_lshlrev_b32 v4, 2, v0")
    for g in range(32): k(f"ds_read_b32 v{24+g}, v4 offset:{256*g}")
    k("s_waitcnt lgkmcnt(0)")
    for g in range(1, 32): k(f"v_add_f32 v24, v24, v{24+g}")
    k("v_cvt_pk_bf16_f32 v5, v24, v24")
    k("v_lshlrev_b32 v5, 16, v5")
    k("v_sub_f32 v6, v24, v5")
    k("v_cvt_pk_bf16_f32 v5, v24, v6")
    k("s_lshl_b32 s8, s3, 8")
    k("buffer_store_dword v5, v4, s[20:23], s8 offen")
    k("s_endpgm")
    k(f"{lPF}:")
    k(f"s_sub_u32 s3, s2, {b5}")
    k("s_lshl_b32 s3, s3, 16")
    k("v_lshlrev_b32 v1, 4, v0")
    k("s_waitcnt lgkmcnt(0)")
    k.srd(8, 66, L*L*2)
    for j in range(16):
        k(f"buffer_load_dwordx4 v[{8+4*j}:{11+4*j}], v1, s[8:11], s3 offen")
        k("s_add_u32 s3, s3, 4096")
    k("s_waitcnt vmcnt(0)")
    k("s_endpgm")
    k(f"{done}:")
    k("s_endpgm")
    roles = [["R",0,b1],["C",b1,b2],["w1",b2,b3],["w2",b3,b4],["cw",b4,b5],["pf",b5,b6]]
    return k, b6, 40960, roles
```

```python
import sys, math
sys.path.insert(0, 'work')
from gcore import *
import gen_v0 as v0
from gen1 import PAIR9, PLAIN, PAIR5, groups_of, decode_16x16
rbf = v0.rbf

HO_BASE = WS_STAT
HO_ST3 = 0
HO_LN2 = 256*1024
HO_Z2F = HO_LN2 + 9*16*1024
HO_ZGF = HO_Z2F + 256*128
HO_BYTES = HO_ZGF + 256*128
WS_CWP = 32*MB
WS_HTM = 72*MB
SC = "sc1"
SPIN = 0x100000

class Role:
    def __init__(self, k, name):
        self.k, self.name, self.nb = k, name, 0
    def bar(self, n=1):
        for _ in range(n):
            self.k("s_barrier"); self.nb += 1

def pk(op, d, a, b, c=None, mods=''):
    def r(x): return x if isinstance(x, str) else f"v[{x}:{x+1}]"
    s = f"v_pk_{op}_f32 {r(d)}, {r(a)}, {r(b)}"
    if c is not None: s += f", {r(c)}"
    return s + (' ' + mods if mods else '')

def mega_kernel(name='mega_kernel', NA=4, stamps=False, PF=True, DET=False, GF=16, RINGS=(10, 8), ROT3=True, WARMP=True, LSC=SC, MAP3=True, WARM2=False, PSPREAD=15, FAKEQ=False, FAKEP=False, ZEXP=0, HWARM=False, P1DET=False, GINT=False, WARM3=0, CPFW=False, HFIRST=True, WFLAG=False, REPL=True, PB=1):
    cA = Cfg([0,1,2,3,4], [5,6,7,8], 2, 144, 4, PAIR9, PLAIN, swap=False)
    P5S, Q5S = 9216, 8192
    P5N, Q5N = RINGS
    Q5B = P5S*P5N
    SCR = cA.LDS
    SC_RS2 = SCR
    SC_NM2 = SC_RS2 + 512
    SC_P3 = SC_NM2 + 512
    SC_RS3 = SC_P3 + 2048
    SC_MR3 = SC_RS3 + 512
    SC_CW1 = SC_MR3 + 512
    SC_CW2 = SC_CW1 + 768
    LDS = max(SC_CW2 + 768, Q5B + Q5S*Q5N)
    k = Kernel(name, vgpr=164, sgpr=96)
    done = k.label('done'); lP = k.label('ldP'); lQ = k.label('ldQ'); lX = k.label('aux'); c1 = k.label('c1')
    k("s_cmp_ge_u32 s2, 256")
    k(f"s_cbranch_scc1 {done}")
    k(f"s_load_dwordx2 s[6:7], s[0:1], {KA['ws']}")
    k(f"s_load_dwordx4 s[72:75], s[0:1], {KA['wsp']}")
    k(f"s_load_dwordx2 s[4:5], s[0:1], {KA['out']}")
    if stamps:
        k("s_memrealtime s[48:49]")
        k.sgpr = 102
    k("v_lshrrev_b32 v1, 6, v0")
    k("v_and_b32 v2, 63, v0")
    decode_16x16(k)
    k("v_readfirstlane_b32 s15, v1")
    if MAP3:
        k("s_lshr_b32 s77, s2, 3")
        k("s_and_b32 s76, s77, 7")
        k("s_mul_i32 s76, s76, 72")
        k("s_lshr_b32 s77, s77, 3")
        k("s_and_b32 s14, s2, 7")
        k("s_lshl_b32 s14, s14, 2")
        k("s_add_u32 s77, s77, s14")
        k("s_lshl_b32 s77, s77, 6")
    else:
        k("s_and_b32 s76, s10, 7")
        k("s_mul_i32 s76, s76, 72")
        k("s_lshr_b32 s77, s10, 3")
        k("s_lshl_b32 s77, s77, 6")
        k("s_add_u32 s77, s77, s13")
    if HFIRST:
        k("s_add_u32 s15, s15, 8")
        k("s_cmp_ge_u32 s15, 11")
        k("s_cselect_b32 s14, 11, 0")
        k("s_sub_u32 s15, s15, s14")
    k("s_cmp_eq_u32 s15, 8")
    k(f"s_cbranch_scc1 {lP}")
    k("s_cmp_eq_u32 s15, 9")
    k(f"s_cbranch_scc1 {lQ}")
    k("s_cmp_eq_u32 s15, 10")
    k(f"s_cbranch_scc1 {lX}")
    nbs = {}
    STR = [48+2*i for i in range(8)] + [84+2*i for i in range(8)]
    class Stamper:
        def __init__(self): self.n = 1
        def __call__(self):
            if stamps:
                r = STR[self.n]; self.n += 1
                k(f"s_memrealtime s[{r}:{r+1}]")
        def dump(self):
            if not stamps: return
            k("s_waitcnt vmcnt(0)")
            self()
            k("s_waitcnt lgkmcnt(0)")
            k.srd(24, 6, 1 << 20, WS_STAMP)
            k("s_lshl_b32 s42, s2, 4")
            k("s_add_u32 s42, s42, s15")
            k("s_lshl_b32 s42, s42, 6")
            k("v_mov_b32 v10, 0")
            for i in range(16): k(f"v_mov_b32 v{16+i}, s{STR[i] if i < self.n else STR[0]}")
            for i in range(4): k(f"buffer_store_dwordx4 v[{16+4*i}:{19+4*i}], v10, s[24:27], s42 offen offset:{16*i}")
    masks = {3: 64, 2: 66, 1: 68, 0: 70}
    def make_masks():
        for b, sr in masks.items():
            k(f"v_and_b32 v12, {1 << b}, v3")
            k(f"v_cmp_ne_u32 s[{sr}:{sr+1}], 0, v12")
    def reduce_scatter(V, W):
        cnt = 16
        for b, ctl in [(3, "row_ror:8"), (2, "row_half_mirror"), (1, "quad_perm:[2,3,0,1]"), (0, "quad_perm:[1,0,3,2]")]:
            half = cnt//2; sr = masks[b]
            for j in range(half):
                k(f"v_cndmask_b32 v{W+j}, v{V+j+half}, v{V+j}, s[{sr}:{sr+1}]")
                k(f"v_cndmask_b32 v{V+j}, v{V+j}, v{V+j+half}, s[{sr}:{sr+1}]")
            k.nop(2)
            for j in range(half):
                k(f"v_add_f32_dpp v{V+j}, v{W+j}, v{V+j} {ctl} row_mask:0xf bank_mask:0xf")
            cnt = half

    comp_addrs(k, cA)
    k("v_lshrrev_b32 v12, 2, v3")
    k("v_and_b32 v13, 3, v3")
    k("v_and_b32 v14, 1, v4")
    k("v_lshl_or_b32 v14, v14, 2, v12")
    k("v_lshlrev_b32 v14, 1, v14")
    k("v_lshrrev_b32 v15, 1, v13")
    k("s_lshl_b32 s42, s40, 2")
    k("v_add_u32 v15, s42, v15")
    k("v_xor_b32 v15, v15, v14")
    k("v_lshlrev_b32 v15, 4, v15")
    k("v_and_b32 v13, 1, v13")
    k("v_lshl_add_u32 v15, v13, 3, v15")
    k("v_lshl_add_u32 v12, v4, 3, v12")
    k("v_lshl_add_u32 v10, v12, 8, v15")
    k(f"v_add_u32 v10, {cA.Q_BASE}, v10")
    k("v_xor_b32 v11, 32, v10")
    make_masks()
    k(f"s_mov_b32 s78, {fhex(-GC2 if ZEXP else GC2)}")
    k(f"s_mov_b32 s79, {fhex(-GC1 if ZEXP else GC1)}")
    k("s_waitcnt lgkmcnt(0)")
    k.srd(20, 6, D*L*2, WS_HTM)
    if HWARM:
        k("v_lshrrev_b32 v12, 1, v0")
        k("v_lshlrev_b32 v12, 12, v12")
        k("v_and_b32 v13, 1, v0")
        k("v_lshl_add_u32 v12, v13, 7, v12")
        k("s_and_b32 s42, s10, 3")
        k(f"s_mul_i32 s42, s42, {144*4096}")
        k("s_lshl_b32 s43, s13, 1")
        k("s_add_u32 s42, s42, s43")
        k("v_cmp_gt_u32 vcc, 288, v0")
        k("s_and_saveexec_b64 s[44:45], vcc")
        lnw = k.label('nw')
        k(f"s_cbranch_execz {lnw}")
        k("buffer_load_dword v160, v12, s[20:23], s42 offen")
        k(f"{lnw}:")
        k("s_mov_b64 exec, s[44:45]")
    k.srd(24, 6, FH*L*2, WS_Z2T)
    k.srd(28, 6, L*FH*2, WS_ZG)
    k.srd(32, 74, L*2)
    k.srd(80, 4, L*D*2)
    if CPFW:
        k.srd(36, 72, L*L*2)
        k("v_lshlrev_b32 v15, 7, v2")
        k("s_lshl_b32 s46, s2, 3")
        k("s_add_u32 s46, s46, s15")
        k("s_lshl_b32 s46, s46, 12")
    k("s_cmp_eq_u32 s41, 1")
    k(f"s_cbranch_scc1 {c1}")

    def compute(ci):
        R = Role(k, f'c{ci}')
        ST = Stamper()
        A1 = 16; A2 = 56; S0 = 96; S1 = 124; T = 152
        nm = len(cA.cls[ci])
        class CompM(Comp):
            tr = False
            def reads(self, si, slot, ks):
                if not self.tr: return Comp.reads(self, si, slot, ks)
                c = self.cfg; S = self.S[si]; out = []
                for n in range(2):
                    for x in range(2):
                        out.append(f"ds_read_b64_tr_b16 v[{S+4*n+2*x}:{S+4*n+2*x+1}], v{10+n} offset:{slot*c.Q_SLOT + (32*ks+4*x)*256}")
                for m in range(self.nm):
                    r = S + 8 + 4*m
                    out.append(f"ds_read_b128 v[{r}:{r+3}], v{self.va+ks} offset:{slot*c.P_SLOT + m*2048}")
                return out
            def st(self, slot, ACC, zero=False, last=False, swap=False, pre_bar=None, extra=None, per=(1, 2)):
                self.cfg.swap = swap
                self.interleave(self.mfmas(0, ACC, zero), self.reads(1, slot, 1), extra, per[0])
                k("s_waitcnt lgkmcnt(0)")
                if pre_bar:
                    if DET: ST()
                    k(pre_bar)
                    if DET: ST()
                R.bar()
                self.interleave(self.mfmas(1, ACC), [] if last else self.reads(0, (slot+1) % self.cfg.NS, 0), extra, per[1])
                if not last: k("s_waitcnt lgkmcnt(0)")
                self.cfg.swap = False
        def loop(n, body):
            k(f"s_mov_b32 s43, {n}")
            lp = k.label('lp'); k(f"{lp}:")
            nb0 = R.nb
            body()
            R.nb += (n-1)*(R.nb - nb0)
            k("s_sub_u32 s43, s43, 1")
            k("s_cmp_lg_u32 s43, 0")
            k(f"s_cbranch_scc1 {lp}")
        C = CompM(k, cA, ci, S0, S1)
        C.tr = True
        R.bar()
        ST()
        for r in C.reads(0, 0, 0): k(r)
        k("s_waitcnt lgkmcnt(0)")
        C.st(0, A2, zero=True, swap=True)
        if P1DET:
            for g in range(1, 9):
                ST(); C.st(g % 4, A2, swap=True)
            ST()
            _st = ST
            class _N:
                def __call__(self): pass
                def dump(self): _st.dump()
            ST = _N()
        else:
            def p1body():
                for i in range(4):
                    if CPFW:
                        sk = k.label('pfs')
                        k(f"s_cmp_lg_u32 s40, {i}")
                        k(f"s_cbranch_scc1 {sk}")
                        k("s_mov_b64 exec, 0xffff")
                        k("buffer_load_dword v1, v15, s[36:39], s46 offen")
                        k("s_mov_b64 exec, -1")
                        k("s_add_u32 s46, s46, 2048")
                        k(f"{sk}:")
                    C.st((1+i) % 4, A2, swap=True)
            loop(2, p1body)
            ST()
        def ext_step(ACC, swap):
            QX = S1; PX = S1 + 4
            k("v_lshlrev_b32 v12, 2, v3")
            k("s_lshl_b32 s42, s40, 7")
            k(f"s_add_u32 s42, s42, {SC_NM2}")
            k("v_add_u32 v13, s42, v12")
            k(f"ds_read_b32 v{QX}, v13")
            k(f"ds_read_b32 v{QX+2}, v13 offset:64")
            k(f"v_add_u32 v12, {SC_CW2 if swap else SC_CW1}, v12")
            if not swap:
                k("v_lshrrev_b32 v13, 2, v3")
                k("v_lshlrev_b32 v13, 4, v13")
                k("v_add_u32 v13, v13, v12")
            for m in range(nm):
                if swap:
                    k(f"ds_read_b32 v{PX+2*m}, v12 offset:{cA.cls[ci][m]*64}")
                else:
                    base, e = PAIR9[cA.cls[ci][m]]
                    if e is None: k(f"ds_read_b32 v{PX+2*m}, v12 offset:{base*4}")
                    else:         k(f"ds_read_b32 v{PX+2*m}, v13 offset:{(base+4*e)*4}")
                k(f"v_mov_b32 v{PX+2*m+1}, 0")
            k(f"v_mov_b32 v{QX+1}, 0"); k(f"v_mov_b32 v{QX+3}, 0")
            k("v_cmp_eq_u32 vcc, 0, v4")
            k("s_nop 0")
            k("s_waitcnt lgkmcnt(0)")
            k(f"v_cndmask_b32 v{QX}, 0, v{QX}, vcc")
            k(f"v_cndmask_b32 v{QX+2}, 0, v{QX+2}, vcc")
            k.nop(2)
            for m in range(nm):
                for n in range(2):
                    a = ACC + (m*2+n)*4
                    p = PX + 2*m; q = QX + 2*n
                    x, y = (q, p) if swap else (p, q)
                    k(f"v_mfma_f32_16x16x16_bf16 v[{a}:{a+3}], v[{x}:{x+1}], v[{y}:{y+1}], v[{a}:{a+3}]")
        RS = S1 + 16
        k("v_lshlrev_b32 v14, 4, v4")
        k("s_lshl_b32 s42, s40, 7")
        k("v_add_u32 v14, s42, v14")
        k(f"v_add_u32 v15, {SC_RS2}, v14")
        k(f"ds_read_b128 v[{RS}:{RS+3}], v15")
        k(f"ds_read_b128 v[{RS+4}:{RS+7}], v15 offset:64")
        ext_step(A2, True)
        Vv = S1; Ww = S1 + 16
        k("v_bfe_u32 v12, v3, 2, 1")
        k("v_lshlrev_b32 v12, 4, v12")
        k("v_lshl_add_u32 v12, v4, 2, v12")
        k("v_and_b32 v13, 3, v3")
        k("v_add_u32 v12, v12, v13")
        k("v_lshrrev_b32 v13, 3, v3")
        k("v_lshl_add_u32 v12, v12, 1, v13")
        k("v_lshlrev_b32 v12, 2, v12")
        k("s_lshl_b32 s42, s40, 8")
        k(f"s_add_u32 s42, s42, {SC_P3 + ci*1024}")
        k("v_add_u32 v12, s42, v12")
        for m in range(nm):
            xs = [A2 + m*8 + 2*j for j in range(4)]
            ts = [T + 2*j for j in range(4)]
            for j, x in enumerate(xs): k(pk('mul', x, x, RS + 2*j))
            for x, t in zip(xs, ts): k(pk('mul', t, x, x))
            for x, t in zip(xs, ts): k(pk('fma', t, t, "s[78:79]", "s[78:79]", "op_sel:[0,0,1] op_sel_hi:[1,0,1]"))
            for x, t in zip(xs, ts): k(pk('mul', t, t, x))
            for t in ts: k(f"v_exp_f32 v{t}, v{t}"); k(f"v_exp_f32 v{t+1}, v{t+1}")
            for t in ts: k(pk('add', t, t, "1.0", None, "op_sel_hi:[1,0]"))
            for t in ts: k(f"v_rcp_f32 v{t}, v{t}"); k(f"v_rcp_f32 v{t+1}, v{t+1}")
            for x, t in zip(xs, ts):
                k(pk('fma', x, x, t, x, "neg_lo:[1,0,0] neg_hi:[1,0,0]") if ZEXP else pk('mul', x, x, t))
            for j, x in enumerate(xs):
                if m == 0:
                    k(f"v_pk_mov_b32 v[{Vv+2*j}:{Vv+2*j+1}], v[{x}:{x+1}], v[{x}:{x+1}] op_sel:[0,1]")
                    k(pk('mul', Vv+8+2*j, x, x))
                else:
                    k(pk('add', Vv+2*j, Vv+2*j, x))
                    k(pk('fma', Vv+8+2*j, x, x, Vv+8+2*j))
        reduce_scatter(Vv, Ww)
        k(f"ds_write_b32 v12, v{Vv}")
        k("s_waitcnt lgkmcnt(0)")
        R.bar()
        ST()
        for g in range(9, 9+NA):
            C.st(g % 4, A1, zero=(g == 9))
        ST()
        CR = S1; CM = S1 + 8
        k(f"v_add_u32 v15, {SC_RS3}, v14")
        for n in range(2):
            k(f"ds_read_b128 v[{CR+4*n}:{CR+4*n+3}], v15 offset:{64*n}")
            k(f"ds_read_b128 v[{CM+4*n}:{CM+4*n+3}], v15 offset:{512 + 64*n}")
        k("v_lshlrev_b32 v13, 6, v3")
        k("v_lshl_add_u32 v13, v4, 4, v13")
        k("s_lshl_b32 s42, s10, 6")
        k("s_lshl_b32 s44, s11, 2")
        k("s_add_u32 s42, s42, s44")
        k("s_add_u32 s42, s42, s40")
        k("s_mul_i32 s42, s42, 9216")
        k("v_add_u32 v13, s42, v13")
        k("s_waitcnt lgkmcnt(0)")
        for m in range(nm):
            a = A2 + m*8
            for j in range(4):
                k(pk('mul', a+2*j, a+2*j, CR+2*j) if ZEXP == 2 else pk('fma', a+2*j, a+2*j, CR+2*j, CM+2*j, "neg_lo:[0,0,1] neg_hi:[0,0,1]"))
            for j in range(4):
                k(f"v_cvt_pk_bf16_f32 v{a+j}, v{a+2*j}, v{a+2*j+1}")
            k(f"s_mov_b32 s44, {cA.cls[ci][m]*1024}")
            k("s_nop 0")
            k(f"v_permlane32_swap_b32 v{a}, v{a+2}")
            k(f"v_permlane32_swap_b32 v{a+1}, v{a+3}")
            k("s_nop 0")
            k(f"v_permlane16_swap_b32 v{a}, v{a+2}")
            k(f"v_permlane16_swap_b32 v{a+1}, v{a+3}")
            k(f"buffer_store_dwordx4 v[{a}:{a+3}], v13, s[24:27], s44 offen {SC}")
        ST()
        for g in range(9+NA, 18):
            C.st(g % 4, A1, last=(g == 17), pre_bar="s_waitcnt vmcnt(0)" if g == GF else None)
        ST()
        KC = S1 + 16
        k("v_lshlrev_b32 v12, 2, v3")
        k("s_lshl_b32 s42, s40, 7")
        k(f"s_add_u32 s42, s42, {SC_RS2}")
        k("v_add_u32 v12, s42, v12")
        k(f"ds_read_b32 v{KC+2}, v12")
        k(f"ds_read_b32 v{KC+6}, v12 offset:64")
        k("s_lshl_b32 s42, s40, 5")
        k("s_add_u32 s42, s42, s13")
        k("v_add_u32 v14, s42, v3")
        k("v_lshlrev_b32 v15, 1, v14")
        k(f"buffer_load_ushort v{T+8}, v15, s[32:35], 0 offen")
        k(f"buffer_load_ushort v{T+10}, v15, s[32:35], 0 offen offset:32")
        ext_step(A1, False)
        for n in range(2):
            b = KC + 4*n
            k(f"v_mul_f32 v{b+1}, {fhex(GC1)}, v{b+2}")
            k(f"v_mul_f32 v{b}, v{b+2}, v{b+2}")
            k(f"v_mul_f32 v{b}, v{b}, v{b+2}")
            k(f"v_mul_f32 v{b}, {fhex(GC2)}, v{b}")
            k(f"v_rcp_f32 v{b+2}, v{b+2}")
        k.nop(2)
        if not GINT:
            for m in range(nm):
                xs = [A1 + m*8 + 2*j for j in range(4)]
                ts = [T + 2*j for j in range(4)]
                bs = [KC + 4*(j >> 1) for j in range(4)]
                for x, t in zip(xs, ts): k(pk('mul', t, x, x))
                for t, b in zip(ts, bs): k(pk('fma', t, t, b, b, "op_sel:[0,0,1] op_sel_hi:[1,0,1]"))
                for x, t in zip(xs, ts): k(pk('mul', t, t, x))
                for t in ts: k(f"v_exp_f32 v{t}, v{t}"); k(f"v_exp_f32 v{t+1}, v{t+1}")
                for t, b in zip(ts, bs): k(pk('fma', t, t, b+2, b+2, "op_sel_hi:[1,0,0]"))
                for t in ts: k(f"v_rcp_f32 v{t}, v{t}"); k(f"v_rcp_f32 v{t+1}, v{t+1}")
                for x, t in zip(xs, ts): k(pk('mul', x, x, t))
            ex = []
        else:
            CN = [(T+4, T+5, T+6), (T+7, T+9, T+11)]
            for n in range(2):
                for j in range(3): k(f"v_mov_b32 v{CN[n][j]}, v{KC+4*n+j}")
            ex = []
            for m in range(nm):
                for n in range(2):
                    k2, k1, sd = CN[n]
                    xs = [A1 + (m*2+n)*4 + r for r in range(4)]
                    for step in range(7):
                        for r, x in enumerate(xs):
                            t = T + r
                            ex.append([f"v_mul_f32 v{t}, v{x}, v{x}", f"v_fma_f32 v{t}, v{t}, v{k2}, v{k1}", f"v_mul_f32 v{t}, v{t}, v{x}",
                                       f"v_exp_f32 v{t}, v{t}", f"v_fma_f32 v{t}, v{t}, v{sd}, v{sd}", f"v_rcp_f32 v{t}, v{t}",
                                       f"v_mul_f32 v{x}, v{x}, v{t}"][step])
        C.tr = False
        ST()
        R.bar()
        ST()
        for r in C.reads(0, 2, 0): k(r)
        k("s_waitcnt lgkmcnt(0)")
        if GINT:
            for i in range(12): C.st((2+i) % 4, A2, zero=(i == 0), extra=ex, per=(1, 1) if i % 2 else (1, 2))
            assert not ex, len(ex)
            loop(5, lambda: [C.st((2+i) % 4, A2) for i in range(4)])
        else:
            C.st(2, A2, zero=True)
            for i in range(3): C.st((3+i) % 4, A2)
            loop(7, lambda: [C.st((2+i) % 4, A2) for i in range(4)])
        ST()
        k("s_lshl_b32 s42, s11, 3")
        k("s_lshl_b32 s44, s40, 1")
        k("s_add_u32 s42, s42, s44")
        k("s_lshl_b32 s42, s42, 4")
        k("s_add_u32 s42, s42, s10")
        k("s_mul_i32 s42, s42, 4608")
        k("v_lshlrev_b32 v14, 6, v3")
        k("v_lshl_add_u32 v14, v4, 4, v14")
        k("v_add_u32 v14, s42, v14")
        k("v_lshlrev_b32 v15, 5, v3")
        k("v_lshl_add_u32 v15, v4, 3, v15")
        k("v_add_u32 v15, s42, v15")
        k("v_add_u32 v15, 4096, v15")
        k("s_waitcnt vmcnt(0)")
        k(f"v_lshlrev_b32 v{T+8}, 16, v{T+8}")
        k(f"v_lshlrev_b32 v{T+10}, 16, v{T+10}")
        k(f"s_mov_b32 s44, {16*4608}")
        k.nop(2)
        O = S0
        PB = {0: 0, 32: 1024, 80: 2048, 112: 3072}
        for gi, (ms, base) in enumerate(groups_of(cA.cls[ci], PAIR9)):
            for n in range(2):
                for mi, m in enumerate(ms):
                    a = (m*2+n)*4
                    for j in range(2): k(pk('add', A2+a+2*j, A2+a+2*j, T+8+2*n, None, "op_sel_hi:[1,0]"))
                    for j in range(2): k(pk('mul', A2+a+2*j, A2+a+2*j, A1+a+2*j))
                    for j in range(2): k(f"v_cvt_pk_bf16_f32 v{O+mi*2+j}, v{A2+a+2*j}, v{A2+a+2*j+1}")
                so = "s44" if n else "0"
                if len(ms) == 2: k(f"buffer_store_dwordx4 v[{O}:{O+3}], v14, s[28:31], {so} offen offset:{PB[base]} {SC}")
                else:            k(f"buffer_store_dwordx2 v[{O}:{O+1}], v15, s[28:31], {so} offen {SC}")
                O += 4
        if not DET: ST()
        if WFLAG:
            k.srd(24, 6, HO_BYTES, HO_BASE)
            k("s_lshl_b32 s42, s11, 4")
            k("s_add_u32 s42, s42, s10")
            k("s_lshl_b32 s42, s42, 3")
            k("s_add_u32 s42, s42, s15")
            k("s_lshl_b32 s42, s42, 2")
            k(f"s_add_u32 s42, s42, {HO_ZGF}")
            k("v_mov_b32 v12, 0")
            k("s_mov_b64 exec, 1")
            k("s_waitcnt vmcnt(0)")
            k(f"buffer_store_dword v12, v12, s[24:27], s42 offen {SC}")
            k("s_mov_b64 exec, -1")
        else:
            k("s_waitcnt vmcnt(0)")
            R.bar()
        if not DET: ST()
        tiles5 = [[0, 1], [2, 3, 4]][ci]
        n5 = len(tiles5)
        ACC = 16; ACX = 28
        BANKS = [[48, 68], [88, 108]]
        grp = groups_of(tiles5, PAIR5)
        k("s_lshl_b32 s42, s40, 4")
        k("s_add_u32 s42, s42, s77")
        k("v_add_u32 v10, s42, v3")
        k("v_lshlrev_b32 v12, 1, v10")
        k("v_lshl_add_u32 v13, v4, 14, v12")
        k("v_lshl_add_u32 v12, v4, 15, v12")
        for gi, (ms, base) in enumerate(grp):
            for e in range(4*len(ms)):
                k(f"s_add_u32 s42, s76, {base+e}")
                k("s_lshl_b32 s42, s42, 12")
                k(f"buffer_load_ushort v{ACC+4*ms[0]+e}, v{12 if len(ms)==2 else 13}, s[20:23], s42 offen")
        k("s_and_b32 s42, s40, 1")
        k("s_lshl_b32 s42, s42, 6")
        k("v_xor_b32 v14, s42, v5")
        k(f"v_add_u32 v6, {tiles5[0]*2048}, v14")
        k(f"v_add_u32 v7, {6*P5S}, v6")
        k("s_lshl_b32 s42, s40, 11")
        k(f"s_add_u32 s42, s42, {Q5B}")
        k("v_add_u32 v8, s42, v14")
        k("s_xor_b32 s42, s40, 1")
        k("s_lshl_b32 s42, s42, 11")
        k(f"s_add_u32 s42, s42, {Q5B}")
        k("v_add_u32 v9, s42, v14")
        k(f"v_mul_u32_u24 v10, {D*2}, v10")
        k("s_lshl_b32 s42, s76, 1")
        k("v_add_u32 v10, s42, v10")
        k("v_lshl_add_u32 v11, v4, 3, v10")
        k("v_lshl_add_u32 v10, v4, 4, v10")
        k("v_mov_b32 v12, 0x7ffffff0")
        k("v_cmp_gt_u32 vcc, 2, v4")
        k("v_lshlrev_b32 v13, 4, v2")
        k("s_mul_i32 s42, s15, 3072")
        k("v_cndmask_b32 v11, v12, v11, vcc")
        k("v_add_u32 v12, s42, v13")
        k("s_xor_b32 s42, s15, 1")
        k("s_mul_i32 s42, s42, 3072")
        k("v_add_u32 v13, s42, v13")
        for r in range(n5*4): k(f"v_mov_b32 v{ACX+r}, 0")
        k("s_waitcnt vmcnt(0)")
        for r in range(n5*4): k(f"v_lshlrev_b32 v{ACC+r}, 16, v{ACC+r}")
        assert Q5N <= 8
        def rd5(b, mu):
            out = []
            for q in range(2):
                st = 2*mu + q
                S = BANKS[b][q]; ps = st % P5N; qs = st % Q5N
                out.append(f"ds_read_b128 v[{S}:{S+3}], v8 offset:{qs*Q5S}")
                out.append(f"ds_read_b128 v[{S+4}:{S+7}], v9 offset:{qs*Q5S}")
                for m in range(n5):
                    out.append(f"ds_read_b128 v[{S+8+4*m}:{S+11+4*m}], v{6 if ps < 6 else 7} offset:{(ps % 6)*P5S + m*2048}")
            return out
        def mf5(b):
            out = []
            for q in range(2):
                S = BANKS[b][q]
                for m in range(n5):
                    for x, A in enumerate((ACC, ACX)):
                        out.append(f"v_mfma_f32_16x16x32_bf16 v[{A+4*m}:{A+4*m+3}], v[{S+8+4*m}:{S+11+4*m}], v[{S+4*x}:{S+4*x+3}], v[{A+4*m}:{A+4*m+3}]")
            return out
        def mst(i):
            rs = rd5((i+1) & 1, i+1) if i < 17 else []; ms_ = mf5(i & 1)
            j = 0
            for m in ms_:
                k(m)
                for _ in range(2):
                    if j < len(rs): k(rs[j]); j += 1
            assert j == len(rs)
            if i < 16:
                k("s_waitcnt lgkmcnt(0)")
                R.bar()
            elif i == 16:
                k("s_waitcnt lgkmcnt(0)")
        R.bar()
        ST()
        for r in rd5(0, 0): k(r)
        k("s_waitcnt lgkmcnt(0)")
        R.bar()
        for i in range(18): mst(i)
        ST()
        k.nop(8)
        for m in range(n5): k(f"ds_write_b128 v12, v[{ACX+4*m}:{ACX+4*m+3}] offset:{1024*m}")
        k("s_waitcnt lgkmcnt(0)")
        k("s_barrier")
        for m in range(n5): k(f"ds_read_b128 v[{ACX+4*m}:{ACX+4*m+3}], v13 offset:{1024*m}")
        k("s_waitcnt lgkmcnt(0)")
        TT = 48
        for gi, (ms, base) in enumerate(grp):
            for mi, m in enumerate(ms):
                for pr in range(2):
                    a = ACC + 4*m + 2*pr
                    k(pk('add', a, a, ACX + 4*m + 2*pr))
                    k(f"v_cvt_pk_bf16_f32 v{TT+4*gi+2*mi+pr}, v{a}, v{a+1}")
            o = TT + 4*gi
            if len(ms) == 2: k(f"buffer_store_dwordx4 v[{o}:{o+3}], v10, s[80:83], 0 offen offset:{base*2}")
            else:            k(f"buffer_store_dwordx2 v[{o}:{o+1}], v11, s[80:83], 0 offen offset:{base*2}")
        ST.dump()
        k("s_endpgm")
        nbs[R.name] = R.nb
    compute(0)
    k(f"{c1}:")
    compute(1)

    def poll_flags(setup):
        k.srd(84, 6, HO_BYTES, HO_BASE)
        setup()
        k("v_and_b32 v12, 15, v2")
        k("v_lshlrev_b32 v12, 2, v12")
        k(f"s_mov_b32 s47, {SPIN}")
        pl = k.label('poll'); pd = k.label('pd')
        k(f"{pl}:")
        k(f"buffer_load_dword v13, v12, s[84:87], s45 offen {SC}")
        k("s_waitcnt vmcnt(0)")
        k("v_and_b32 v13, 1, v13")
        k("v_cmp_ne_u32 vcc, 0, v13")
        k("s_sub_u32 s47, s47, 1")
        k("s_cmp_eq_u32 s47, 0")
        k(f"s_cbranch_scc1 {pd}")
        k("s_nop 3")
        k(f"s_cbranch_vccz {pd}")
        k("s_sleep 1")
        k(f"s_branch {pl}")
        k(f"{pd}:")

    class Ld:
        def __init__(self, R, n, base, slotb, NS, V=16, step=128, flags='', rot=False):
            self.R, self.n, self.base, self.slotb, self.NS, self.V, self.step, self.flags, self.rot = R, n, base, slotb, NS, V, step, flags, rot
        def issue(self, slot):
            for j in range(self.n):
                k(f"s_mov_b32 m0, {self.base + slot*self.slotb + j*1024}")
                k("s_nop 0")
                k(f"buffer_load_dwordx4 v{self.V+j}, s[16:19], s44 offen {self.flags} lds")
            if getattr(self, 'mod9', False):
                k("s_add_u32 s46, s46, 1")
                k("s_cmp_eq_u32 s46, 9")
                k("s_cselect_b32 s46, 0, s46")
                k(f"s_mul_i32 s44, s46, {self.step}")
                k("s_add_u32 s44, s44, s45")
            elif getattr(self, 'tiled', False):
                k("s_add_u32 s46, s46, 1")
                k("s_and_b32 s46, s46, 31")
                k(f"s_mul_i32 s44, s46, {2*9216}")
                k("s_add_u32 s44, s44, s45")
            elif self.rot:
                k("s_add_u32 s46, s46, 128")
                k("s_and_b32 s46, s46, 4095")
                k("s_add_u32 s44, s45, s46")
            else:
                k(f"s_add_u32 s44, s44, {self.step}")
        def wait(self, stages):
            k(f"s_waitcnt vmcnt({min(stages*self.n, 63 - self.n)})")
        def prologue(self, slot0):
            NS = self.NS
            infl = min(NS-1, 63//self.n)
            for s in range(infl): self.issue((slot0+s) % NS)
            for s in range(infl, NS):
                self.wait(infl-1)
                self.issue((slot0+s) % NS)
        def steady(self, slot0, count):
            NS = self.NS
            nl = count//NS
            if nl >= 2:
                k(f"s_mov_b32 s43, {nl}")
                lp = k.label('lpl'); k(f"{lp}:")
                for s in range(NS):
                    self.wait(NS-2); self.R.bar(); self.issue((slot0+s) % NS)
                self.R.nb += (nl-1)*NS
                k("s_sub_u32 s43, s43, 1")
                k("s_cmp_lg_u32 s43, 0")
                k(f"s_cbranch_scc1 {lp}")
                rest = count - nl*NS
            else:
                rest = count
            for s in range(rest):
                self.wait(NS-2); self.R.bar(); self.issue((slot0+s) % NS)
        def tail(self):
            for r in range(self.NS):
                self.wait(max(self.NS-2-r, 0)); self.R.bar()

    k(f"{lP}:")
    k("s_setprio 3")
    R = Role(k, 'P')
    ld = Ld(R, 18, cA.P_BASE, cA.P_SLOT, 4, step=2048)
    k(f"s_add_u32 s45, s12, {FH}")
    k(f"s_mul_i32 s45, s45, {D*2}")
    k("s_lshr_b32 s46, s10, 1")
    k("s_lshl_b32 s44, s46, 11")
    k("s_add_u32 s44, s44, s45")
    ld.mod9 = True
    STP = Stamper()
    STP()
    loader_voffs(k, 16, 18, PLAIN, 64, chunkmap=1024, tile16=18432)
    k("s_waitcnt lgkmcnt(0)")
    STP()
    k.srd(16, 6, F*D*2, WS_WINT)
    ld.issue(0); STP(); ld.issue(1); STP()
    loader_voffs(k, 48, 18, PAIR9, 64, chunkmap=1024, tile16=18432)
    ld.wait(1); STP()
    R.bar()
    STP()
    ld.issue(2)
    STP()
    for i in range(9):
        ld.wait(1); R.bar()
        if i == 6:
            k(f"s_mul_i32 s45, s12, {D*2}")
            k("s_lshl_b32 s44, s46, 11")
            k("s_add_u32 s44, s44, s45")
            ld.V = 48
        ld.issue((i+3) % 4)
    ld.wait(2); ld.issue(0)
    R.bar()
    ld.steady(1, 5)
    loader_voffs(k, 16, 18, PAIR9, 64, chunkmap=9216)
    ld.V = 16
    ld.tail()
    k.srd(16, 6, FH*L*2, WS_Z2T)
    k(f"s_mul_i32 s45, s10, {64*9216}")
    k("s_lshl_b32 s46, s11, 1")
    k(f"s_mul_i32 s44, s46, {2*9216}")
    k("s_add_u32 s44, s44, s45")
    ld.tiled = True; ld.mod9 = False
    ld.flags = LSC; ld.rot = True
    ld.issue(2); ld.issue(3)
    ld.wait(1)
    R.bar()
    ld.issue(0)
    ld.wait(1); R.bar(); ld.issue(1)
    ld.wait(1); R.bar(); ld.issue(2)
    ld.wait(1); R.bar(); ld.issue(3)
    ld.wait(1); R.bar(); ld.issue(0); ld.issue(1)
    ld.steady(2, 24)
    loader_voffs(k, 48, 9, PAIR5, FH*2)
    ld.tail()
    k.srd(16, 6, D*FH*2, WS_WOUTT)
    k(f"s_mul_i32 s44, s76, {FH*2}")
    pis = 0
    def ip(n):
        nonlocal pis
        for _ in range(n):
            if pis >= 36: return
            if pis >= 6: k("s_waitcnt vmcnt(54)")
            for j in range(9):
                k(f"s_mov_b32 m0, {(pis % P5N)*P5S + j*1024}")
                k("s_nop 0")
                k(f"buffer_load_dwordx4 v{48+j}, s[16:19], s44 offen lds")
            if not FAKEP: k("s_add_u32 s44, s44, 128")
            pis += 1
    def wp(last_needed):
        k(f"s_waitcnt vmcnt({min(max(pis-1-last_needed, 0)*9, 63)})")
    ip(4)
    if not WFLAG: R.bar()
    ip(P5N-4)
    wp(1)
    R.bar()
    for i in range(17):
        wp(2*i+3)
        R.bar()
        rem = 36 - P5N
        target = P5N + min(rem, -(-rem*(i+1)//PSPREAD))
        target = min(target, P5N + 2*(i+1))
        ip(target - pis)
    assert pis == 36
    STP.dump()
    k("s_endpgm")
    nbs['P'] = R.nb

    k(f"{lQ}:")
    k("s_setprio 3")
    R = Role(k, 'Q')
    ld = Ld(R, 16, cA.Q_BASE, cA.Q_SLOT, 4, step=64*4096)
    k("s_lshl_b32 s45, s13, 1")
    k("s_lshr_b32 s46, s10, 1")
    k("s_lshl_b32 s44, s46, 18")
    k("s_add_u32 s44, s44, s45")
    ld.mod9 = True
    k("v_lshrrev_b32 v3, 4, v2")
    k("v_and_b32 v4, 15, v2")
    k("v_lshlrev_b32 v5, 1, v3")
    k("v_xor_b32 v4, v4, v5")
    k("v_lshlrev_b32 v4, 4, v4")
    k("v_lshl_add_u32 v4, v3, 12, v4")
    k("v_xor_b32 v5, 128, v4")
    for j in range(16):
        k(f"v_add_u32 v{16+j}, {4*j*4096}, v{5 if (j>>1)&1 else 4}")
    k("s_waitcnt lgkmcnt(0)")
    k.srd(16, 6, D*L*2, WS_HTM)
    ld.issue(0); ld.issue(1)
    loader_voffs(k, 48, 16, PLAIN, 4096)
    ld.wait(1)
    R.bar()
    ld.issue(2)
    for i in range(9):
        ld.wait(1); R.bar()
        ld.issue((i+3) % 4)
    ld.wait(2); ld.issue(0)
    k("v_lshrrev_b32 v3, 3, v2")
    k("v_and_b32 v4, 7, v2")
    k("v_lshrrev_b32 v5, 4, v2")
    k("v_xor_b32 v4, v4, v5")
    for par in range(2):
        k(f"v_xor_b32 v6, {4*par}, v4")
        k(f"v_add_u32 v7, {8*par}, v3")
        k("v_lshrrev_b32 v8, 2, v6")
        k("v_lshlrev_b32 v8, 10, v8")
        k("v_lshl_add_u32 v8, v7, 6, v8")
        k("v_and_b32 v9, 3, v6")
        k(f"v_lshl_add_u32 v{80+par}, v9, 4, v8")
        k("v_lshrrev_b32 v8, 1, v6")
        k("v_mul_u32_u24 v8, 4608, v8")
        k("v_lshl_add_u32 v8, v7, 5, v8")
        k("v_and_b32 v9, 1, v6")
        k("v_lshl_add_u32 v8, v9, 4, v8")
        k(f"v_add_u32 v{82+par}, 4096, v8")
    R.bar()
    ld.steady(1, 5)
    k.srd(16, 72, L*L*2)
    k("s_lshl_b32 s45, s13, 12")
    k("s_lshl_b32 s46, s11, 8")
    k("s_add_u32 s44, s45, s46")
    ld.V = 48; ld.rot = True; ld.mod9 = False
    ld.steady(2, 3)
    R.bar(); ld.wait(2); ld.issue(1)
    R.bar()
    ld.steady(2, 28)
    ld.tail()
    k("s_lshr_b32 s60, s77, 4")
    k(f"s_mul_i32 s60, s60, {16*4608}")
    for j in range(1, 4): k(f"s_add_u32 s{60+j}, s60, {j*16*4608}")
    for j in range(4):
        k(f"s_add_u32 s{56+j}, s10, {j}" if ROT3 else f"s_mov_b32 s{56+j}, {j}")
        k(f"s_and_b32 s{56+j}, s{56+j}, 3")
        k(f"s_mul_i32 s{56+j}, s{56+j}, {4*4608}")
    if WFLAG:
        k.srd(84, 6, HO_BYTES, HO_BASE)
        k("s_lshr_b32 s45, s77, 7")
        k("s_lshl_b32 s45, s45, 9")
        k(f"s_add_u32 s45, s45, {HO_ZGF}")
        k("v_lshlrev_b32 v12, 3, v2")
        k(f"s_mov_b32 s47, {SPIN}")
        pl = k.label('poll'); pd = k.label('pd')
        k("s_sleep 16")
        k(f"{pl}:")
        k(f"buffer_load_dwordx2 v[14:15], v12, s[84:87], s45 offen {SC}")
        k("s_waitcnt vmcnt(0)")
        k("v_or_b32 v13, v14, v15")
        k("v_and_b32 v13, 1, v13")
        k("v_cmp_ne_u32 vcc, 0, v13")
        k("s_sub_u32 s47, s47, 1")
        k("s_cmp_eq_u32 s47, 0")
        k(f"s_cbranch_scc1 {pd}")
        k("s_nop 3")
        k(f"s_cbranch_vccz {pd}")
        k("s_sleep 1")
        k(f"s_branch {pl}")
        k(f"{pd}:")
    else:
        R.bar()
        if REPL:
            assert not MAP3
            poll_flags(lambda: (k("s_lshl_b32 s45, s11, 4"), k("s_add_u32 s45, s45, s10"), k("s_lshl_b32 s45, s45, 7"), k(f"s_add_u32 s45, s45, {HO_ZGF}")))
        else:
            poll_flags(lambda: (k("s_and_b32 s45, s77, 0xffffff80"), k(f"s_add_u32 s45, s45, {HO_ZGF}")))
    k.srd(16, 6, L*FH*2, WS_ZG)
    def iq(mu):
        for hf in range(2):
            st = 2*mu + hf
            ph = st % 9
            cst = ((2*ph) >> 2)*4608 + ((2*ph) & 3)*1024 if ph < 8 else 0
            k(f"s_add_u32 s43, s{56 + st//9}, {cst}" if not FAKEQ else f"s_mov_b32 s43, {(st%2)*2048}")
            for j in range(8):
                if j % 2 == 0: k(f"s_add_u32 s44, s{60 + (j>>1)}, s43")
                k(f"s_mov_b32 m0, {Q5B + (st % Q5N)*Q5S + j*1024}")
                k("s_nop 0")
                k(f"buffer_load_dwordx4 v{(80 if ph < 8 else 82) + (j&1)}, s[16:19], s44 offen {LSC} lds")
    NQ = Q5N//2
    iq(0); iq(1)
    k("s_waitcnt vmcnt(16)")
    R.bar()
    issued = 2
    def top_up(limit):
        nonlocal issued
        while issued < min(limit, 18):
            k("s_waitcnt vmcnt(47)")
            iq(issued); issued += 1
    top_up(min(NQ, 4))
    for i in range(17):
        k(f"s_waitcnt vmcnt({min((issued-1-(i+1))*16, 63)})")
        R.bar()
        top_up(min(i+1+NQ, issued+2))
    k("s_endpgm")
    nbs['Q'] = R.nb

    k(f"{lX}:")
    k("s_setprio 3")
    R = Role(k, 'X')
    k("v_and_b32 v3, 15, v2")
    k("v_lshrrev_b32 v4, 4, v2")
    k("v_add_u32 v5, s12, v2")
    k("v_lshlrev_b32 v5, 2, v5")
    k("v_lshrrev_b32 v12, 2, v3")
    k("v_and_b32 v13, 3, v3")
    k("v_and_b32 v14, 1, v4")
    k("v_lshl_or_b32 v14, v14, 2, v12")
    k("v_lshlrev_b32 v14, 1, v14")
    k("v_lshrrev_b32 v15, 1, v13")
    k("s_and_b32 s43, s10, 1")
    k("s_lshl_b32 s43, s43, 3")
    k("v_add_u32 v15, s43, v15")
    k("v_xor_b32 v15, v15, v14")
    k("v_lshlrev_b32 v15, 4, v15")
    k("v_and_b32 v13, 1, v13")
    k("v_lshl_add_u32 v15, v13, 3, v15")
    k("v_lshl_add_u32 v14, v4, 3, v12")
    k("v_lshl_add_u32 v8, v14, 8, v15")
    k(f"v_add_u32 v8, {cA.Q_BASE}, v8")
    for st in range(1, 4): k(f"v_xor_b32 v{8+st}, {32*st}, v8")
    k("v_cmp_eq_u32 s[62:63], v12, v4")
    make_masks()
    for r in range(4): k(f"v_mov_b32 v{36+r}, 0x3f803f80")
    k("v_lshlrev_b32 v14, 3, v3")
    k("s_waitcnt lgkmcnt(0)")
    k.srd(36, 6, 3*F*4, WS_CWP)
    k.srd(84, 6, HO_BYTES, HO_BASE)
    HX = 40; HY = 104; GA = 72
    def rd_half(H, slot):
        for st in range(4):
            for ks in range(2):
                for x in range(2):
                    r = H + 8*st + 4*ks + 2*x
                    k(f"ds_read_b64_tr_b16 v[{r}:{r+1}], v{8+st} offset:{slot*cA.Q_SLOT + (32*ks+4*x)*256}")
    def stat_half(H, plane_setup):
        for ks in range(2):
            for st in range(4):
                f_ = H + 8*st + 4*ks; a = GA + 8*st
                c0 = "0" if ks == 0 else f"v[{a}:{a+3}]"
                c1 = "0" if ks == 0 else f"v[{a+4}:{a+7}]"
                k(f"v_mfma_f32_16x16x32_bf16 v[{a}:{a+3}], v[36:39], v[{f_}:{f_+3}], {c0}")
                k(f"v_mfma_f32_16x16x32_bf16 v[{a+4}:{a+7}], v[{f_}:{f_+3}], v[{f_}:{f_+3}], {c1}")
        plane_setup()
        k("s_lshl_b32 s42, s42, 14")
        k("s_and_b32 s43, s10, 1")
        k("s_lshl_b32 s43, s43, 6")
        k("s_add_u32 s43, s43, s13")
        k("s_lshl_b32 s43, s43, 3")
        k("s_add_u32 s42, s42, s43")
        k(f"s_add_u32 s42, s42, {HO_LN2}")
        k.nop(2)
        m0, m1 = masks[0], masks[1]
        for st in range(4):
            a = GA + 8*st
            k(f"v_cndmask_b32 v{a+4}, v{a+4}, v{a+5}, s[{m0}:{m0+1}]")
            k(f"v_cndmask_b32 v{a+6}, v{a+6}, v{a+7}, s[{m0}:{m0+1}]")
            k(f"v_cndmask_b32 v{a+1}, v{a+4}, v{a+6}, s[{m1}:{m1+1}]")
            k(f"v_and_b32 v{a}, 0xfffffffe, v{a}")
            k(f"v_and_b32 v{a+1}, 0xfffffffe, v{a+1}")
        k("s_mov_b64 exec, s[62:63]")
        for st in range(4):
            a = GA + 8*st
            k(f"buffer_store_dwordx2 v[{a}:{a+1}], v14, s[84:87], s42 offen offset:{128*st} {SC}")
        k("s_mov_b64 exec, -1")
    R.bar()
    rd_half(HX, 0)
    for a in range(2):
        for p in range(3):
            k(f"s_mov_b32 s42, {(p*F + a*FH)*4}")
            for q in range(3):
                k(f"buffer_load_dword v{16+(a*3+p)*3+q}, v5, s[36:39], s42 offen offset:{256*q}")
    k("v_lshlrev_b32 v6, 2, v2")
    k(f"v_add_u32 v6, {SC_CW1}, v6")
    k("s_waitcnt lgkmcnt(0)")
    R.bar()
    sk1 = k.label('sk'); sk2 = k.label('sk')
    k("s_cmp_lt_u32 s10, 14")
    k(f"s_cbranch_scc1 {sk1}")
    rd_half(HY, 1)
    k(f"{sk1}:")
    stat_half(HX, lambda: k("s_lshr_b32 s42, s10, 1"))
    k("s_waitcnt lgkmcnt(0)")
    R.bar()
    k("s_cmp_lt_u32 s10, 14")
    k(f"s_cbranch_scc1 {sk2}")
    stat_half(HY, lambda: k("s_mov_b32 s42, 8"))
    k(f"{sk2}:")
    R.bar(2)
    def ln_finish(S, Q, n, mrs):
        k(f"v_mul_f32 v{S}, {fhex(1.0/n)}, v{S}")
        k(f"v_mul_f32 v{Q}, {fhex(1.0/n)}, v{Q}")
        k(f"v_fma_f32 v{Q}, -v{S}, v{S}, v{Q}")
        k(f"v_max_f32 v{Q}, 0, v{Q}")
        rbf(k, S, S); rbf(k, Q, Q)
        k(f"v_add_f32 v{Q}, {fhex(1e-5)}, v{Q}")
        rbf(k, Q, Q)
        k(f"v_sqrt_f32 v{Q}, v{Q}")
        k.nop(1)
        rbf(k, Q, Q)
        k(f"v_rcp_f32 v{Q}, v{Q}")
        k.nop(1)
        if mrs: k(f"v_mul_f32 v{S}, v{S}, v{Q}")
    R.bar()
    k("s_waitcnt vmcnt(0)")
    for a in range(2):
        for q in range(3):
            r = 16 + a*9 + q
            k(f"v_add_f32 v{r}, v{r}, v{r+3}")
            k(f"v_add_f32 v{r}, v{r}, v{r+6}")
            k(f"v_cvt_pk_bf16_f32 v7, v{r}, v{r}")
            k("v_lshlrev_b32 v7, 16, v7")
            k(f"v_sub_f32 v7, v{r}, v7")
            k(f"v_cvt_pk_bf16_f32 v{r}, v{r}, v7")
            k(f"ds_write_b32 v6, v{r} offset:{a*768 + 256*q}")
    def poll_sum(nbar, issue, base, nplanes, dst):
        k(f"s_mov_b32 s47, {SPIN}")
        pl = k.label('poll'); pd = k.label('pd'); pc = k.label('pc')
        issue()
        R.bar(nbar)
        k(f"s_branch {pc}")
        k(f"{pl}:")
        k("s_sleep 1")
        issue()
        k(f"{pc}:")
        k("s_waitcnt vmcnt(0)")
        for j in range(4): k(f"v_add_f32 v{dst+j}, v{base+j}, v{base+4+j}")
        for p in range(2, nplanes):
            for j in range(4): k(f"v_add_f32 v{dst+j}, v{dst+j}, v{base+4*p+j}")
        k(f"v_add_f32 v12, v{dst}, v{dst+1}")
        k(f"v_add_f32 v13, v{dst+2}, v{dst+3}")
        k("v_cmp_u_f32 vcc, v12, v13")
        k("s_nop 4")
        k(f"s_cbranch_vccz {pd}")
        regs = list(range(base, base+4*nplanes))
        k(f"v_or_b32 v13, v{regs[0]}, v{regs[1]}")
        rest = regs[2:]
        while rest:
            k(f"v_or3_b32 v13, v13, v{rest[0]}, v{rest[1]}"); rest = rest[2:]
        k("v_and_b32 v13, 1, v13")
        k("v_cmp_ne_u32 vcc, 0, v13")
        k("s_sub_u32 s47, s47, 1")
        k("s_cmp_eq_u32 s47, 0")
        k(f"s_cbranch_scc1 {pd}")
        k("s_nop 3")
        k(f"s_cbranch_vccnz {pl}")
        k(f"{pd}:")
    R.bar(1)
    k("v_lshlrev_b32 v5, 4, v2")
    k("s_lshl_b32 s42, s13, 3")
    k(f"s_add_u32 s42, s42, {HO_LN2}")
    def iss2():
        for p in range(9):
            k(f"s_add_u32 s43, s42, {p << 14}")
            k(f"buffer_load_dwordx4 v[{40+4*p}:{43+4*p}], v5, s[84:87], s43 offen {SC}")
    poll_sum(1, iss2, 40, 9, 24)
    R.bar()
    ln_finish(24, 25, D, False)
    ln_finish(26, 27, D, False)
    k("v_cvt_pk_bf16_f32 v20, -v24, -v24")
    k("v_cvt_pk_bf16_f32 v21, -v26, -v26")
    k("v_mov_b32 v22, v25")
    k("v_mov_b32 v23, v27")
    k("v_lshlrev_b32 v6, 3, v2")
    k(f"v_add_u32 v6, {SC_RS2}, v6")
    k("ds_write_b64 v6, v[22:23]")
    k("ds_write_b64 v6, v[20:21] offset:512")
    k("s_waitcnt lgkmcnt(0)")
    R.bar()
    if PF:
        k.srd(36, 72, L*L*2)
        k("s_lshl_b32 s42, s2, 15")
        for j in range(32):
            r = 96 + 4*(j % 16)
            k(f"buffer_load_dwordx4 v[{r}:{r+3}], v5, s[36:39], s42 offen")
            k("s_add_u32 s42, s42, 1024")
    k(f"v_add_u32 v7, {SC_P3}, v5")
    k("s_lshl_b32 s42, s13, 3")
    k("s_lshl_b32 s43, s10, 14")
    k("s_add_u32 s43, s43, s42")
    R.bar()
    k("ds_read_b128 v[16:19], v7")
    k("ds_read_b128 v[20:23], v7 offset:1024")
    k("s_waitcnt lgkmcnt(0)")
    for j in range(4):
        k(f"v_add_f32 v{16+j}, v{16+j}, v{20+j}")
        k(f"v_and_b32 v{16+j}, 0xfffffffe, v{16+j}")
    k(f"buffer_store_dwordx4 v[16:19], v5, s[84:87], s43 offen {SC}")
    R.bar(NA-1-PB)
    def iss():
        for p in range(16):
            k(f"s_add_u32 s43, s42, {p << 14}")
            k(f"buffer_load_dwordx4 v[{32+4*p}:{35+4*p}], v5, s[84:87], s43 offen {SC}")
    poll_sum(PB, iss, 32, 16, 24)
    ln_finish(24, 25, FH, True)
    ln_finish(26, 27, FH, True)
    k("v_mov_b32 v16, v25"); k("v_mov_b32 v17, v27"); k("v_mov_b32 v18, v24"); k("v_mov_b32 v19, v26")
    k("v_lshlrev_b32 v6, 3, v2")
    k(f"v_add_u32 v6, {SC_RS3}, v6")
    k("ds_write_b64 v6, v[16:17]")
    k("ds_write_b64 v6, v[18:19] offset:512")
    k("s_waitcnt lgkmcnt(0)")
    k("v_mov_b32 v16, 0")
    if REPL: k("v_lshlrev_b32 v5, 7, v2")
    else: k("v_mov_b32 v5, 0")
    k(f"s_lshl_b32 s42, s10, {11 if REPL else 7}")
    k("s_lshl_b32 s43, s11, 2")
    k("s_add_u32 s42, s42, s43")
    k(f"s_add_u32 s42, s42, {HO_Z2F}")
    R.bar(GF + 1 - (8+NA))
    k(f"s_mov_b64 exec, {0xffff if REPL else 1}")
    k(f"buffer_store_dword v16, v5, s[84:87], s42 offen {SC}")
    k("s_mov_b64 exec, -1")
    R.bar(17 - GF)
    if REPL:
        poll_flags(lambda: (k("s_lshl_b32 s45, s10, 4"), k("s_add_u32 s45, s45, s11"), k("s_lshl_b32 s45, s45, 7"), k(f"s_add_u32 s45, s45, {HO_Z2F}")))
    else:
        poll_flags(lambda: (k("s_lshl_b32 s45, s10, 7"), k(f"s_add_u32 s45, s45, {HO_Z2F}")))
    R.bar()
    k("s_mov_b32 s43, 7")
    lp = k.label('lp'); k(f"{lp}:")
    R.bar(4); R.nb += 24
    k("s_sub_u32 s43, s43, 1")
    k("s_cmp_lg_u32 s43, 0")
    k(f"s_cbranch_scc1 {lp}")
    if WARM2:
        k.srd(36, 6, D*FH*2, WS_WOUTT)
        k("v_lshlrev_b32 v6, 7, v2")
        k("s_lshr_b32 s42, s2, 3")
        k("s_mul_i32 s42, s42, 82944")
    if WARM3:
        k.srd(36, 6, D*FH*2, WS_WOUTT)
        k("v_lshrrev_b32 v6, 2, v2")
        k("v_and_b32 v7, 3, v2")
        k(f"v_mul_u32_u24 v6, {FH*2}, v6")
        k("v_lshl_add_u32 v6, v7, 7, v6")
        k("s_and_b32 s42, s11, 7")
        k("s_mul_i32 s42, s42, 13")
        k("s_lshr_b32 s42, s42, 2")
        k("s_min_u32 s42, s42, 22")
        k(f"s_add_u32 s42, s42, {P5N}")
        k("s_lshl_b32 s42, s42, 7")
        k(f"s_mul_i32 s43, s76, {FH*2}")
        k("s_add_u32 s42, s42, s43")
    for b in range(5):
        if WARM3 and b == WARM3 - 1:
            for j in range(5):
                if j == 4: k("s_mov_b64 exec, 0xffffffff")
                k(f"buffer_load_dword v{20+j}, v6, s[36:39], s42 offen")
                k(f"s_add_u32 s42, s42, {16*FH*2}")
            k("s_mov_b64 exec, -1")
        if b < 4: R.bar()
    if not WFLAG:
        k(f"s_lshl_b32 s42, s11, {11 if REPL else 7}")
        k("s_lshl_b32 s43, s10, 2")
        k("s_add_u32 s42, s42, s43")
        k(f"s_add_u32 s42, s42, {HO_ZGF}")
        k(f"s_mov_b64 exec, {0xffff if REPL else 1}")
        R.bar()
        k(f"buffer_store_dword v16, v5, s[84:87], s42 offen {SC}")
    if WARMP:
        k("s_mov_b64 exec, -1")
        k.srd(36, 6, D*FH*2, WS_WOUTT)
        k("v_lshrrev_b32 v6, 3, v2")
        k("v_and_b32 v7, 7, v2")
        k("v_min_u32 v7, 5, v7")
        k(f"v_mul_u32_u24 v6, {FH*2}, v6")
        k("v_lshl_add_u32 v6, v7, 7, v6")
        k("s_and_b32 s42, s11, 7")
        k("s_mul_i32 s42, s42, 576")
        k("s_and_b32 s42, s42, 0xffffff80")
        k(f"s_mul_i32 s43, s76, {FH*2}")
        k("s_add_u32 s42, s42, s43")
        for j in range(9):
            k(f"buffer_load_dword v{20+j}, v6, s[36:39], s42 offen")
            k(f"s_add_u32 s42, s42, {8*FH*2}")
    k("s_endpgm")
    nbs['X'] = R.nb
    assert nbs['c0'] == nbs['c1'] == nbs['P'] == nbs['Q'] == nbs['X'] + 18, nbs
    k(f"{done}:")
    k("s_endpgm")
    return k, LDS
```

```python
import sys, math
sys.path.insert(0, 'work')
from gcore import *
import gen_v0 as v0
from gen_a import cexp, INV2PI, CP, UB, UP, YP
from gen_ka import strip_transpose
rbf = v0.rbf
def cmul(k, dr, di, ar, ai, br, bi):
    assert di == dr+1 and ai == ar+1 and bi == br+1 and dr % 2 == 0 and ar % 2 == 0 and br % 2 == 0
    k(f"v_pk_mul_f32 v[{dr}:{di}], v[{ar}:{ai}], v[{br}:{bi}] op_sel:[0,0] op_sel_hi:[0,1]")
    k(f"v_pk_fma_f32 v[{dr}:{di}], v[{ar}:{ai}], v[{br}:{bi}], v[{dr}:{di}] op_sel:[1,1,0] op_sel_hi:[1,0,1] neg_lo:[0,1,0]")
WS_UX = 64*MB
UXP = 8448
WS_HT2 = 72*MB
WS_KR = 80*MB
KR_PITCH = 4224
KPERM = False
KPF = False
CPF = 0
WT = ''
WT1 = ''
WTH = ''
CONVWW = False
CONVPF = False
CPRIO = False
WWLATE = 0
QSPLIT = False
CPF_BYTES = 98304

def emit_R(k, idreg):
    RP = 1184
    k("s_setprio 3")
    k(f"s_and_b32 s13, s{idreg}, 7")
    k("s_lshl_b32 s13, s13, 4")
    k(f"s_lshr_b32 s3, s{idreg}, 3")
    k("s_add_u32 s13, s13, s3")
    k("s_lshl_b32 s3, s13, 4")
    k("v_lshrrev_b32 v1, 4, v0")
    k("v_add_u32 v5, s3, v1")
    k("v_and_b32 v2, 15, v0")
    k(f"v_mul_u32_u24 v3, {D*2}, v5")
    k("v_lshl_add_u32 v3, v2, 3, v3")
    k("s_waitcnt lgkmcnt(0)")
    k.lines.append("    ;@ST")
    k.srd(32, 16, L*D*2)
    for q in range(9):
        k(f"buffer_load_dwordx2 v[{8+2*q}:{9+2*q}], v3, s[32:35], 0 offen offset:{128*q}")
    k.srd(36, 6, 128*D*64, WS_UX)
    k(f"v_mul_u32_u24 v66, {RP}, v1")
    k("v_lshl_add_u32 v66, v2, 3, v66")
    X = 30
    k("v_mov_b32 v4, 0")
    k("v_mov_b32 v7, 0")
    for q in range(9):
        k(f"s_waitcnt vmcnt({8-q})")
        k(f"ds_write_b64 v66, v[{8+2*q}:{9+2*q}] offset:{16*RP + 128*q}")
        for j in range(2):
            r = 8 + 2*q + j
            k(f"v_lshlrev_b32 v{X+4*q+2*j}, 16, v{r}")
            k(f"v_and_b32 v{X+4*q+2*j+1}, 0xffff0000, v{r}")
            k(f"v_add_f32 v4, v4, v{X+4*q+2*j}")
            k(f"v_add_f32 v7, v7, v{X+4*q+2*j+1}")
    k("v_add_f32 v4, v4, v7")
    k.lines.append("    ;@ST")
    def red16(v):
        for ctl in ["quad_perm:[1,0,3,2]", "quad_perm:[2,3,0,1]", "row_half_mirror", "row_mirror"]:
            k.nop(2)
            k(f"v_add_f32_dpp v{v}, v{v}, v{v} {ctl} row_mask:0xf bank_mask:0xf")
    red16(4)
    k(f"v_mul_f32 v4, {fhex(1.0/D)}, v4")
    k("v_mov_b32 v6, 0")
    k("v_mov_b32 v7, 0")
    for i in range(36):
        k(f"v_sub_f32 v{68+(i&3)}, v{X+i}, v4")
        k(f"v_fmac_f32 v{6 + (i&1)}, v{68+(i&3)}, v{68+(i&3)}")
    k("v_add_f32 v6, v6, v7")
    red16(6)
    k(f"v_mul_f32 v6, {fhex(1.0/D)}, v6")
    rbf(k, 4, 4); rbf(k, 6, 6)
    k(f"v_add_f32 v6, {fhex(1e-5)}, v6")
    rbf(k, 6, 6)
    k("v_sqrt_f32 v6, v6")
    k.nop(1)
    rbf(k, 6, 6)
    k("v_rcp_f32 v5, v6")
    k.lines.append("    ;@ST")
    for i in range(36): k(f"v_sub_f32 v{X+i}, v{X+i}, v4")
    for j in range(18): k(f"v_cvt_pk_bf16_f32 v{8+j}, v{X+2*j}, v{X+2*j+1}")
    for j in range(18):
        k(f"v_lshlrev_b32 v{X+2*j}, 16, v{8+j}")
        k(f"v_and_b32 v{X+2*j+1}, 0xffff0000, v{8+j}")
    for i in range(36): k(f"v_mul_f32 v{X+i}, v{X+i}, v5")
    for j in range(18): k(f"v_cvt_pk_bf16_f32 v{8+j}, v{X+2*j}, v{X+2*j+1}")
    for q in range(9):
        k(f"ds_write_b64 v66, v[{8+2*q}:{9+2*q}] offset:{128*q}")
    k("v_and_b32 v2, 63, v0")
    k("v_lshrrev_b32 v1, 6, v0")
    k("v_and_b32 v3, 15, v2")
    k("v_lshrrev_b32 v4, 4, v2")
    k("v_lshrrev_b32 v5, 2, v3")
    k("v_lshl_add_u32 v5, v4, 3, v5")
    k(f"v_mul_u32_u24 v5, {RP}, v5")
    k("v_and_b32 v6, 3, v3")
    k("v_lshl_add_u32 v5, v6, 3, v5")
    k(f"v_mul_u32_u24 v6, {9*32}, v1")
    k("v_add_u32 v5, v5, v6")
    k(f"v_mul_u32_u24 v6, {9*16}, v1")
    k("v_add_u32 v6, v6, v3")
    k("v_lshlrev_b32 v6, 6, v6")
    k("v_lshl_add_u32 v6, v4, 4, v6")
    k(f"s_mul_i32 s3, s13, {D*64}")
    k("s_waitcnt lgkmcnt(0)")
    k.lines.append("    ;@ST")
    k("s_barrier")
    k.lines.append("    ;@ST")
    for g in range(9):
        for x in range(2):
            k(f"ds_read_b64_tr_b16 v[{8+4*g+2*x}:{9+4*g+2*x}], v5 offset:{32*g + 4*x*RP}")
    for g in range(9):
        k(f"s_waitcnt lgkmcnt({min(16-2*g, 15)})")
        k(f"buffer_store_dwordx4 v[{8+4*g}:{11+4*g}], v6, s[36:39], s3 offen {WT}")
        k(f"s_add_u32 s3, s3, 1024")
    k("s_endpgm")
    k.lines.append("    ;@ST0")

def emit_kgen(k, done):
    lX = k.label('xw'); lJ = k.label('join'); lPC = k.label('pc')
    XP = 528
    XA, YB = 0, 21*XP
    TB = YB + 32*XP
    k("v_and_b32 v1, 127, v0")
    k("v_lshlrev_b32 v2, 1, v1")
    k("s_lshl_b32 s3, s14, 8")
    k("v_add_u32 v2, s3, v2")
    k("s_lshl_b32 s3, s14, 1")
    k("v_mov_b32 v3, s3")
    k("v_lshrrev_b32 v4, 6, v0")
    k("s_waitcnt lgkmcnt(0)")
    k.lines.append("    ;@ST")
    k("v_readfirstlane_b32 s15, v4")
    k.srd(56, 30, D*2)
    k("buffer_load_ushort v16, v3, s[56:59], 0 offen")
    for i in range(6):
        k.srd(32+4*i, 18+2*i, D*N*2)
        k(f"buffer_load_ushort v{10+i}, v2, s[{32+4*i}:{35+4*i}], 0 offen")
    G = 56
    k("s_getpc_b64 s[60:61]")
    k(f"{lPC}:")
    k(f"s_add_u32 s60, s60, gtab_{k.name}-{lPC}")
    k("s_addc_u32 s61, s61, 0")
    k("s_mov_b32 s62, 4096")
    k("s_mov_b32 s63, 0x00020000")
    k("v_lshlrev_b32 v5, 4, v0")
    k(f"buffer_load_dwordx4 v[{G}:{G+3}], v5, s[60:63], 0 offen")
    k("v_and_b32 v64, 15, v0")
    k("v_bfe_u32 v65, v0, 4, 2")
    k(f"v_mul_u32_u24 v4, {XP}, v64")
    k("v_lshl_add_u32 v4, v65, 4, v4")
    k("s_lshr_b32 s3, s15, 1")
    k(f"s_mul_i32 s3, s3, {16*XP}")
    k("v_add_u32 v66, s3, v4")
    k("s_and_b32 s10, s15, 1")
    k(f"s_mul_i32 s11, s10, {16*XP}")
    k(f"s_add_u32 s11, s11, {YB}")
    k("v_add_u32 v67, s11, v4")
    k("s_lshr_b32 s3, s15, 1")
    k("s_lshl_b32 s3, s3, 4")
    k("v_add_u32 v7, s3, v64")
    k("v_mov_b32 v68, v7")
    for sh, sub in ((1, 8), (2, 32), (3, 96)):
        k(f"v_lshlrev_b32 v8, {sh}, v7")
        k(f"v_subrev_u32 v8, {sub}, v8")
        k("v_max_i32 v68, v68, v8")
    k("v_min_i32 v68, 71, v68")
    k("v_lshlrev_b32 v68, 6, v68")
    k("v_lshl_add_u32 v68, v65, 3, v68")
    k("s_lshl_b32 s10, s10, 5")
    k("v_add_u32 v68, s10, v68")
    k("v_lshlrev_b32 v9, 2, v1")
    Lhi = struct.unpack('<f', struct.pack('<f', LOG2E))[0]
    Llo = LOG2E - Lhi
    k(f"s_mov_b32 s8, {fhex(Lhi)}")
    k(f"s_mov_b32 s9, {fhex(Llo)}")
    k("s_waitcnt vmcnt(5)")
    k.lines.append("    ;@ST")
    for r in (16, 10, 11): k(f"v_lshlrev_b32 v{r}, 16, v{r}")
    k("v_mul_f32 v17, s8, v16")
    k("v_fma_f32 v18, v16, s8, -v17")
    k("v_fma_f32 v18, v16, s9, v18")
    k("v_exp_f32 v17, v17")
    k(f"v_mul_f32 v18, {fhex(math.log(2.0))}, v18")
    k("v_fma_f32 v17, v17, v18, v17")
    rbf(k, 17, 17)
    k("v_mul_f32 v20, v17, v10")
    k("v_mul_f32 v21, v17, v11")
    k(f"v_mul_f32 v20, {fhex(LOG2E)}, v20")
    k(f"v_mul_f32 v21, {fhex(INV2PI)}, v21")
    if KPF:
        lpf = k.label('pf'); lp2 = k.label('pf2')
        k("s_waitcnt vmcnt(0) lgkmcnt(0)")
        k("v_lshlrev_b32 v6, 7, v0")
        k("s_cmp_ge_u32 s14, 256")
        k(f"s_cbranch_scc1 {lp2}")
        k.srd(32, 66, L*L*2)
        k("s_lshl_b32 s3, s14, 15")
        k("buffer_load_dword v70, v6, s[32:35], s3 offen")
        k(f"s_branch {lpf}")
        k(f"{lp2}:")
        k.srd(32, 70, FH*D*2)
        k("s_sub_u32 s3, s14, 256")
        k("s_lshl_b32 s3, s3, 15")
        k("buffer_load_dword v70, v6, s[32:35], s3 offen")
        k(f"{lpf}:")
    k("s_cmp_ge_u32 s15, 2")
    k(f"s_cbranch_scc1 {lX}")
    cexp(k, 22, 23, 20, 21, 8, 24)
    k("v_mov_b32 v30, 0x00003f80")
    k(f"ds_write_b32 v9, v30 offset:{YB}")
    k("v_cvt_pk_bf16_f32 v31, v22, v23")
    k(f"ds_write_b32 v9, v31 offset:{YB+XP}")
    cmul(k, 24, 25, 22, 23, 22, 23)
    k("v_cvt_pk_bf16_f32 v30, v24, v25")
    k(f"ds_write_b32 v9, v30 offset:{YB+2*XP}")
    cur = {1: (22, 23), 0: (24, 25)}
    free = [(26, 27), (28, 29), (32, 33), (34, 35)]
    fi = 0
    for b in range(3, 32):
        a = cur[b & 1]; d_ = free[fi % 4]; fi += 1
        cmul(k, d_[0], d_[1], a[0], a[1], 24, 25)
        k(f"v_cvt_pk_bf16_f32 v{30 + (b&1)}, v{d_[0]}, v{d_[1]}")
        k(f"ds_write_b32 v9, v{30 + (b&1)} offset:{YB+b*XP}")
        cur[b & 1] = d_
    k(f"s_branch {lJ}")
    k(f"{lX}:")
    cexp(k, 22, 23, 20, 21, 1, 40)
    cexp(k, 42, 43, 20, 21, 256, 40)
    cexp(k, 44, 45, 20, 21, 512, 40)
    cexp(k, 46, 47, 20, 21, 1024, 40)
    if not KPF: k("s_waitcnt vmcnt(0)")
    for r in (12, 13, 14, 15): k(f"v_lshlrev_b32 v{r}, 16, v{r}")
    k("v_mul_f32 v12, v17, v12")
    k("v_mul_f32 v13, v17, v13")
    X0 = 24
    cmul(k, X0, X0+1, 14, 15, 12, 13)
    def putX(row, r, i_):
        k(f"v_cvt_pk_bf16_f32 v{40 + (row&1)}, v{r}, -v{i_}")
        k(f"ds_write_b32 v9, v{40 + (row&1)} offset:{XA+row*XP}")
    putX(0, X0, X0+1)
    for h in range(1, 8):
        cmul(k, X0+2*h, X0+2*h+1, X0+2*h-2, X0+2*h-1, 22, 23)
        putX(h, X0+2*h, X0+2*h+1)
    for i, h in enumerate((0, 2, 4, 6)):
        cmul(k, 48, 49, X0+2*h, X0+2*h+1, 42, 43); putX(8+i, 48, 49)
    for i, h in enumerate((0, 4)):
        cmul(k, 48, 49, X0+2*h, X0+2*h+1, 44, 45); putX(12+i, 48, 49)
        cmul(k, 50, 51, 48, 49, 42, 43); putX(14+i, 50, 51)
    cmul(k, 48, 49, X0, X0+1, 46, 47); putX(16, 48, 49)
    cmul(k, 50, 51, 48, 49, 42, 43); putX(17, 50, 51)
    cmul(k, 50, 51, 48, 49, 44, 45); putX(18, 50, 51)
    cmul(k, 52, 53, 50, 51, 42, 43); putX(19, 52, 53)
    cmul(k, 52, 53, 48, 49, 46, 47); putX(20, 52, 53)
    k(f"{lJ}:")
    k("s_waitcnt lgkmcnt(0)" if KPF else "s_waitcnt vmcnt(0) lgkmcnt(0)")
    k.lines.append("    ;@ST")
    k("s_barrier")
    k.lines.append("    ;@ST")
    for ks in range(4):
        k(f"ds_read_b128 v[{8+8*ks}:{11+8*ks}], v67 offset:{64*ks}")
        k(f"ds_read_b128 v[{12+8*ks}:{15+8*ks}], v66 offset:{64*ks}")
    for ks in range(8):
        r = 8 + 8*(ks % 4)
        k(f"s_waitcnt lgkmcnt({6 if ks < 5 else (7-ks)*2})")
        c = "0" if ks == 0 else "v[40:43]"
        k(f"v_mfma_f32_16x16x32_bf16 v[40:43], v[{r}:{r+3}], v[{r+4}:{r+7}], {c}")
        if ks < 4:
            k(f"ds_read_b128 v[{r}:{r+3}], v67 offset:{64*(ks+4)}")
            k(f"ds_read_b128 v[{r+4}:{r+7}], v66 offset:{64*(ks+4)}")
    k.srd(32, 6, D*KR_PITCH, WS_KR)
    k(f"s_mul_i32 s3, s14, {KR_PITCH}")
    for j in range(4):
        k(f"v_and_b32 v{48+2*j}, 0xffff, v{G+j}")
        k(f"v_lshrrev_b32 v{49+2*j}, 16, v{G+j}")
    for r in range(20, 24): k(f"v_mov_b32 v{r}, 0")
    k("v_cvt_pk_bf16_f32 v46, v40, v41")
    k("v_cvt_pk_bf16_f32 v47, v42, v43")
    k(f"ds_write_b64 v68, v[46:47] offset:{TB}")
    k("s_waitcnt lgkmcnt(0)")
    k("s_barrier")
    k.lines.append("    ;@ST")
    for e in range(8): k(f"ds_read_u16 v{8+e}, v{48+e} offset:{TB}")
    k("s_waitcnt lgkmcnt(0)")
    for j in range(4): k(f"v_lshl_or_b32 v{16+j}, v{9+2*j}, 16, v{8+2*j}")
    k(f"buffer_store_dwordx4 v[16:19], v5, s[32:35], s3 offen {WT}")
    k("v_cmp_gt_u32 vcc, 8, v0")
    k("s_and_saveexec_b64 s[4:5], vcc")
    k(f"s_cbranch_execz {done}")
    k("s_add_u32 s3, s3, 4096")
    k("buffer_store_dwordx4 v[20:23], v5, s[32:35], s3 offen")
    k("s_endpgm")
    k.lines.append("    ;@ST0")
    return TB + 72*64

def code_prefetch(k, sym, endsym, nbytes, vtmp, vdst, S=72, lanes=64):
    lp = k.label('cp')
    k(f"s_getpc_b64 s[{S}:{S+1}]")
    k(f"{lp}:")
    k(f"s_add_u32 s{S}, s{S}, {sym}-{lp}")
    k(f"s_addc_u32 s{S+1}, s{S+1}, {'-1' if sym == k.name else '0'}")
    k(f"s_mov_b32 s{S+2}, {endsym}-{sym}")
    k(f"s_mov_b32 s{S+3}, 0x00020000")
    k(f"v_lshlrev_b32 v{vtmp}, 7, v0")
    per = lanes*128
    for j in range(-(-nbytes//per)):
        k(f"s_mov_b32 s{S+4}, {j*per}")
        k(f"buffer_load_dword v{vdst}, v{vtmp}, s[{S}:{S+3}], s{S+4} offen")

def gather_table(name):
    import numpy as np
    def rb(l):
        u = struct.unpack('<I', struct.pack('<f', float(l)))[0]
        u = (u + 0x7fff + ((u >> 16) & 1)) & 0xffff0000
        return int(struct.unpack('<f', struct.pack('<I', u))[0])
    vals = []
    for x in range(2048):
        v = rb(2047 - x)
        vals.append((((v >> 8)*8 + (v & 7)) << 6) + ((v >> 3) & 31)*2)
    out = [".p2align 6", f".type gtab_{name},@object", f"gtab_{name}:"]
    for i in range(0, 2048, 16):
        out.append("    .short " + ", ".join(str(v) for v in vals[i:i+16]))
    out.append(f".size gtab_{name}, 4096")
    return out

def emit_w1(k, clear, cw_off):
    k("s_waitcnt lgkmcnt(0)")
    k.srd(32, 6, clear[1], clear[0])
    for r in range(20, 24): k(f"v_mov_b32 v{r}, -1")
    k("s_lshl_b32 s13, s3, 12")
    k("v_lshlrev_b32 v24, 4, v0")
    k("buffer_store_dwordx4 v[20:23], v24, s[32:35], s13 offen")
    strip_transpose(k, 64, D, F, WS_WINT, 3, cw_off=cw_off, st=WT1, tiled=True)

def k1_kernel(name='k1_kernel', clear=None, cw_off=None, w1=True, w2=False):
    k = Kernel(name, vgpr=72, sgpr=80)
    done = k.label('done'); lK = k.label('kg'); lW = k.label('w1'); lN = k.label('nocp')
    NC_ = 32 if CPF else 0
    NR = 128; NW = (216 if w1 else 0) + (108 if w2 else 0)
    if CPF:
        k(f"s_cmp_ge_u32 s2, {NC_}")
        k(f"s_cbranch_scc1 {lN}")
        lp = k.label('cp')
        k("s_getpc_b64 s[4:5]")
        k(f"{lp}:")
        k(f"s_add_u32 s4, s4, {name}-{lp}")
        k("s_addc_u32 s5, s5, -1")
        k(f"s_mov_b32 s6, all_code_end-{name}")
        k("s_mov_b32 s7, 0x00020000")
        k("v_lshlrev_b32 v1, 7, v0")
        k("s_lshr_b32 s3, s2, 3")
        k("s_lshl_b32 s3, s3, 15")
        k("buffer_load_dword v2, v1, s[4:7], s3 offen")
        k("s_endpgm")
        k(f"{lN}:")
        k(f"s_sub_u32 s2, s2, {NC_}")
    k(f"s_cmp_ge_u32 s2, {NR+D+NW}")
    k(f"s_cbranch_scc1 {done}")
    k(f"s_load_dwordx2 s[6:7], s[0:1], {KA['ws']}")
    k(f"s_cmp_ge_u32 s2, {NR+D}")
    k(f"s_cbranch_scc1 {lW}")
    k("s_load_dwordx16 s[16:31], s[0:1], 0")
    k(f"s_cmp_ge_u32 s2, {NR}")
    k(f"s_cbranch_scc1 {lK}")
    emit_R(k, 2)
    k(f"{lK}:")
    k(f"s_sub_u32 s14, s2, {NR}")
    lds = emit_kgen(k, done)
    k(f"{lW}:")
    k("s_load_dwordx8 s[64:71], s[0:1], 80")
    k(f"s_sub_u32 s3, s2, {NR+D}")
    if w2:
        lw2 = k.label('w2')
        k("s_cmp_ge_u32 s3, 216")
        k(f"s_cbranch_scc1 {lw2}")
    emit_w1(k, clear, cw_off)
    if w2:
        k(f"{lw2}:")
        k("s_sub_u32 s3, s3, 216")
        k("s_waitcnt lgkmcnt(0)")
        strip_transpose(k, 70, FH, D, WS_WOUTT, 3, kperm=KPERM)
    k(f"{done}:")
    k("s_endpgm")
    k.tail = gather_table(k.name)
    b = NC_
    return k, b+NR+D+NW, max(lds, 32*1184), [["R", b, b+NR], ["kgen", b+NR, b+NR+D]] + ([["w1", b+NR+D, b+NR+D+NW]] if w1 else [])

def emit_conv(k, ht_off):
    if CPRIO: k("s_setprio 3")
    k("s_mov_b32 s16, 4")
    k("s_mov_b32 s17, s2")
    if QSPLIT:
        k("s_sub_u32 s3, s2, 512")
        k("s_lshr_b32 s4, s3, 6")
        k("s_and_b32 s3, s3, 63")
        k("s_add_u32 s3, s3, 512")
        k("s_cmp_ge_u32 s2, 512")
        k("s_cselect_b32 s16, s4, s16")
        k("s_cselect_b32 s17, s3, s17")
    k("s_and_b32 s14, s17, 0xfffffff0")
    k("s_and_b32 s3, s17, 7")
    k("s_lshl_b32 s3, s3, 1")
    k("s_add_u32 s14, s14, s3")
    k("s_bfe_u32 s3, s17, 0x10003")
    k("s_add_u32 s14, s14, s3")
    k("v_lshlrev_b32 v1, 4, v0")
    k("v_lshrrev_b32 v3, 6, v0")
    k("v_lshrrev_b32 v20, 1, v0")
    k(f"v_mul_u32_u24 v20, {D*64}, v20")
    k("v_and_b32 v21, 1, v0")
    k("v_lshl_add_u32 v20, v21, 4, v20")
    k("s_lshl_b32 s3, s14, 6")
    k(f"s_mul_i32 s4, s14, {KR_PITCH}")
    k("s_lshl_b32 s5, s14, 1")
    k("v_mov_b32 v4, s5")
    k("v_readfirstlane_b32 s15, v3")
    k("s_waitcnt lgkmcnt(0)")
    k.lines.append("    ;@ST")
    k.srd(28, 6, D*KR_PITCH, WS_KR)
    k("buffer_load_dwordx4 v[8:11], v1, s[28:31], s4 offen")
    k("buffer_load_dwordx4 v[12:15], v1, s[28:31], s4 offen offset:16")
    k.srd(32, 6, 128*D*64, WS_UX)
    k("buffer_load_dwordx4 v[24:27], v20, s[32:35], s3 offen")
    k("buffer_load_dwordx4 v[16:19], v20, s[32:35], s3 offen offset:32")
    k.srd(40, 8, D*2)
    k("buffer_load_ushort v36, v4, s[40:43], 0 offen")
    k.srd(44, 6, D*L*2, ht_off)
    for r in range(40, 44): k(f"v_mov_b32 v{r}, 0")
    k("v_cmp_gt_u32 vcc, 160, v0")
    k("s_and_saveexec_b64 s[10:11], vcc")
    k(f"ds_write_b128 v1, v[40:43] offset:{UB}")
    k("s_mov_b64 exec, s[10:11]")
    k("v_lshrrev_b32 v5, 2, v0")
    k(f"v_mul_u32_u24 v5, {CP}, v5")
    k("v_and_b32 v6, 3, v0")
    k("v_lshl_add_u32 v5, v6, 4, v5")
    k("v_cmp_gt_u32 vcc, 32, v0")
    k("s_and_saveexec_b64 s[10:11], vcc")
    k("ds_write_b128 v5, v[40:43] offset:4096")
    k("s_mov_b64 exec, s[10:11]")
    k("v_and_b32 v2, 15, v0")
    k("v_bfe_u32 v3, v0, 4, 2")
    k("v_and_b32 v5, 7, v2")
    k("v_sub_u32 v5, 7, v5")
    k(f"v_mul_u32_u24 v5, {CP}, v5")
    k("v_lshrrev_b32 v6, 3, v2")
    k("v_sub_u32 v6, v3, v6")
    k("v_add_u32 v6, 1, v6")
    k("v_lshl_add_u32 v5, v6, 4, v5")
    k(f"v_mul_u32_u24 v6, {UP}, v2")
    k("v_lshl_add_u32 v6, v3, 4, v6")
    k(f"v_add_u32 v6, {UB}, v6")
    k("v_lshrrev_b32 v7, 3, v0")
    k(f"v_mul_u32_u24 v7, {UP}, v7")
    k("v_and_b32 v21, 7, v0")
    k("v_lshl_add_u32 v7, v21, 4, v7")
    k("s_waitcnt vmcnt(3)")
    k.lines.append("    ;@ST")
    E, O, O2 = 44, 52, 60
    k("ds_write_b128 v1, v[8:11]")
    k(f"ds_write_b128 v1, v[10:13] offset:{4*CP}")
    for j in range(6): k(f"v_mov_b32 v{E+j}, v{9+j}")
    k(f"ds_write_b128 v1, v[{E}:{E+3}] offset:{2*CP}")
    k(f"ds_write_b128 v1, v[{E+2}:{E+5}] offset:{6*CP}")
    for j in range(6): k(f"v_alignbit_b32 v{O+j}, v{9+j}, v{8+j}, 16")
    k(f"ds_write_b128 v1, v[{O}:{O+3}] offset:{1*CP}")
    k(f"ds_write_b128 v1, v[{O+2}:{O+5}] offset:{5*CP}")
    for j in range(6): k(f"v_alignbit_b32 v{O2+j}, v{10+j}, v{9+j}, 16")
    k(f"ds_write_b128 v1, v[{O2}:{O2+3}] offset:{3*CP}")
    k(f"ds_write_b128 v1, v[{O2+2}:{O2+5}] offset:{7*CP}")
    k("s_waitcnt vmcnt(2)")
    k(f"ds_write_b128 v7, v[24:27] offset:{UB + 16*UP}")
    XF, UF, SK = 96, 68, 104
    k("s_waitcnt vmcnt(0)")
    if CONVWW:
        k.srd(48, 6, F*D*2, WS_WINT)
        k("s_lshr_b32 s10, s2, 3")
        k("s_cmp_ge_u32 s10, 36")
        k(f"s_cselect_b32 s11, {FH*D*2 - 36*144*128}, 0")
        k(f"s_mul_i32 s10, s10, {144*128}")
        k("s_add_u32 s10, s10, s11")
        k("s_and_b32 s11, s2, 3")
        k(f"s_mul_i32 s11, s11, {576*D*2}")
        k("s_add_u32 s10, s10, s11")
        k("v_lshlrev_b32 v109, 7, v0")
        if not WWLATE:
            k("s_cmp_lt_u32 s2, 576")
            k("s_cselect_b32 s11, 144, 0")
            k("v_cmp_gt_u32 vcc, s11, v0")
            k("s_and_saveexec_b64 s[12:13], vcc")
            lnw = k.label('nw')
            k(f"s_cbranch_execz {lnw}")
            k("buffer_load_dword v110, v109, s[48:51], s10 offen")
            k(f"{lnw}:")
            k("s_mov_b64 exec, s[12:13]")
    if CONVPF:
        lnp = k.label('np')
        k("s_cmp_lt_u32 s15, 2")
        k(f"s_cbranch_scc1 {lnp}")
        k("s_cmp_ge_u32 s2, 512")
        k(f"s_cbranch_scc1 {lnp}")
        k.srd(52, 56, L*L*2)
        k("s_lshl_b32 s10, s2, 14")
        k("v_subrev_u32 v21, 128, v0")
        k("v_lshlrev_b32 v21, 7, v21")
        k("buffer_load_dword v111, v21, s[52:55], s10 offen")
        k(f"{lnp}:")
    k("v_lshlrev_b32 v36, 16, v36")
    for j in range(4):
        k(f"v_lshlrev_b32 v{UF+2*j}, 16, v{24+j}")
        k(f"v_and_b32 v{UF+2*j+1}, 0xffff0000, v{24+j}")
    for e in range(8): k(f"v_mul_f32 v{UF+e}, v{UF+e}, v36")
    for j in range(4): k(f"v_cvt_pk_bf16_f32 v{SK+j}, v{UF+2*j}, v{UF+2*j+1}")
    for j in range(4):
        k(f"v_lshlrev_b32 v{XF+2*j}, 16, v{16+j}")
        k(f"v_and_b32 v{XF+2*j+1}, 0xffff0000, v{16+j}")
    k("s_waitcnt lgkmcnt(0)")
    k.lines.append("    ;@ST")
    k("s_barrier")
    k.lines.append("    ;@ST")
    if CPRIO: k("s_setprio 0")
    ACC, AF, BF = 8, 40, 72
    ranges = [(0, 12), (12, 24), (24, 40), (40, 64)]
    labs = [k.label('cw') for _ in range(4)]
    ljoin = k.label('cj')
    qlabs = [k.label('cq') for _ in range(4)]
    if QSPLIT:
        lq = k.label('qd')
        k("s_cmp_lt_u32 s16, 4")
        k(f"s_cbranch_scc1 {lq}")
    for w in range(1, 4):
        k(f"s_cmp_eq_u32 s15, {w}")
        k(f"s_cbranch_scc1 {labs[w]}")
    def ra(phi):
        r = AF + 4*(phi % 8)
        return f"ds_read_b128 v[{r}:{r+3}], v5 offset:{32*(127-phi)}"
    def rb(kap, nt):
        r = BF + 8*(kap % 3) + 4*nt
        off = (16*nt + 16 - (kap >> 1))*UP + (64 if kap % 2 == 0 else 0)
        return f"ds_read_b128 v[{r}:{r+3}], v6 offset:{off}"
    for w in range(4):
        k(f"{labs[w]}:")
        k0, k1_ = ranges[w]
        nts = lambda kap: [0, 1] if kap < 32 else [1]
        def loads(kap):
            if kap >= k1_: return []
            out = [rb(kap, nt) for nt in nts(kap)]
            for mt in (range(4) if kap == k0 else (2, 3)):
                p = 2*kap - 2 + mt
                if p >= 0: out.append(ra(p))
            return out
        inited = set()
        for ins in loads(k0) + loads(k0+1): k(ins)
        for kap in range(k0, k1_):
            if CONVWW and WWLATE and kap == k0 + WWLATE and w < 3:
                if w == 2: k("s_mov_b64 exec, 0xffff")
                k("buffer_load_dword v110, v109, s[48:51], s10 offen")
                if w == 2: k("s_mov_b64 exec, -1")
            k(f"s_waitcnt lgkmcnt({len(loads(kap+1))})")
            nxt = loads(kap+2)
            ms = []
            for mt in range(4):
                phi = 2*kap - 2 + mt
                if phi < 0: continue
                for nt in nts(kap):
                    a = ACC + (mt*2+nt)*4
                    ar = AF + 4*(phi % 8); br = BF + 8*(kap % 3) + 4*nt
                    c = f"v[{a}:{a+3}]" if (mt, nt) in inited else "0"
                    inited.add((mt, nt))
                    ms.append(f"v_mfma_f32_16x16x32_bf16 v[{a}:{a+3}], v[{ar}:{ar+3}], v[{br}:{br+3}], {c}")
            for i_, m in enumerate(ms):
                k(m)
                if i_ < len(nxt): k(nxt[i_])
            for ins in nxt[len(ms):]: k(ins)
        if CPRIO: k("s_setprio 3")
        k(f"v_mul_u32_u24 v7, {YP}, v2")
        k("v_lshl_add_u32 v7, v3, 4, v7")
        k("s_barrier")
        k.nop(8)
        for mt in range(4):
            for nt in range(2):
                if (mt, nt) not in inited: continue
                a = ACC + (mt*2+nt)*4
                off = w*32*YP + 16*nt*YP + 64*mt - (16*YP if w == 3 else 0)
                k(f"ds_write_b128 v7, v[{a}:{a+3}] offset:{off}")
        if w < 3 or QSPLIT: k(f"s_branch {ljoin}")
    if QSPLIT:
        k(f"{lq}:")
        k("s_lshl_b32 s3, s16, 5")
        k("v_subrev_u32 v5, s3, v5")
        k("v_add_u32 v5, 96, v5")
        for w in range(1, 4):
            k(f"s_cmp_eq_u32 s15, {w}")
            k(f"s_cbranch_scc1 {qlabs[w]}")
        for w in range(4):
            k(f"{qlabs[w]}:")
            k0, k1_ = ranges[w]
            nts = lambda kap: [0, 1] if kap < 32 else [1]
            def qa(kap):
                r = AF + 4*(kap % 4)
                return f"ds_read_b128 v[{r}:{r+3}], v5 offset:{32*(127-(2*kap-2)) - 96}"
            def qb(kap, nt):
                r = AF + 16 + 8*(kap % 4) + 4*nt
                off = (16*nt + 16 - (kap >> 1))*UP + (64 if kap % 2 == 0 else 0)
                return f"ds_read_b128 v[{r}:{r+3}], v6 offset:{off}"
            def ql(kap): return [] if kap >= k1_ else [qa(kap)] + [qb(kap, nt) for nt in nts(kap)]
            for r in range(8): k(f"v_mov_b32 v{ACC+r}, 0")
            for ins in ql(k0) + ql(k0+1) + ql(k0+2): k(ins)
            for kap in range(k0, k1_):
                k(f"s_waitcnt lgkmcnt({len(ql(kap+1)) + len(ql(kap+2))})")
                sk0 = None
                if kap == 0:
                    sk0 = k.label('q0')
                    k("s_cmp_lt_u32 s16, 2")
                    k(f"s_cbranch_scc1 {sk0}")
                for nt in nts(kap):
                    a = ACC + 4*nt; ar = AF + 4*(kap % 4); br = AF + 16 + 8*(kap % 4) + 4*nt
                    k(f"v_mfma_f32_16x16x32_bf16 v[{a}:{a+3}], v[{ar}:{ar+3}], v[{br}:{br+3}], v[{a}:{a+3}]")
                if sk0: k(f"{sk0}:")
                for ins in ql(kap+3): k(ins)
            k(f"v_mul_u32_u24 v7, {YP}, v2")
            k("v_lshl_add_u32 v7, v3, 4, v7")
            k("s_lshl_b32 s3, s16, 6")
            k("v_add_u32 v7, s3, v7")
            k("s_barrier")
            k.nop(8)
            for nt in ([0, 1] if w < 3 else [1]):
                off = w*32*YP + 16*nt*YP - (16*YP if w == 3 else 0)
                k(f"ds_write_b128 v7, v[{ACC+4*nt}:{ACC+4*nt+3}] offset:{off}")
            if w < 3: k(f"s_branch {ljoin}")
    k(f"{ljoin}:")
    k.lines.append("    ;@ST")
    k("v_lshrrev_b32 v5, 3, v0")
    k(f"v_mul_u32_u24 v5, {YP}, v5")
    k("v_and_b32 v6, 7, v0")
    k("v_lshl_add_u32 v5, v6, 5, v5")
    k("s_lshl_b32 s3, s14, 12")
    k("s_waitcnt lgkmcnt(0)")
    k("s_barrier")
    k.lines.append("    ;@ST")
    for w in range(3):
        k(f"ds_read_b128 v[{8+8*w}:{11+8*w}], v5 offset:{w*32*YP}")
        k(f"ds_read_b128 v[{12+8*w}:{15+8*w}], v5 offset:{w*32*YP+16}")
    for r in range(32, 40): k(f"v_mov_b32 v{r}, 0")
    sk = k.label('sk')
    k("s_cmp_lt_u32 s15, 2")
    k(f"s_cbranch_scc1 {sk}")
    k(f"ds_read_b128 v[32:35], v5 offset:{3*32*YP - 16*YP}")
    k(f"ds_read_b128 v[36:39], v5 offset:{3*32*YP - 16*YP + 16}")
    k(f"{sk}:")
    for j in range(4):
        k(f"v_lshlrev_b32 v{40+2*j}, 16, v{SK+j}")
        k(f"v_and_b32 v{41+2*j}, 0xffff0000, v{SK+j}")
    k("s_waitcnt lgkmcnt(0)")
    for e in range(8):
        k(f"v_add_f32 v{8+e}, v{8+e}, v{16+e}")
        k(f"v_add_f32 v{24+e}, v{24+e}, v{32+e}")
    for e in range(8): k(f"v_add_f32 v{8+e}, v{8+e}, v{24+e}")
    for j in range(4): k(f"v_cvt_pk_bf16_f32 v{16+j}, v{8+2*j}, v{9+2*j}")
    for j in range(4):
        k(f"v_lshlrev_b32 v{8+2*j}, 16, v{16+j}")
        k(f"v_and_b32 v{9+2*j}, 0xffff0000, v{16+j}")
    for e in range(8): k(f"v_add_f32 v{8+e}, v{8+e}, v{40+e}")
    for j in range(4): k(f"v_cvt_pk_bf16_f32 v{16+j}, v{8+2*j}, v{9+2*j}")
    for j in range(4):
        k(f"v_lshlrev_b32 v{8+2*j}, 16, v{16+j}")
        k(f"v_and_b32 v{9+2*j}, 0xffff0000, v{16+j}")
    for e in range(8): k(f"v_add_f32 v{8+e}, v{8+e}, v{XF+e}")
    for j in range(4): k(f"v_cvt_pk_bf16_f32 v{16+j}, v{8+2*j}, v{9+2*j}")
    if QSPLIT:
        k("v_bfe_u32 v5, v0, 1, 2")
        k("v_cmp_eq_u32 vcc, s16, v5")
        k("s_cmp_eq_u32 s16, 4")
        k("s_cselect_b64 vcc, -1, vcc")
        k("s_and_b64 exec, exec, vcc")
    k(f"buffer_store_dwordx4 v[16:19], v1, s[44:47], s3 offen {WTH}")
    k("s_endpgm")
    k.lines.append("    ;@ST0")

def emit_cw(k, done, idreg, cw_off):
    k("v_lshrrev_b32 v1, 3, v0")
    k("v_and_b32 v2, 7, v0")
    k(f"v_mul_u32_u24 v3, {F*2}, v1")
    k("v_lshl_add_u32 v3, v2, 4, v3")
    k(f"s_lshl_b32 s8, s{idreg}, 7")
    k("s_waitcnt lgkmcnt(0)")
    k.srd(16, 64, D*F*2)
    k.srd(20, 6, F*4, cw_off)
    for q in range(18):
        k(f"buffer_load_dwordx4 v[{24+4*q}:{27+4*q}], v3, s[16:19], s8 offen")
        k(f"s_add_u32 s8, s8, {32*F*2}")
    for e in range(8): k(f"v_mov_b32 v{8+e}, 0")
    for q in range(18):
        k(f"s_waitcnt vmcnt({17-q})")
        for j in range(4):
            k(f"v_lshlrev_b32 v4, 16, v{24+4*q+j}")
            k(f"v_and_b32 v5, 0xffff0000, v{24+4*q+j}")
            k(f"v_add_f32 v{8+2*j}, v{8+2*j}, v4")
            k(f"v_add_f32 v{9+2*j}, v{9+2*j}, v5")
    k("v_lshlrev_b32 v4, 5, v0")
    k("ds_write_b128 v4, v[8:11]")
    k("ds_write_b128 v4, v[12:15] offset:16")
    k("s_waitcnt lgkmcnt(0)")
    k("s_barrier")
    k("v_cmp_gt_u32 vcc, 64, v0")
    k("s_and_saveexec_b64 s[10:11], vcc")
    k(f"s_cbranch_execz {done}")
    k("v_lshlrev_b32 v4, 2, v0")
    for g in range(32): k(f"ds_read_b32 v{24+g}, v4 offset:{256*g}")
    k("s_waitcnt lgkmcnt(0)")
    for g in range(1, 32): k(f"v_add_f32 v24, v24, v{24+g}")
    k("v_cvt_pk_bf16_f32 v5, v24, v24")
    k("v_lshlrev_b32 v5, 16, v5")
    k("v_sub_f32 v6, v24, v5")
    k("v_cvt_pk_bf16_f32 v5, v24, v6")
    k(f"s_lshl_b32 s8, s{idreg}, 8")
    k("buffer_store_dword v5, v4, s[20:23], s8 offen")
    k("s_endpgm")

def emit_pf(k, idreg):
    k(f"s_lshl_b32 s3, s{idreg}, 16")
    k("v_lshlrev_b32 v1, 4, v0")
    k("s_waitcnt lgkmcnt(0)")
    k.srd(8, 66, L*L*2)
    for j in range(16):
        k(f"buffer_load_dwordx4 v[{8+4*j}:{11+4*j}], v1, s[8:11], s3 offen")
        k("s_add_u32 s3, s3, 4096")
    k("s_waitcnt vmcnt(0)")
    k("s_endpgm")

def k2_kernel(name='k2_kernel', clear=None, cw_off=None, ht_off=WS_HT2, order=('cw', 'w1', 'w2', 'pf')):
    k = Kernel(name, vgpr=112, sgpr=80)
    cnt = dict(cw=72, w1=216, w2=108, pf=128, ww=128)
    done = k.label('done'); lS = k.label('side')
    NCV = 768 if QSPLIT else D
    bounds = [NCV]
    for o in order: bounds.append(bounds[-1] + cnt[o])
    k(f"s_cmp_ge_u32 s2, {bounds[-1]}")
    k(f"s_cbranch_scc1 {done}")
    k(f"s_load_dwordx2 s[6:7], s[0:1], {KA['ws']}")
    k(f"s_cmp_ge_u32 s2, {NCV}")
    k(f"s_cbranch_scc1 {lS}")
    k(f"s_load_dwordx2 s[8:9], s[0:1], {KA['Dskip']}")
    k(f"s_load_dwordx2 s[56:57], s[0:1], {KA['wsp']}")
    emit_conv(k, ht_off)
    k(f"{lS}:")
    if not order: k("s_endpgm")
    k("s_load_dwordx8 s[64:71], s[0:1], 80")
    labs = {o: k.label(o) for o in order}
    for i in range(len(order)-1, 0, -1):
        k(f"s_cmp_ge_u32 s2, {bounds[i]}")
        k(f"s_cbranch_scc1 {labs[order[i]]}")
    roles = [["conv", 0, NCV]]
    for i, o in enumerate(order):
        k(f"{labs[o]}:")
        k(f"s_sub_u32 s3, s2, {bounds[i]}")
        roles.append([o, bounds[i], bounds[i+1]])
        if o == 'w1':
            emit_w1(k, clear, cw_off)
        elif o == 'w2':
            k("s_waitcnt lgkmcnt(0)")
            strip_transpose(k, 70, FH, D, WS_WOUTT, 3, kperm=KPERM)
        elif o == 'cw':
            emit_cw(k, done, 3, cw_off)
        elif o == 'pf':
            emit_pf(k, 3)
        elif o == 'ww':
            k("s_and_b32 s8, s2, 3")
            k(f"s_mul_i32 s8, s8, {576*D*2}")
            k("s_lshr_b32 s9, s3, 3")
            k("s_lshr_b32 s10, s9, 3")
            k(f"s_mul_i32 s10, s10, {FH*D*2}")
            k("s_add_u32 s8, s8, s10")
            k("s_and_b32 s9, s9, 7")
            k("s_mul_i32 s9, s9, 82944")
            k("s_add_u32 s8, s8, s9")
            k("v_lshlrev_b32 v1, 4, v0")
            k("s_waitcnt lgkmcnt(0)")
            k.srd(12, 6, F*D*2, WS_WINT)
            for j in range(21):
                k(f"buffer_load_dwordx4 v[{8+4*j}:{11+4*j}], v1, s[12:15], s8 offen")
                k("s_add_u32 s8, s8, 4096")
            k("s_waitcnt vmcnt(0)")
            k("s_endpgm")
    k(f"{done}:")
    k("s_endpgm")
    return k, bounds[-1], 40960, roles
```

```python
import sys, json
sys.path.insert(0, 'work')
from gcore import *
import gen_p as gp, gen_m5 as gm, tl
gp.KPERM = True
def main(out, CPF=3, WT='', WTH='', CONVWW=False, CONVPF=False, W2K1=False, CPRIO=False, WWLATE=0, QSPLIT=False, WT1='', timeline=False, pstamp=False, report=None, order=('w2',), **kw):
    gm.WS_HT = gp.WS_HT2
    gp.CPF = CPF; gp.WT = WT; gp.CPRIO = CPRIO; gp.WWLATE = WWLATE; gp.QSPLIT = QSPLIT; gp.WT1 = WT1; gp.WTH = WTH; gp.CONVWW = CONVWW; gp.CONVPF = CONVPF
    k1, n1, l1, r1 = gp.k1_kernel(clear=(gm.HO_BASE, gm.HO_BYTES), cw_off=gm.WS_CWP, w2=W2K1)
    k2, n2, l2, r2 = gp.k2_kernel(clear=(gm.HO_BASE, gm.HO_BYTES), cw_off=gm.WS_CWP, order=order)
    km, lm = gm.mega_kernel(**kw)
    km.tail = ['all_code_end:']
    ks = [k1, k2, km]
    launches = [('k1_kernel', n1, 256, l1), ('k2_kernel', n2, 256, l2), ('mega_kernel', 256, 704, lm)]
    if report is not None:
        for i, kk in enumerate(ks): tl.instrument(kk, i)
        ks.append(tl.report_kernel(len(launches), report))
        launches = launches + [('report_kernel', 1, 64, 0)]
    if pstamp:
        import stamp_tool
        stamp_tool.apply(k1, 120 << 20); stamp_tool.apply(k2, 121 << 20)
    if timeline or pstamp or kw.get('stamps'):
        if timeline:
            for i, kk in enumerate(ks): tl.instrument(kk, i)
        ks.append(tl.blocker_kernel()); ks.append(tl.scrub_kernel())
        launches = [('blocker_kernel', 1, 64, 0)] + launches + [('scrub_kernel', 1024, 64, 0)]
    open(out, 'w').write(build_file(ks, launches))
    open('roles.json', 'w').write(json.dumps({'k1_kernel': r1, 'k2_kernel': r2}))
BEST = dict(WARMP=False, ROT3=False, MAP3=False, CONVWW=True, WTH='sc1', GINT=True, WARM3=3, GF=15, NA=5, order=('w2',), WT1='sc1', QSPLIT=True)
if __name__ == '__main__':
    main('v8.s', **BEST)
    main('v8t.s', timeline=True, **BEST)
    main('v8s.s', stamps=True, **BEST)
```

```python
import sys, math
sys.path.insert(0, 'work')
from asmlib import *

L, D, N, F, FH = 2048, 576, 128, 4608, 2304
MB = 1 << 20
LOG2E = math.log2(math.e)
WS_STAMP = 0
WS_U, WS_KF = 1*MB, 4*MB
WS_H, WS_X2 = 12*MB, 16*MB
WS_WINT, WS_WOUTT = 20*MB, 26*MB
WS_STAT = 30*MB
WS_Z2T, WS_ZG = 40*MB, 52*MB
WS_XT, WS_HT, WS_KH = 64*MB, 68*MB, 72*MB
WS_SIZE = 128*MB

GC1 = -2.0*LOG2E*math.sqrt(2.0/math.pi)
GC2 = GC1*0.044715

MORDER = 0
class Cfg:
    def __init__(self, p_tiles0, p_tiles1, nq_per_wave, p_rows, nslot, p_map, q_map, swap):
        self.cls = [p_tiles0, p_tiles1]
        self.nq = nq_per_wave
        self.p_rows = p_rows
        self.q_rows = 64*nq_per_wave
        ntp = len(p_tiles0) + len(p_tiles1)
        self.P_SLOT = ntp*2048
        self.Q_SLOT = self.q_rows*128
        self.NS = nslot
        self.P_BASE = 0
        self.Q_BASE = nslot*self.P_SLOT
        self.LDS = nslot*(self.P_SLOT + self.Q_SLOT)
        self.p_map = p_map
        self.q_map = q_map
        self.swap = swap

def loader_voffs(k, V, ninstr, tmap, stride, chunkmap=None, tile16=None):
    k("v_lshrrev_b32 v3, 3, v2")
    k("v_and_b32 v4, 7, v2")
    k("v_lshrrev_b32 v5, 4, v2")
    k("v_xor_b32 v4, v4, v5")
    if chunkmap:
        k("v_lshrrev_b32 v5, 2, v4")
        k("v_and_b32 v4, 3, v4")
        k("v_lshlrev_b32 v4, 4, v4")
        k(f"v_mul_u32_u24 v6, {chunkmap}, v5")
        k("v_xor_b32 v5, 1, v5")
        k(f"v_mul_u32_u24 v5, {chunkmap}, v5")
        k("v_add_u32 v5, v5, v4")
        k("v_add_u32 v4, v6, v4")
    else:
        k("v_lshlrev_b32 v4, 4, v4")
        k("v_xor_b32 v5, 64, v4")
    k("v_lshrrev_b32 v6, 2, v3")
    k("v_lshlrev_b32 v6, 3, v6")
    k("v_and_b32 v7, 3, v3")
    k("v_add_u32 v6, v6, v7")
    k(f"v_mul_u32_u24 v6, {stride}, v6")
    k(f"v_mul_u32_u24 v3, {stride}, v3")
    k("v_add_u32 v8, v6, v4")
    k("v_add_u32 v9, v6, v5")
    k("v_add_u32 v10, v3, v4")
    k("v_add_u32 v11, v3, v5")
    for j in range(ninstr):
        base, e = tmap[j >> 1]
        if e is None:
            src = 10 + (j & 1); c = base + 8*(j & 1)
        else:
            src = 8 + (j & 1); c = base + 16*(j & 1) + 4*e
        if c == 0:
            k(f"v_mov_b32 v{V+j}, v{src}")
        else:
            cb = c*stride if tile16 is None else (c >> 4)*tile16 + (c & 15)*stride
            k(f"v_add_u32 v{V+j}, 0x{cb:x}, v{src}")

def emit_loader(k, ninstr, tmap, lds_base, slot_bytes, NS, phases, SRD=16):
    V = 16; V2 = 48
    G = sum(p['nst'] for p in phases)
    inflight = min(NS - 1, 63 // ninstr)
    phases[0]['setup'](k)
    loader_voffs(k, V, ninstr, tmap, phases[0]['stride'])
    switch_at = {}
    g = 0
    for pi, p in enumerate(phases[:-1]):
        g += p['nst']; switch_at[g] = pi + 1
    assert len(phases) <= 2
    def issue(slot):
        for j in range(ninstr):
            k(f"s_mov_b32 m0, {lds_base + slot*slot_bytes + j*1024}")
            k("s_nop 0")
            k(f"buffer_load_dwordx4 v{V+j}, s[{SRD}:{SRD+3}], s44 offen lds")
        k("s_add_u32 s44, s44, 128")
    def switch(pi):
        phases[pi]['setup'](k)
        for j in range(ninstr):
            k(f"v_mov_b32 v{V+j}, v{V2+j}")
    issued = 0
    for s in range(min(inflight, NS)):
        issue(s); issued += 1
        if s == 0 and len(phases) > 1:
            loader_voffs(k, V2, ninstr, tmap, phases[1]['stride'])
    k(f"s_waitcnt vmcnt({(inflight-1)*ninstr})")
    while issued < NS:
        assert issued not in switch_at
        issue(issued); issued += 1
        if issued < NS:
            k(f"s_waitcnt vmcnt({(inflight-1)*ninstr})")
    k("s_barrier")
    W = min((NS-2)*ninstr, 63)
    nsteady = G - NS
    nloop = nsteady // NS
    rem = nsteady - nloop*NS
    if nloop:
        k(f"s_mov_b32 s43, 0")
        lp = k.label('lpl')
        k(f"{lp}:")
        for sl in range(NS):
            k(f"s_waitcnt vmcnt({W})")
            k("s_barrier")
            for gs, pi in switch_at.items():
                if gs >= NS and gs < NS + nloop*NS and (gs % NS) == sl:
                    it = (gs - NS)//NS
                    sk = k.label('sk')
                    k(f"s_cmp_lg_u32 s43, {it}")
                    k(f"s_cbranch_scc1 {sk}")
                    switch(pi)
                    k(f"{sk}:")
            issue(sl)
        k("s_add_u32 s43, s43, 1")
        k(f"s_cmp_lg_u32 s43, {nloop}")
        k(f"s_cbranch_scc1 {lp}")
    for r in range(rem):
        gs = NS + nloop*NS + r
        k(f"s_waitcnt vmcnt({W})")
        k("s_barrier")
        if gs in switch_at:
            switch(switch_at[gs])
        issue(gs % NS)
    for r in range(NS):
        k(f"s_waitcnt vmcnt({min(max(NS-2-r, 0)*ninstr, 63)})")
        k("s_barrier")
    k("s_endpgm")

class Comp:
    def __init__(self, k, cfg, ci, S0, S1, va=6):
        self.k, self.cfg, self.ci = k, cfg, ci
        self.nm = len(cfg.cls[ci]); self.nq = cfg.nq
        self.S = [S0, S1]
        self.va = va
    def reads(self, si, slot, ks):
        c = self.cfg; S = self.S[si]; out = []
        vp = self.va + ks; vq = self.va + 2 + ks
        for n in range(self.nq):
            out.append(f"ds_read_b128 v[{S+4*n}:{S+4*n+3}], v{vq} offset:{slot*c.Q_SLOT + n*2048}")
        for m in range(self.nm):
            r = S + 4*self.nq + 4*m
            out.append(f"ds_read_b128 v[{r}:{r+3}], v{vp} offset:{slot*c.P_SLOT + m*2048}")
        return out
    def mfmas(self, si, ACC, zero=False):
        S = self.S[si]; out = []
        order = [(m, n) for m in range(self.nm) for n in range(self.nq)]
        if MORDER == 1: order = [(m, n) for n in range(self.nq) for m in range(self.nm)]
        if MORDER == 2: order = [(m, n if m % 2 == 0 else self.nq-1-n) for m in range(self.nm) for n in range(self.nq)]
        for m, n in order:
            if True:
                a = ACC + (m*self.nq + n)*4
                p = S + 4*self.nq + 4*m; q = S + 4*n
                x, y = (q, p) if self.cfg.swap else (p, q)
                c = "0" if zero else f"v[{a}:{a+3}]"
                out.append(f"v_mfma_f32_16x16x32_bf16 v[{a}:{a+3}], v[{x}:{x+3}], v[{y}:{y+3}], {c}")
        return out
    def interleave(self, ms, rs, extra=None, per=2):
        k = self.k
        for i, m in enumerate(ms):
            k(m)
            if i < len(rs):
                k(rs[i])
            if extra:
                for _ in range(per):
                    if extra: k(extra.pop(0))
        for r in rs[len(ms):]:
            k(r)
    def stage(self, slot, ACC, nslot_next, zero=False, extra=None, per=2, last=False):
        k = self.k
        self.interleave(self.mfmas(0, ACC, zero), self.reads(1, slot, 1), extra, per)
        k("s_waitcnt lgkmcnt(0)")
        k("s_barrier")
        self.interleave(self.mfmas(1, ACC), [] if last else self.reads(0, nslot_next, 0), extra, per)
        if not last:
            k("s_waitcnt lgkmcnt(0)")

def comp_addrs(k, cfg, va=6):
    k("v_and_b32 v3, 15, v2")
    k("v_lshrrev_b32 v4, 4, v2")
    k("v_lshrrev_b32 v5, 1, v3")
    k("v_xor_b32 v5, v5, v4")
    k("v_lshlrev_b32 v5, 4, v5")
    k("v_lshl_add_u32 v5, v3, 7, v5")
    k("s_and_b32 s40, s15, 3")
    k("s_lshr_b32 s41, s15, 2")
    k(f"s_mul_i32 s42, s41, {cfg.cls[1][0]*2048}")
    k(f"v_add_u32 v{va}, s42, v5")
    k(f"v_xor_b32 v{va+1}, 64, v{va}")
    k(f"s_mul_i32 s42, s40, {cfg.nq*2048}")
    k(f"s_add_u32 s42, s42, {cfg.Q_BASE}")
    k(f"v_add_u32 v{va+2}, s42, v5")
    k(f"v_xor_b32 v{va+3}, 64, v{va+2}")

def gelu_ops(x, t0, t1):
    return [f"v_mul_f32 v{t0}, v{x}, v{x}",
            f"v_fmaak_f32 v{t0}, v{t0}, v{t1}, {fhex(GC1)}",
            f"v_mul_f32 v{t0}, v{t0}, v{x}",
            f"v_exp_f32 v{t0}, v{t0}",
            f"v_add_f32 v{t0}, 1.0, v{t0}",
            f"v_rcp_f32 v{t0}, v{t0}",
            f"v_mul_f32 v{x}, v{x}, v{t0}"]

def gelu_stream(regs, temps, cgc2):
    out = []
    nt = len(temps)
    for i in range(0, len(regs), nt):
        grp = regs[i:i+nt]
        seqs = [gelu_ops(x, temps[j], cgc2) for j, x in enumerate(grp)]
        for step in range(7):
            for s in seqs:
                out.append(s[step])
            if len(grp) == 1:
                out.append("s_nop 0")
    return out
```

```python
import sys, math
sys.path.insert(0, 'work')
from gcore import *
import gen_v0 as v0
from gen1 import PAIR9, PLAIN, PAIR5, groups_of, decode_16x16
rbf = v0.rbf

HO_BASE = WS_STAT
HO_ST3 = 0
HO_LN2 = 256*1024
HO_Z2F = HO_LN2 + 9*16*1024
HO_ZGF = HO_Z2F + 256*128
HO_BYTES = HO_ZGF + 256*128
WS_CWP = 32*MB
WS_HTM = 72*MB
SC = "sc1"
SPIN = 0x100000

class Role:
    def __init__(self, k, name):
        self.k, self.name, self.nb = k, name, 0
    def bar(self, n=1):
        for _ in range(n):
            self.k("s_barrier"); self.nb += 1

def pk(op, d, a, b, c=None, mods=''):
    def r(x): return x if isinstance(x, str) else f"v[{x}:{x+1}]"
    s = f"v_pk_{op}_f32 {r(d)}, {r(a)}, {r(b)}"
    if c is not None: s += f", {r(c)}"
    return s + (' ' + mods if mods else '')

def mega_kernel(name='mega_kernel', NA=4, stamps=False, PF=True, DET=False, GF=16, RINGS=(10, 8), ROT3=True, WARMP=True, LSC=SC, MAP3=True, WARM2=False, PSPREAD=15, FAKEQ=False, FAKEP=False, ZEXP=0, HWARM=False, P1DET=False, GINT=False, WARM3=0, CPFW=False, HFIRST=True, WFLAG=False, REPL=True, PB=1, CPR=None, PFAT=8, GN=12, PPRE=4, EARLYP=False):
    cA = Cfg([0,1,2,3,4], [5,6,7,8], 2, 144, 4, PAIR9, PLAIN, swap=False)
    P5S, Q5S = 9216, 8192
    P5N, Q5N = RINGS
    Q5B = P5S*P5N
    PSL = [4,5,6,7,0,1,8,2,3,9] if EARLYP else list(range(P5N))
    XB = 4*P5S if EARLYP else 0
    SCR = cA.LDS
    SC_RS2 = SCR
    SC_NM2 = SC_RS2 + 512
    SC_P3 = SC_NM2 + 512
    SC_RS3 = SC_P3 + 2048
    SC_MR3 = SC_RS3 + 512
    SC_CW1 = SC_MR3 + 512
    SC_CW2 = SC_CW1 + 768
    LDS = max(SC_CW2 + 768, Q5B + Q5S*Q5N)
    k = Kernel(name, vgpr=164, sgpr=96)
    done = k.label('done'); lP = k.label('ldP'); lQ = k.label('ldQ'); lX = k.label('aux'); c1 = k.label('c1')
    k("s_cmp_ge_u32 s2, 256")
    k(f"s_cbranch_scc1 {done}")
    k(f"s_load_dwordx2 s[6:7], s[0:1], {KA['ws']}")
    k(f"s_load_dwordx4 s[72:75], s[0:1], {KA['wsp']}")
    k(f"s_load_dwordx2 s[4:5], s[0:1], {KA['out']}")
    if stamps:
        k("s_memrealtime s[48:49]")
        k.sgpr = 102
    k("v_lshrrev_b32 v1, 6, v0")
    k("v_and_b32 v2, 63, v0")
    decode_16x16(k)
    k("v_readfirstlane_b32 s15, v1")
    if MAP3:
        k("s_lshr_b32 s77, s2, 3")
        k("s_and_b32 s76, s77, 7")
        k("s_mul_i32 s76, s76, 72")
        k("s_lshr_b32 s77, s77, 3")
        k("s_and_b32 s14, s2, 7")
        k("s_lshl_b32 s14, s14, 2")
        k("s_add_u32 s77, s77, s14")
        k("s_lshl_b32 s77, s77, 6")
    else:
        k("s_and_b32 s76, s10, 7")
        k("s_mul_i32 s76, s76, 72")
        k("s_lshr_b32 s77, s10, 3")
        k("s_lshl_b32 s77, s77, 6")
        k("s_add_u32 s77, s77, s13")
    if HFIRST:
        k("s_add_u32 s15, s15, 8")
        k("s_cmp_ge_u32 s15, 11")
        k("s_cselect_b32 s14, 11, 0")
        k("s_sub_u32 s15, s15, s14")
    k("s_cmp_eq_u32 s15, 8")
    k(f"s_cbranch_scc1 {lP}")
    k("s_cmp_eq_u32 s15, 9")
    k(f"s_cbranch_scc1 {lQ}")
    k("s_cmp_eq_u32 s15, 10")
    k(f"s_cbranch_scc1 {lX}")
    nbs = {}
    STR = [48+2*i for i in range(8)] + [84+2*i for i in range(8)]
    class Stamper:
        def __init__(self): self.n = 1
        def __call__(self):
            if stamps:
                r = STR[self.n]; self.n += 1
                k(f"s_memrealtime s[{r}:{r+1}]")
        def dump(self):
            if not stamps: return
            k("s_waitcnt vmcnt(0)")
            self()
            k("s_waitcnt lgkmcnt(0)")
            k.srd(24, 6, 1 << 20, WS_STAMP)
            k("s_lshl_b32 s42, s2, 4")
            k("s_add_u32 s42, s42, s15")
            k("s_lshl_b32 s42, s42, 6")
            k("v_mov_b32 v10, 0")
            for i in range(16): k(f"v_mov_b32 v{16+i}, s{STR[i] if i < self.n else STR[0]}")
            for i in range(4): k(f"buffer_store_dwordx4 v[{16+4*i}:{19+4*i}], v10, s[24:27], s42 offen offset:{16*i}")
    masks = {3: 64, 2: 66, 1: 68, 0: 70}
    def make_masks():
        for b, sr in masks.items():
            k(f"v_and_b32 v12, {1 << b}, v3")
            k(f"v_cmp_ne_u32 s[{sr}:{sr+1}], 0, v12")
    def reduce_scatter(V, W):
        cnt = 16
        for b, ctl in [(3, "row_ror:8"), (2, "row_half_mirror"), (1, "quad_perm:[2,3,0,1]"), (0, "quad_perm:[1,0,3,2]")]:
            half = cnt//2; sr = masks[b]
            for j in range(half):
                k(f"v_cndmask_b32 v{W+j}, v{V+j+half}, v{V+j}, s[{sr}:{sr+1}]")
                k(f"v_cndmask_b32 v{V+j}, v{V+j}, v{V+j+half}, s[{sr}:{sr+1}]")
            k.nop(2)
            for j in range(half):
                k(f"v_add_f32_dpp v{V+j}, v{W+j}, v{V+j} {ctl} row_mask:0xf bank_mask:0xf")
            cnt = half

    comp_addrs(k, cA)
    k("v_lshrrev_b32 v12, 2, v3")
    k("v_and_b32 v13, 3, v3")
    k("v_and_b32 v14, 1, v4")
    k("v_lshl_or_b32 v14, v14, 2, v12")
    k("v_lshlrev_b32 v14, 1, v14")
    k("v_lshrrev_b32 v15, 1, v13")
    k("s_lshl_b32 s42, s40, 2")
    k("v_add_u32 v15, s42, v15")
    k("v_xor_b32 v15, v15, v14")
    k("v_lshlrev_b32 v15, 4, v15")
    k("v_and_b32 v13, 1, v13")
    k("v_lshl_add_u32 v15, v13, 3, v15")
    k("v_lshl_add_u32 v12, v4, 3, v12")
    k("v_lshl_add_u32 v10, v12, 8, v15")
    k(f"v_add_u32 v10, {cA.Q_BASE}, v10")
    k("v_xor_b32 v11, 32, v10")
    make_masks()
    k(f"s_mov_b32 s78, {fhex(-GC2 if ZEXP else GC2)}")
    k(f"s_mov_b32 s79, {fhex(-GC1 if ZEXP else GC1)}")
    k("s_waitcnt lgkmcnt(0)")
    k.srd(20, 6, D*L*2, WS_HTM)
    if HWARM:
        k("v_lshrrev_b32 v12, 1, v0")
        k("v_lshlrev_b32 v12, 12, v12")
        k("v_and_b32 v13, 1, v0")
        k("v_lshl_add_u32 v12, v13, 7, v12")
        k("s_and_b32 s42, s10, 3")
        k(f"s_mul_i32 s42, s42, {144*4096}")
        k("s_lshl_b32 s43, s13, 1")
        k("s_add_u32 s42, s42, s43")
        k("v_cmp_gt_u32 vcc, 288, v0")
        k("s_and_saveexec_b64 s[44:45], vcc")
        lnw = k.label('nw')
        k(f"s_cbranch_execz {lnw}")
        k("buffer_load_dword v160, v12, s[20:23], s42 offen")
        k(f"{lnw}:")
        k("s_mov_b64 exec, s[44:45]")
    k.srd(24, 6, FH*L*2, WS_Z2T)
    k.srd(28, 6, L*FH*2, WS_ZG)
    k.srd(32, 74, L*2)
    k.srd(80, 4, L*D*2)
    if CPFW:
        k.srd(36, 72, L*L*2)
        k("v_lshlrev_b32 v15, 7, v2")
        k("s_lshl_b32 s46, s2, 3")
        k("s_add_u32 s46, s46, s15")
        k("s_lshl_b32 s46, s46, 12")
    k("s_cmp_eq_u32 s41, 1")
    k(f"s_cbranch_scc1 {c1}")

    def compute(ci):
        R = Role(k, f'c{ci}')
        ST = Stamper()
        A1 = 16; A2 = 56; S0 = 96; S1 = 124; T = 152
        nm = len(cA.cls[ci])
        class CompM(Comp):
            tr = False
            def reads(self, si, slot, ks):
                if not self.tr: return Comp.reads(self, si, slot, ks)
                c = self.cfg; S = self.S[si]; out = []
                for n in range(2):
                    for x in range(2):
                        out.append(f"ds_read_b64_tr_b16 v[{S+4*n+2*x}:{S+4*n+2*x+1}], v{10+n} offset:{slot*c.Q_SLOT + (32*ks+4*x)*256}")
                for m in range(self.nm):
                    r = S + 8 + 4*m
                    out.append(f"ds_read_b128 v[{r}:{r+3}], v{self.va+ks} offset:{slot*c.P_SLOT + m*2048}")
                return out
            def st(self, slot, ACC, zero=False, last=False, swap=False, pre_bar=None, extra=None, per=(1, 2)):
                self.cfg.swap = swap
                self.interleave(self.mfmas(0, ACC, zero), self.reads(1, slot, 1), extra, per[0])
                k("s_waitcnt lgkmcnt(0)")
                if pre_bar:
                    if DET: ST()
                    k(pre_bar)
                    if DET: ST()
                R.bar()
                self.interleave(self.mfmas(1, ACC), [] if last else self.reads(0, (slot+1) % self.cfg.NS, 0), extra, per[1])
                if not last: k("s_waitcnt lgkmcnt(0)")
                self.cfg.swap = False
        def loop(n, body):
            k(f"s_mov_b32 s43, {n}")
            lp = k.label('lp'); k(f"{lp}:")
            nb0 = R.nb
            body()
            R.nb += (n-1)*(R.nb - nb0)
            k("s_sub_u32 s43, s43, 1")
            k("s_cmp_lg_u32 s43, 0")
            k(f"s_cbranch_scc1 {lp}")
        C = CompM(k, cA, ci, S0, S1)
        C.tr = True
        if CPR is not None and ci == CPR: k("s_setprio 1")
        R.bar()
        ST()
        for r in C.reads(0, 0, 0): k(r)
        k("s_waitcnt lgkmcnt(0)")
        C.st(0, A2, zero=True, swap=True)
        if P1DET:
            for g in range(1, 9):
                ST(); C.st(g % 4, A2, swap=True)
            ST()
            _st = ST
            class _N:
                def __call__(self): pass
                def dump(self): _st.dump()
            ST = _N()
        else:
            def p1body():
                for i in range(4):
                    if CPFW:
                        sk = k.label('pfs')
                        k(f"s_cmp_lg_u32 s40, {i}")
                        k(f"s_cbranch_scc1 {sk}")
                        k("s_mov_b64 exec, 0xffff")
                        k("buffer_load_dword v1, v15, s[36:39], s46 offen")
                        k("s_mov_b64 exec, -1")
                        k("s_add_u32 s46, s46, 2048")
                        k(f"{sk}:")
                    C.st((1+i) % 4, A2, swap=True)
            loop(2, p1body)
            ST()
        def ext_step(ACC, swap):
            QX = S1; PX = S1 + 4
            k("v_lshlrev_b32 v12, 2, v3")
            k("s_lshl_b32 s42, s40, 7")
            k(f"s_add_u32 s42, s42, {SC_NM2}")
            k("v_add_u32 v13, s42, v12")
            k(f"ds_read_b32 v{QX}, v13")
            k(f"ds_read_b32 v{QX+2}, v13 offset:64")
            k(f"v_add_u32 v12, {SC_CW2 if swap else SC_CW1}, v12")
            if not swap:
                k("v_lshrrev_b32 v13, 2, v3")
                k("v_lshlrev_b32 v13, 4, v13")
                k("v_add_u32 v13, v13, v12")
            for m in range(nm):
                if swap:
                    k(f"ds_read_b32 v{PX+2*m}, v12 offset:{cA.cls[ci][m]*64}")
                else:
                    base, e = PAIR9[cA.cls[ci][m]]
                    if e is None: k(f"ds_read_b32 v{PX+2*m}, v12 offset:{base*4}")
                    else:         k(f"ds_read_b32 v{PX+2*m}, v13 offset:{(base+4*e)*4}")
                k(f"v_mov_b32 v{PX+2*m+1}, 0")
            k(f"v_mov_b32 v{QX+1}, 0"); k(f"v_mov_b32 v{QX+3}, 0")
            k("v_cmp_eq_u32 vcc, 0, v4")
            k("s_nop 0")
            k("s_waitcnt lgkmcnt(0)")
            k(f"v_cndmask_b32 v{QX}, 0, v{QX}, vcc")
            k(f"v_cndmask_b32 v{QX+2}, 0, v{QX+2}, vcc")
            k.nop(2)
            for m in range(nm):
                for n in range(2):
                    a = ACC + (m*2+n)*4
                    p = PX + 2*m; q = QX + 2*n
                    x, y = (q, p) if swap else (p, q)
                    k(f"v_mfma_f32_16x16x16_bf16 v[{a}:{a+3}], v[{x}:{x+1}], v[{y}:{y+1}], v[{a}:{a+3}]")
        RS = S1 + 16
        k("v_lshlrev_b32 v14, 4, v4")
        k("s_lshl_b32 s42, s40, 7")
        k("v_add_u32 v14, s42, v14")
        k(f"v_add_u32 v15, {SC_RS2}, v14")
        k(f"ds_read_b128 v[{RS}:{RS+3}], v15")
        k(f"ds_read_b128 v[{RS+4}:{RS+7}], v15 offset:64")
        ext_step(A2, True)
        Vv = S1; Ww = S1 + 16
        k("v_bfe_u32 v12, v3, 2, 1")
        k("v_lshlrev_b32 v12, 4, v12")
        k("v_lshl_add_u32 v12, v4, 2, v12")
        k("v_and_b32 v13, 3, v3")
        k("v_add_u32 v12, v12, v13")
        k("v_lshrrev_b32 v13, 3, v3")
        k("v_lshl_add_u32 v12, v12, 1, v13")
        k("v_lshlrev_b32 v12, 2, v12")
        k("s_lshl_b32 s42, s40, 8")
        k(f"s_add_u32 s42, s42, {SC_P3 + ci*1024}")
        k("v_add_u32 v12, s42, v12")
        for m in range(nm):
            xs = [A2 + m*8 + 2*j for j in range(4)]
            ts = [T + 2*j for j in range(4)]
            for j, x in enumerate(xs): k(pk('mul', x, x, RS + 2*j))
            for x, t in zip(xs, ts): k(pk('mul', t, x, x))
            for x, t in zip(xs, ts): k(pk('fma', t, t, "s[78:79]", "s[78:79]", "op_sel:[0,0,1] op_sel_hi:[1,0,1]"))
            for x, t in zip(xs, ts): k(pk('mul', t, t, x))
            for t in ts: k(f"v_exp_f32 v{t}, v{t}"); k(f"v_exp_f32 v{t+1}, v{t+1}")
            for t in ts: k(pk('add', t, t, "1.0", None, "op_sel_hi:[1,0]"))
            for t in ts: k(f"v_rcp_f32 v{t}, v{t}"); k(f"v_rcp_f32 v{t+1}, v{t+1}")
            for x, t in zip(xs, ts):
                k(pk('fma', x, x, t, x, "neg_lo:[1,0,0] neg_hi:[1,0,0]") if ZEXP else pk('mul', x, x, t))
            for j, x in enumerate(xs):
                if m == 0:
                    k(f"v_pk_mov_b32 v[{Vv+2*j}:{Vv+2*j+1}], v[{x}:{x+1}], v[{x}:{x+1}] op_sel:[0,1]")
                    k(pk('mul', Vv+8+2*j, x, x))
                else:
                    k(pk('add', Vv+2*j, Vv+2*j, x))
                    k(pk('fma', Vv+8+2*j, x, x, Vv+8+2*j))
        reduce_scatter(Vv, Ww)
        k(f"ds_write_b32 v12, v{Vv}")
        k("s_waitcnt lgkmcnt(0)")
        R.bar()
        ST()
        for g in range(9, 9+NA):
            C.st(g % 4, A1, zero=(g == 9))
        ST()
        CR = S1; CM = S1 + 8
        k(f"v_add_u32 v15, {SC_RS3}, v14")
        for n in range(2):
            k(f"ds_read_b128 v[{CR+4*n}:{CR+4*n+3}], v15 offset:{64*n}")
            k(f"ds_read_b128 v[{CM+4*n}:{CM+4*n+3}], v15 offset:{512 + 64*n}")
        k("v_lshlrev_b32 v13, 6, v3")
        k("v_lshl_add_u32 v13, v4, 4, v13")
        k("s_lshl_b32 s42, s10, 6")
        k("s_lshl_b32 s44, s11, 2")
        k("s_add_u32 s42, s42, s44")
        k("s_add_u32 s42, s42, s40")
        k("s_mul_i32 s42, s42, 9216")
        k("v_add_u32 v13, s42, v13")
        k("s_waitcnt lgkmcnt(0)")
        for m in range(nm):
            a = A2 + m*8
            for j in range(4):
                k(pk('mul', a+2*j, a+2*j, CR+2*j) if ZEXP == 2 else pk('fma', a+2*j, a+2*j, CR+2*j, CM+2*j, "neg_lo:[0,0,1] neg_hi:[0,0,1]"))
            for j in range(4):
                k(f"v_cvt_pk_bf16_f32 v{a+j}, v{a+2*j}, v{a+2*j+1}")
            k(f"s_mov_b32 s44, {cA.cls[ci][m]*1024}")
            k("s_nop 0")
            k(f"v_permlane32_swap_b32 v{a}, v{a+2}")
            k(f"v_permlane32_swap_b32 v{a+1}, v{a+3}")
            k("s_nop 0")
            k(f"v_permlane16_swap_b32 v{a}, v{a+2}")
            k(f"v_permlane16_swap_b32 v{a+1}, v{a+3}")
            k(f"buffer_store_dwordx4 v[{a}:{a+3}], v13, s[24:27], s44 offen {SC}")
        ST()
        for g in range(9+NA, 18):
            C.st(g % 4, A1, last=(g == 17), pre_bar="s_waitcnt vmcnt(0)" if g == GF else None)
        ST()
        KC = S1 + 16
        k("v_lshlrev_b32 v12, 2, v3")
        k("s_lshl_b32 s42, s40, 7")
        k(f"s_add_u32 s42, s42, {SC_RS2}")
        k("v_add_u32 v12, s42, v12")
        k(f"ds_read_b32 v{KC+2}, v12")
        k(f"ds_read_b32 v{KC+6}, v12 offset:64")
        k("s_lshl_b32 s42, s40, 5")
        k("s_add_u32 s42, s42, s13")
        k("v_add_u32 v14, s42, v3")
        k("v_lshlrev_b32 v15, 1, v14")
        k(f"buffer_load_ushort v{T+8}, v15, s[32:35], 0 offen")
        k(f"buffer_load_ushort v{T+10}, v15, s[32:35], 0 offen offset:32")
        ext_step(A1, False)
        for n in range(2):
            b = KC + 4*n
            k(f"v_mul_f32 v{b+1}, {fhex(GC1)}, v{b+2}")
            k(f"v_mul_f32 v{b}, v{b+2}, v{b+2}")
            k(f"v_mul_f32 v{b}, v{b}, v{b+2}")
            k(f"v_mul_f32 v{b}, {fhex(GC2)}, v{b}")
            k(f"v_rcp_f32 v{b+2}, v{b+2}")
        k.nop(2)
        if not GINT:
            for m in range(nm):
                xs = [A1 + m*8 + 2*j for j in range(4)]
                ts = [T + 2*j for j in range(4)]
                bs = [KC + 4*(j >> 1) for j in range(4)]
                for x, t in zip(xs, ts): k(pk('mul', t, x, x))
                for t, b in zip(ts, bs): k(pk('fma', t, t, b, b, "op_sel:[0,0,1] op_sel_hi:[1,0,1]"))
                for x, t in zip(xs, ts): k(pk('mul', t, t, x))
                for t in ts: k(f"v_exp_f32 v{t}, v{t}"); k(f"v_exp_f32 v{t+1}, v{t+1}")
                for t, b in zip(ts, bs): k(pk('fma', t, t, b+2, b+2, "op_sel_hi:[1,0,0]"))
                for t in ts: k(f"v_rcp_f32 v{t}, v{t}"); k(f"v_rcp_f32 v{t+1}, v{t+1}")
                for x, t in zip(xs, ts): k(pk('mul', x, x, t))
            ex = []
        else:
            CN = [(T+4, T+5, T+6), (T+7, T+9, T+11)]
            for n in range(2):
                for j in range(3): k(f"v_mov_b32 v{CN[n][j]}, v{KC+4*n+j}")
            ex = []
            for m in range(nm):
                for n in range(2):
                    k2, k1, sd = CN[n]
                    xs = [A1 + (m*2+n)*4 + r for r in range(4)]
                    for step in range(7):
                        for r, x in enumerate(xs):
                            t = T + r
                            ex.append([f"v_mul_f32 v{t}, v{x}, v{x}", f"v_fma_f32 v{t}, v{t}, v{k2}, v{k1}", f"v_mul_f32 v{t}, v{t}, v{x}",
                                       f"v_exp_f32 v{t}, v{t}", f"v_fma_f32 v{t}, v{t}, v{sd}, v{sd}", f"v_rcp_f32 v{t}, v{t}",
                                       f"v_mul_f32 v{x}, v{x}, v{t}"][step])
        C.tr = False
        ST()
        R.bar()
        ST()
        for r in C.reads(0, 2, 0): k(r)
        k("s_waitcnt lgkmcnt(0)")
        if GINT:
            for i in range(GN): C.st((2+i) % 4, A2, zero=(i == 0), extra=ex, per={12: (1, 1) if i % 2 else (1, 2), 16: (1, 1), 8: (2, 2)}[GN])
            assert not ex, len(ex)
            loop((32-GN)//4, lambda: [C.st((2+i) % 4, A2) for i in range(4)])
        else:
            C.st(2, A2, zero=True)
            for i in range(3): C.st((3+i) % 4, A2)
            loop(7, lambda: [C.st((2+i) % 4, A2) for i in range(4)])
        ST()
        k("s_lshl_b32 s42, s11, 3")
        k("s_lshl_b32 s44, s40, 1")
        k("s_add_u32 s42, s42, s44")
        k("s_lshl_b32 s42, s42, 4")
        k("s_add_u32 s42, s42, s10")
        k("s_mul_i32 s42, s42, 4608")
        k("v_lshlrev_b32 v14, 6, v3")
        k("v_lshl_add_u32 v14, v4, 4, v14")
        k("v_add_u32 v14, s42, v14")
        k("v_lshlrev_b32 v15, 5, v3")
        k("v_lshl_add_u32 v15, v4, 3, v15")
        k("v_add_u32 v15, s42, v15")
        k("v_add_u32 v15, 4096, v15")
        k("s_waitcnt vmcnt(0)")
        k(f"v_lshlrev_b32 v{T+8}, 16, v{T+8}")
        k(f"v_lshlrev_b32 v{T+10}, 16, v{T+10}")
        k(f"s_mov_b32 s44, {16*4608}")
        k.nop(2)
        O = S0
        PB = {0: 0, 32: 1024, 80: 2048, 112: 3072}
        for gi, (ms, base) in enumerate(groups_of(cA.cls[ci], PAIR9)):
            for n in range(2):
                for mi, m in enumerate(ms):
                    a = (m*2+n)*4
                    for j in range(2): k(pk('add', A2+a+2*j, A2+a+2*j, T+8+2*n, None, "op_sel_hi:[1,0]"))
                    for j in range(2): k(pk('mul', A2+a+2*j, A2+a+2*j, A1+a+2*j))
                    for j in range(2): k(f"v_cvt_pk_bf16_f32 v{O+mi*2+j}, v{A2+a+2*j}, v{A2+a+2*j+1}")
                so = "s44" if n else "0"
                if len(ms) == 2: k(f"buffer_store_dwordx4 v[{O}:{O+3}], v14, s[28:31], {so} offen offset:{PB[base]} {SC}")
                else:            k(f"buffer_store_dwordx2 v[{O}:{O+1}], v15, s[28:31], {so} offen {SC}")
                O += 4
        if not DET: ST()
        if WFLAG:
            k.srd(24, 6, HO_BYTES, HO_BASE)
            k("s_lshl_b32 s42, s11, 4")
            k("s_add_u32 s42, s42, s10")
            k("s_lshl_b32 s42, s42, 3")
            k("s_add_u32 s42, s42, s15")
            k("s_lshl_b32 s42, s42, 2")
            k(f"s_add_u32 s42, s42, {HO_ZGF}")
            k("v_mov_b32 v12, 0")
            k("s_mov_b64 exec, 1")
            k("s_waitcnt vmcnt(0)")
            k(f"buffer_store_dword v12, v12, s[24:27], s42 offen {SC}")
            k("s_mov_b64 exec, -1")
        else:
            k("s_waitcnt vmcnt(0)")
            R.bar()
        if not DET: ST()
        tiles5 = [[0, 1], [2, 3, 4]][ci]
        n5 = len(tiles5)
        ACC = 16; ACX = 28
        BANKS = [[48, 68], [88, 108]]
        grp = groups_of(tiles5, PAIR5)
        k("s_lshl_b32 s42, s40, 4")
        k("s_add_u32 s42, s42, s77")
        k("v_add_u32 v10, s42, v3")
        k("v_lshlrev_b32 v12, 1, v10")
        k("v_lshl_add_u32 v13, v4, 14, v12")
        k("v_lshl_add_u32 v12, v4, 15, v12")
        for gi, (ms, base) in enumerate(grp):
            for e in range(4*len(ms)):
                k(f"s_add_u32 s42, s76, {base+e}")
                k("s_lshl_b32 s42, s42, 12")
                k(f"buffer_load_ushort v{ACC+4*ms[0]+e}, v{12 if len(ms)==2 else 13}, s[20:23], s42 offen")
        k("s_and_b32 s42, s40, 1")
        k("s_lshl_b32 s42, s42, 6")
        k("v_xor_b32 v14, s42, v5")
        k(f"v_add_u32 v6, {tiles5[0]*2048}, v14")
        k(f"v_add_u32 v7, {6*P5S}, v6")
        k("s_lshl_b32 s42, s40, 11")
        k(f"s_add_u32 s42, s42, {Q5B}")
        k("v_add_u32 v8, s42, v14")
        k("s_xor_b32 s42, s40, 1")
        k("s_lshl_b32 s42, s42, 11")
        k(f"s_add_u32 s42, s42, {Q5B}")
        k("v_add_u32 v9, s42, v14")
        k(f"v_mul_u32_u24 v10, {D*2}, v10")
        k("s_lshl_b32 s42, s76, 1")
        k("v_add_u32 v10, s42, v10")
        k("v_lshl_add_u32 v11, v4, 3, v10")
        k("v_lshl_add_u32 v10, v4, 4, v10")
        k("v_mov_b32 v12, 0x7ffffff0")
        k("v_cmp_gt_u32 vcc, 2, v4")
        k("v_lshlrev_b32 v13, 4, v2")
        k("s_mul_i32 s42, s15, 3072")
        k("v_cndmask_b32 v11, v12, v11, vcc")
        k("v_add_u32 v12, s42, v13")
        k("s_xor_b32 s42, s15, 1")
        k("s_mul_i32 s42, s42, 3072")
        k("v_add_u32 v13, s42, v13")
        for r in range(n5*4): k(f"v_mov_b32 v{ACX+r}, 0")
        k("s_waitcnt vmcnt(0)")
        for r in range(n5*4): k(f"v_lshlrev_b32 v{ACC+r}, 16, v{ACC+r}")
        assert Q5N <= 8
        def rd5(b, mu):
            out = []
            for q in range(2):
                st = 2*mu + q
                S = BANKS[b][q]; ps = PSL[st % P5N]; qs = st % Q5N
                out.append(f"ds_read_b128 v[{S}:{S+3}], v8 offset:{qs*Q5S}")
                out.append(f"ds_read_b128 v[{S+4}:{S+7}], v9 offset:{qs*Q5S}")
                for m in range(n5):
                    out.append(f"ds_read_b128 v[{S+8+4*m}:{S+11+4*m}], v{6 if ps < 6 else 7} offset:{(ps % 6)*P5S + m*2048}")
            return out
        def mf5(b):
            out = []
            for q in range(2):
                S = BANKS[b][q]
                for m in range(n5):
                    for x, A in enumerate((ACC, ACX)):
                        out.append(f"v_mfma_f32_16x16x32_bf16 v[{A+4*m}:{A+4*m+3}], v[{S+8+4*m}:{S+11+4*m}], v[{S+4*x}:{S+4*x+3}], v[{A+4*m}:{A+4*m+3}]")
            return out
        def mst(i):
            rs = rd5((i+1) & 1, i+1) if i < 17 else []; ms_ = mf5(i & 1)
            j = 0
            for m in ms_:
                k(m)
                for _ in range(2):
                    if j < len(rs): k(rs[j]); j += 1
            assert j == len(rs)
            if i < 16:
                k("s_waitcnt lgkmcnt(0)")
                R.bar()
            elif i == 16:
                k("s_waitcnt lgkmcnt(0)")
        R.bar()
        ST()
        for r in rd5(0, 0): k(r)
        k("s_waitcnt lgkmcnt(0)")
        R.bar()
        for i in range(18): mst(i)
        ST()
        k.nop(8)
        for m in range(n5): k(f"ds_write_b128 v12, v[{ACX+4*m}:{ACX+4*m+3}] offset:{XB + 1024*m}")
        k("s_waitcnt lgkmcnt(0)")
        k("s_barrier")
        for m in range(n5): k(f"ds_read_b128 v[{ACX+4*m}:{ACX+4*m+3}], v13 offset:{XB + 1024*m}")
        k("s_waitcnt lgkmcnt(0)")
        TT = 48
        for gi, (ms, base) in enumerate(grp):
            for mi, m in enumerate(ms):
                for pr in range(2):
                    a = ACC + 4*m + 2*pr
                    k(pk('add', a, a, ACX + 4*m + 2*pr))
                    k(f"v_cvt_pk_bf16_f32 v{TT+4*gi+2*mi+pr}, v{a}, v{a+1}")
            o = TT + 4*gi
            if len(ms) == 2: k(f"buffer_store_dwordx4 v[{o}:{o+3}], v10, s[80:83], 0 offen offset:{base*2}")
            else:            k(f"buffer_store_dwordx2 v[{o}:{o+1}], v11, s[80:83], 0 offen offset:{base*2}")
        ST.dump()
        k("s_endpgm")
        nbs[R.name] = R.nb
    compute(0)
    k(f"{c1}:")
    compute(1)

    def poll_flags(setup):
        k.srd(84, 6, HO_BYTES, HO_BASE)
        setup()
        k("v_and_b32 v12, 15, v2")
        k("v_lshlrev_b32 v12, 2, v12")
        k(f"s_mov_b32 s47, {SPIN}")
        pl = k.label('poll'); pd = k.label('pd')
        k(f"{pl}:")
        k(f"buffer_load_dword v13, v12, s[84:87], s45 offen {SC}")
        k("s_waitcnt vmcnt(0)")
        k("v_and_b32 v13, 1, v13")
        k("v_cmp_ne_u32 vcc, 0, v13")
        k("s_sub_u32 s47, s47, 1")
        k("s_cmp_eq_u32 s47, 0")
        k(f"s_cbranch_scc1 {pd}")
        k("s_nop 3")
        k(f"s_cbranch_vccz {pd}")
        k("s_sleep 1")
        k(f"s_branch {pl}")
        k(f"{pd}:")

    class Ld:
        def __init__(self, R, n, base, slotb, NS, V=16, step=128, flags='', rot=False):
            self.R, self.n, self.base, self.slotb, self.NS, self.V, self.step, self.flags, self.rot = R, n, base, slotb, NS, V, step, flags, rot
        def issue(self, slot):
            for j in range(self.n):
                k(f"s_mov_b32 m0, {self.base + slot*self.slotb + j*1024}")
                k("s_nop 0")
                k(f"buffer_load_dwordx4 v{self.V+j}, s[16:19], s44 offen {self.flags} lds")
            if getattr(self, 'mod9', False):
                k("s_add_u32 s46, s46, 1")
                k("s_cmp_eq_u32 s46, 9")
                k("s_cselect_b32 s46, 0, s46")
                k(f"s_mul_i32 s44, s46, {self.step}")
                k("s_add_u32 s44, s44, s45")
            elif getattr(self, 'tiled', False):
                k("s_add_u32 s46, s46, 1")
                k("s_and_b32 s46, s46, 31")
                k(f"s_mul_i32 s44, s46, {2*9216}")
                k("s_add_u32 s44, s44, s45")
            elif self.rot:
                k("s_add_u32 s46, s46, 128")
                k("s_and_b32 s46, s46, 4095")
                k("s_add_u32 s44, s45, s46")
            else:
                k(f"s_add_u32 s44, s44, {self.step}")
        def wait(self, stages):
            k(f"s_waitcnt vmcnt({min(stages*self.n, 63 - self.n)})")
        def prologue(self, slot0):
            NS = self.NS
            infl = min(NS-1, 63//self.n)
            for s in range(infl): self.issue((slot0+s) % NS)
            for s in range(infl, NS):
                self.wait(infl-1)
                self.issue((slot0+s) % NS)
        def steady(self, slot0, count):
            NS = self.NS
            nl = count//NS
            if nl >= 2:
                k(f"s_mov_b32 s43, {nl}")
                lp = k.label('lpl'); k(f"{lp}:")
                for s in range(NS):
                    self.wait(NS-2); self.R.bar(); self.issue((slot0+s) % NS)
                self.R.nb += (nl-1)*NS
                k("s_sub_u32 s43, s43, 1")
                k("s_cmp_lg_u32 s43, 0")
                k(f"s_cbranch_scc1 {lp}")
                rest = count - nl*NS
            else:
                rest = count
            for s in range(rest):
                self.wait(NS-2); self.R.bar(); self.issue((slot0+s) % NS)
        def tail(self):
            for r in range(self.NS):
                self.wait(max(self.NS-2-r, 0)); self.R.bar()

    k(f"{lP}:")
    k("s_setprio 3")
    R = Role(k, 'P')
    ld = Ld(R, 18, cA.P_BASE, cA.P_SLOT, 4, step=2048)
    k(f"s_add_u32 s45, s12, {FH}")
    k(f"s_mul_i32 s45, s45, {D*2}")
    k("s_lshr_b32 s46, s10, 1")
    k("s_lshl_b32 s44, s46, 11")
    k("s_add_u32 s44, s44, s45")
    ld.mod9 = True
    STP = Stamper()
    STP()
    loader_voffs(k, 16, 18, PLAIN, 64, chunkmap=1024, tile16=18432)
    k("s_waitcnt lgkmcnt(0)")
    STP()
    k.srd(16, 6, F*D*2, WS_WINT)
    ld.issue(0); STP(); ld.issue(1); STP()
    loader_voffs(k, 48, 18, PAIR9, 64, chunkmap=1024, tile16=18432)
    ld.wait(1); STP()
    R.bar()
    STP()
    ld.issue(2)
    STP()
    for i in range(9):
        ld.wait(1); R.bar()
        if i == 6:
            k(f"s_mul_i32 s45, s12, {D*2}")
            k("s_lshl_b32 s44, s46, 11")
            k("s_add_u32 s44, s44, s45")
            ld.V = 48
        ld.issue((i+3) % 4)
    ld.wait(2); ld.issue(0)
    R.bar()
    ld.steady(1, 5)
    loader_voffs(k, 16, 18, PAIR9, 64, chunkmap=9216)
    ld.V = 16
    ld.tail()
    k.srd(16, 6, FH*L*2, WS_Z2T)
    k(f"s_mul_i32 s45, s10, {64*9216}")
    k("s_lshl_b32 s46, s11, 1")
    k(f"s_mul_i32 s44, s46, {2*9216}")
    k("s_add_u32 s44, s44, s45")
    ld.tiled = True; ld.mod9 = False
    ld.flags = LSC; ld.rot = True
    ld.issue(2); ld.issue(3)
    ld.wait(1)
    R.bar()
    ld.issue(0)
    ld.wait(1); R.bar(); ld.issue(1)
    ld.wait(1); R.bar(); ld.issue(2)
    ld.wait(1); R.bar(); ld.issue(3)
    ld.wait(1); R.bar(); ld.issue(0); ld.issue(1)
    ld.steady(2, 24)
    loader_voffs(k, 48, 9, PAIR5, FH*2)
    if not EARLYP: ld.tail()
    k.srd(16, 6, D*FH*2, WS_WOUTT)
    k(f"s_mul_i32 s44, s76, {FH*2}")
    pis = 0
    def ip(n):
        nonlocal pis
        for _ in range(n):
            if pis >= 36: return
            if pis >= 6: k("s_waitcnt vmcnt(54)")
            for j in range(9):
                k(f"s_mov_b32 m0, {PSL[pis % P5N]*P5S + j*1024}")
                k("s_nop 0")
                k(f"buffer_load_dwordx4 v{48+j}, s[16:19], s44 offen lds")
            if not FAKEP: k("s_add_u32 s44, s44, 128")
            pis += 1
    def wp(last_needed):
        k(f"s_waitcnt vmcnt({min(max(pis-1-last_needed, 0)*9, 63)})")
    if EARLYP:
        assert P5N == 10
        k("s_waitcnt vmcnt(36)"); R.bar(); ip(2)
        k("s_waitcnt vmcnt(36)"); R.bar(); ip(2)
        k("s_waitcnt vmcnt(36)"); R.bar(); ip(3)
        R.bar(); ip(3)
        R.bar()
    else:
        ip(PPRE)
        if not WFLAG: R.bar()
        ip(P5N-PPRE)
    wp(1)
    R.bar()
    for i in range(17):
        wp(2*i+3)
        R.bar()
        rem = 36 - P5N
        target = P5N + min(rem, -(-rem*(i+1)//PSPREAD))
        target = min(target, P5N + 2*(i+1))
        ip(target - pis)
    assert pis == 36
    STP.dump()
    k("s_endpgm")
    nbs['P'] = R.nb

    k(f"{lQ}:")
    k("s_setprio 3")
    R = Role(k, 'Q')
    ld = Ld(R, 16, cA.Q_BASE, cA.Q_SLOT, 4, step=64*4096)
    k("s_lshl_b32 s45, s13, 1")
    k("s_lshr_b32 s46, s10, 1")
    k("s_lshl_b32 s44, s46, 18")
    k("s_add_u32 s44, s44, s45")
    ld.mod9 = True
    k("v_lshrrev_b32 v3, 4, v2")
    k("v_and_b32 v4, 15, v2")
    k("v_lshlrev_b32 v5, 1, v3")
    k("v_xor_b32 v4, v4, v5")
    k("v_lshlrev_b32 v4, 4, v4")
    k("v_lshl_add_u32 v4, v3, 12, v4")
    k("v_xor_b32 v5, 128, v4")
    for j in range(16):
        k(f"v_add_u32 v{16+j}, {4*j*4096}, v{5 if (j>>1)&1 else 4}")
    k("s_waitcnt lgkmcnt(0)")
    k.srd(16, 6, D*L*2, WS_HTM)
    ld.issue(0); ld.issue(1)
    loader_voffs(k, 48, 16, PLAIN, 4096)
    ld.wait(1)
    R.bar()
    ld.issue(2)
    for i in range(9):
        ld.wait(1); R.bar()
        ld.issue((i+3) % 4)
    ld.wait(2); ld.issue(0)
    k("v_lshrrev_b32 v3, 3, v2")
    k("v_and_b32 v4, 7, v2")
    k("v_lshrrev_b32 v5, 4, v2")
    k("v_xor_b32 v4, v4, v5")
    for par in range(2):
        k(f"v_xor_b32 v6, {4*par}, v4")
        k(f"v_add_u32 v7, {8*par}, v3")
        k("v_lshrrev_b32 v8, 2, v6")
        k("v_lshlrev_b32 v8, 10, v8")
        k("v_lshl_add_u32 v8, v7, 6, v8")
        k("v_and_b32 v9, 3, v6")
        k(f"v_lshl_add_u32 v{80+par}, v9, 4, v8")
        k("v_lshrrev_b32 v8, 1, v6")
        k("v_mul_u32_u24 v8, 4608, v8")
        k("v_lshl_add_u32 v8, v7, 5, v8")
        k("v_and_b32 v9, 1, v6")
        k("v_lshl_add_u32 v8, v9, 4, v8")
        k(f"v_add_u32 v{82+par}, 4096, v8")
    R.bar()
    ld.steady(1, 5)
    k.srd(16, 72, L*L*2)
    k("s_lshl_b32 s45, s13, 12")
    k("s_lshl_b32 s46, s11, 8")
    k("s_add_u32 s44, s45, s46")
    ld.V = 48; ld.rot = True; ld.mod9 = False
    ld.steady(2, 3)
    R.bar(); ld.wait(2); ld.issue(1)
    R.bar()
    ld.steady(2, 28)
    ld.tail()
    k("s_lshr_b32 s60, s77, 4")
    k(f"s_mul_i32 s60, s60, {16*4608}")
    for j in range(1, 4): k(f"s_add_u32 s{60+j}, s60, {j*16*4608}")
    for j in range(4):
        k(f"s_add_u32 s{56+j}, s10, {j}" if ROT3 else f"s_mov_b32 s{56+j}, {j}")
        k(f"s_and_b32 s{56+j}, s{56+j}, 3")
        k(f"s_mul_i32 s{56+j}, s{56+j}, {4*4608}")
    if WFLAG:
        k.srd(84, 6, HO_BYTES, HO_BASE)
        k("s_lshr_b32 s45, s77, 7")
        k("s_lshl_b32 s45, s45, 9")
        k(f"s_add_u32 s45, s45, {HO_ZGF}")
        k("v_lshlrev_b32 v12, 3, v2")
        k(f"s_mov_b32 s47, {SPIN}")
        pl = k.label('poll'); pd = k.label('pd')
        k("s_sleep 16")
        k(f"{pl}:")
        k(f"buffer_load_dwordx2 v[14:15], v12, s[84:87], s45 offen {SC}")
        k("s_waitcnt vmcnt(0)")
        k("v_or_b32 v13, v14, v15")
        k("v_and_b32 v13, 1, v13")
        k("v_cmp_ne_u32 vcc, 0, v13")
        k("s_sub_u32 s47, s47, 1")
        k("s_cmp_eq_u32 s47, 0")
        k(f"s_cbranch_scc1 {pd}")
        k("s_nop 3")
        k(f"s_cbranch_vccz {pd}")
        k("s_sleep 1")
        k(f"s_branch {pl}")
        k(f"{pd}:")
    else:
        R.bar()
        if REPL:
            assert not MAP3
            poll_flags(lambda: (k("s_lshl_b32 s45, s11, 4"), k("s_add_u32 s45, s45, s10"), k("s_lshl_b32 s45, s45, 7"), k(f"s_add_u32 s45, s45, {HO_ZGF}")))
        else:
            poll_flags(lambda: (k("s_and_b32 s45, s77, 0xffffff80"), k(f"s_add_u32 s45, s45, {HO_ZGF}")))
    k.srd(16, 6, L*FH*2, WS_ZG)
    def iq(mu):
        for hf in range(2):
            st = 2*mu + hf
            ph = st % 9
            cst = ((2*ph) >> 2)*4608 + ((2*ph) & 3)*1024 if ph < 8 else 0
            k(f"s_add_u32 s43, s{56 + st//9}, {cst}" if not FAKEQ else f"s_mov_b32 s43, {(st%2)*2048}")
            for j in range(8):
                if j % 2 == 0: k(f"s_add_u32 s44, s{60 + (j>>1)}, s43")
                k(f"s_mov_b32 m0, {Q5B + (st % Q5N)*Q5S + j*1024}")
                k("s_nop 0")
                k(f"buffer_load_dwordx4 v{(80 if ph < 8 else 82) + (j&1)}, s[16:19], s44 offen {LSC} lds")
    NQ = Q5N//2
    iq(0); iq(1)
    k("s_waitcnt vmcnt(16)")
    R.bar()
    issued = 2
    def top_up(limit):
        nonlocal issued
        while issued < min(limit, 18):
            k("s_waitcnt vmcnt(47)")
            iq(issued); issued += 1
    top_up(min(NQ, 4))
    for i in range(17):
        k(f"s_waitcnt vmcnt({min((issued-1-(i+1))*16, 63)})")
        R.bar()
        top_up(min(i+1+NQ, issued+2))
    k("s_endpgm")
    nbs['Q'] = R.nb

    k(f"{lX}:")
    k("s_setprio 3")
    R = Role(k, 'X')
    k("v_and_b32 v3, 15, v2")
    k("v_lshrrev_b32 v4, 4, v2")
    k("v_add_u32 v5, s12, v2")
    k("v_lshlrev_b32 v5, 2, v5")
    k("v_lshrrev_b32 v12, 2, v3")
    k("v_and_b32 v13, 3, v3")
    k("v_and_b32 v14, 1, v4")
    k("v_lshl_or_b32 v14, v14, 2, v12")
    k("v_lshlrev_b32 v14, 1, v14")
    k("v_lshrrev_b32 v15, 1, v13")
    k("s_and_b32 s43, s10, 1")
    k("s_lshl_b32 s43, s43, 3")
    k("v_add_u32 v15, s43, v15")
    k("v_xor_b32 v15, v15, v14")
    k("v_lshlrev_b32 v15, 4, v15")
    k("v_and_b32 v13, 1, v13")
    k("v_lshl_add_u32 v15, v13, 3, v15")
    k("v_lshl_add_u32 v14, v4, 3, v12")
    k("v_lshl_add_u32 v8, v14, 8, v15")
    k(f"v_add_u32 v8, {cA.Q_BASE}, v8")
    for st in range(1, 4): k(f"v_xor_b32 v{8+st}, {32*st}, v8")
    k("v_cmp_eq_u32 s[62:63], v12, v4")
    make_masks()
    for r in range(4): k(f"v_mov_b32 v{36+r}, 0x3f803f80")
    k("v_lshlrev_b32 v14, 3, v3")
    k("s_waitcnt lgkmcnt(0)")
    k.srd(36, 6, 3*F*4, WS_CWP)
    k.srd(84, 6, HO_BYTES, HO_BASE)
    HX = 40; HY = 104; GA = 72
    def rd_half(H, slot):
        for st in range(4):
            for ks in range(2):
                for x in range(2):
                    r = H + 8*st + 4*ks + 2*x
                    k(f"ds_read_b64_tr_b16 v[{r}:{r+1}], v{8+st} offset:{slot*cA.Q_SLOT + (32*ks+4*x)*256}")
    def stat_half(H, plane_setup):
        for ks in range(2):
            for st in range(4):
                f_ = H + 8*st + 4*ks; a = GA + 8*st
                c0 = "0" if ks == 0 else f"v[{a}:{a+3}]"
                c1 = "0" if ks == 0 else f"v[{a+4}:{a+7}]"
                k(f"v_mfma_f32_16x16x32_bf16 v[{a}:{a+3}], v[36:39], v[{f_}:{f_+3}], {c0}")
                k(f"v_mfma_f32_16x16x32_bf16 v[{a+4}:{a+7}], v[{f_}:{f_+3}], v[{f_}:{f_+3}], {c1}")
        plane_setup()
        k("s_lshl_b32 s42, s42, 14")
        k("s_and_b32 s43, s10, 1")
        k("s_lshl_b32 s43, s43, 6")
        k("s_add_u32 s43, s43, s13")
        k("s_lshl_b32 s43, s43, 3")
        k("s_add_u32 s42, s42, s43")
        k(f"s_add_u32 s42, s42, {HO_LN2}")
        k.nop(2)
        m0, m1 = masks[0], masks[1]
        for st in range(4):
            a = GA + 8*st
            k(f"v_cndmask_b32 v{a+4}, v{a+4}, v{a+5}, s[{m0}:{m0+1}]")
            k(f"v_cndmask_b32 v{a+6}, v{a+6}, v{a+7}, s[{m0}:{m0+1}]")
            k(f"v_cndmask_b32 v{a+1}, v{a+4}, v{a+6}, s[{m1}:{m1+1}]")
            k(f"v_and_b32 v{a}, 0xfffffffe, v{a}")
            k(f"v_and_b32 v{a+1}, 0xfffffffe, v{a+1}")
        k("s_mov_b64 exec, s[62:63]")
        for st in range(4):
            a = GA + 8*st
            k(f"buffer_store_dwordx2 v[{a}:{a+1}], v14, s[84:87], s42 offen offset:{128*st} {SC}")
        k("s_mov_b64 exec, -1")
    R.bar()
    rd_half(HX, 0)
    for a in range(2):
        for p in range(3):
            k(f"s_mov_b32 s42, {(p*F + a*FH)*4}")
            for q in range(3):
                k(f"buffer_load_dword v{16+(a*3+p)*3+q}, v5, s[36:39], s42 offen offset:{256*q}")
    k("v_lshlrev_b32 v6, 2, v2")
    k(f"v_add_u32 v6, {SC_CW1}, v6")
    k("s_waitcnt lgkmcnt(0)")
    R.bar()
    sk1 = k.label('sk'); sk2 = k.label('sk')
    k("s_cmp_lt_u32 s10, 14")
    k(f"s_cbranch_scc1 {sk1}")
    rd_half(HY, 1)
    k(f"{sk1}:")
    stat_half(HX, lambda: k("s_lshr_b32 s42, s10, 1"))
    k("s_waitcnt lgkmcnt(0)")
    R.bar()
    k("s_cmp_lt_u32 s10, 14")
    k(f"s_cbranch_scc1 {sk2}")
    stat_half(HY, lambda: k("s_mov_b32 s42, 8"))
    k(f"{sk2}:")
    R.bar(2)
    def ln_finish(S, Q, n, mrs):
        k(f"v_mul_f32 v{S}, {fhex(1.0/n)}, v{S}")
        k(f"v_mul_f32 v{Q}, {fhex(1.0/n)}, v{Q}")
        k(f"v_fma_f32 v{Q}, -v{S}, v{S}, v{Q}")
        k(f"v_max_f32 v{Q}, 0, v{Q}")
        rbf(k, S, S); rbf(k, Q, Q)
        k(f"v_add_f32 v{Q}, {fhex(1e-5)}, v{Q}")
        rbf(k, Q, Q)
        k(f"v_sqrt_f32 v{Q}, v{Q}")
        k.nop(1)
        rbf(k, Q, Q)
        k(f"v_rcp_f32 v{Q}, v{Q}")
        k.nop(1)
        if mrs: k(f"v_mul_f32 v{S}, v{S}, v{Q}")
    R.bar()
    k("s_waitcnt vmcnt(0)")
    for a in range(2):
        for q in range(3):
            r = 16 + a*9 + q
            k(f"v_add_f32 v{r}, v{r}, v{r+3}")
            k(f"v_add_f32 v{r}, v{r}, v{r+6}")
            k(f"v_cvt_pk_bf16_f32 v7, v{r}, v{r}")
            k("v_lshlrev_b32 v7, 16, v7")
            k(f"v_sub_f32 v7, v{r}, v7")
            k(f"v_cvt_pk_bf16_f32 v{r}, v{r}, v7")
            k(f"ds_write_b32 v6, v{r} offset:{a*768 + 256*q}")
    def poll_sum(nbar, issue, base, nplanes, dst):
        k(f"s_mov_b32 s47, {SPIN}")
        pl = k.label('poll'); pd = k.label('pd'); pc = k.label('pc')
        issue()
        R.bar(nbar)
        k(f"s_branch {pc}")
        k(f"{pl}:")
        k("s_sleep 1")
        issue()
        k(f"{pc}:")
        k("s_waitcnt vmcnt(0)")
        for j in range(4): k(f"v_add_f32 v{dst+j}, v{base+j}, v{base+4+j}")
        for p in range(2, nplanes):
            for j in range(4): k(f"v_add_f32 v{dst+j}, v{dst+j}, v{base+4*p+j}")
        k(f"v_add_f32 v12, v{dst}, v{dst+1}")
        k(f"v_add_f32 v13, v{dst+2}, v{dst+3}")
        k("v_cmp_u_f32 vcc, v12, v13")
        k("s_nop 4")
        k(f"s_cbranch_vccz {pd}")
        regs = list(range(base, base+4*nplanes))
        k(f"v_or_b32 v13, v{regs[0]}, v{regs[1]}")
        rest = regs[2:]
        while rest:
            k(f"v_or3_b32 v13, v13, v{rest[0]}, v{rest[1]}"); rest = rest[2:]
        k("v_and_b32 v13, 1, v13")
        k("v_cmp_ne_u32 vcc, 0, v13")
        k("s_sub_u32 s47, s47, 1")
        k("s_cmp_eq_u32 s47, 0")
        k(f"s_cbranch_scc1 {pd}")
        k("s_nop 3")
        k(f"s_cbranch_vccnz {pl}")
        k(f"{pd}:")
    R.bar(1)
    k("v_lshlrev_b32 v5, 4, v2")
    k("s_lshl_b32 s42, s13, 3")
    k(f"s_add_u32 s42, s42, {HO_LN2}")
    def iss2():
        for p in range(9):
            k(f"s_add_u32 s43, s42, {p << 14}")
            k(f"buffer_load_dwordx4 v[{40+4*p}:{43+4*p}], v5, s[84:87], s43 offen {SC}")
    poll_sum(1, iss2, 40, 9, 24)
    def pf_issue(a=0, b=32):
        if not PF: return
        if a == 0:
            k.srd(36, 72, L*L*2)
            k("s_lshl_b32 s46, s2, 15")
        for j in range(a, b):
            r = 96 + 4*(j % 16)
            k(f"buffer_load_dwordx4 v[{r}:{r+3}], v5, s[36:39], s46 offen")
            k("s_add_u32 s46, s46, 1024")
    R.bar()
    ln_finish(24, 25, D, False)
    ln_finish(26, 27, D, False)
    k("v_cvt_pk_bf16_f32 v20, -v24, -v24")
    k("v_cvt_pk_bf16_f32 v21, -v26, -v26")
    k("v_mov_b32 v22, v25")
    k("v_mov_b32 v23, v27")
    k("v_lshlrev_b32 v6, 3, v2")
    k(f"v_add_u32 v6, {SC_RS2}, v6")
    k("ds_write_b64 v6, v[22:23]")
    k("ds_write_b64 v6, v[20:21] offset:512")
    k("s_waitcnt lgkmcnt(0)")
    if PFAT == 7: pf_issue(0, 12)
    R.bar()
    if PFAT == 7: pf_issue(12, 32)
    if PFAT == 8: pf_issue()
    k(f"v_add_u32 v7, {SC_P3}, v5")
    k("s_lshl_b32 s42, s13, 3")
    k("s_lshl_b32 s43, s10, 14")
    k("s_add_u32 s43, s43, s42")
    R.bar()
    k("ds_read_b128 v[16:19], v7")
    k("ds_read_b128 v[20:23], v7 offset:1024")
    k("s_waitcnt lgkmcnt(0)")
    for j in range(4):
        k(f"v_add_f32 v{16+j}, v{16+j}, v{20+j}")
        k(f"v_and_b32 v{16+j}, 0xfffffffe, v{16+j}")
    k(f"buffer_store_dwordx4 v[16:19], v5, s[84:87], s43 offen {SC}")
    R.bar(NA-1-PB)
    def iss():
        for p in range(16):
            k(f"s_add_u32 s43, s42, {p << 14}")
            k(f"buffer_load_dwordx4 v[{32+4*p}:{35+4*p}], v5, s[84:87], s43 offen {SC}")
    poll_sum(PB, iss, 32, 16, 24)
    ln_finish(24, 25, FH, True)
    ln_finish(26, 27, FH, True)
    k("v_mov_b32 v16, v25"); k("v_mov_b32 v17, v27"); k("v_mov_b32 v18, v24"); k("v_mov_b32 v19, v26")
    k("v_lshlrev_b32 v6, 3, v2")
    k(f"v_add_u32 v6, {SC_RS3}, v6")
    k("ds_write_b64 v6, v[16:17]")
    k("ds_write_b64 v6, v[18:19] offset:512")
    k("s_waitcnt lgkmcnt(0)")
    k("v_mov_b32 v16, 0")
    if REPL: k("v_lshlrev_b32 v5, 7, v2")
    else: k("v_mov_b32 v5, 0")
    k(f"s_lshl_b32 s42, s10, {11 if REPL else 7}")
    k("s_lshl_b32 s43, s11, 2")
    k("s_add_u32 s42, s42, s43")
    k(f"s_add_u32 s42, s42, {HO_Z2F}")
    R.bar(GF + 1 - (8+NA))
    k(f"s_mov_b64 exec, {0xffff if REPL else 1}")
    k(f"buffer_store_dword v16, v5, s[84:87], s42 offen {SC}")
    k("s_mov_b64 exec, -1")
    R.bar(17 - GF)
    if REPL:
        poll_flags(lambda: (k("s_lshl_b32 s45, s10, 4"), k("s_add_u32 s45, s45, s11"), k("s_lshl_b32 s45, s45, 7"), k(f"s_add_u32 s45, s45, {HO_Z2F}")))
    else:
        poll_flags(lambda: (k("s_lshl_b32 s45, s10, 7"), k(f"s_add_u32 s45, s45, {HO_Z2F}")))
    R.bar()
    k("s_mov_b32 s43, 7")
    lp = k.label('lp'); k(f"{lp}:")
    R.bar(4); R.nb += 24
    k("s_sub_u32 s43, s43, 1")
    k("s_cmp_lg_u32 s43, 0")
    k(f"s_cbranch_scc1 {lp}")
    if WARM2:
        k.srd(36, 6, D*FH*2, WS_WOUTT)
        k("v_lshlrev_b32 v6, 7, v2")
        k("s_lshr_b32 s42, s2, 3")
        k("s_mul_i32 s42, s42, 82944")
    if WARM3:
        k.srd(36, 6, D*FH*2, WS_WOUTT)
        k("v_lshrrev_b32 v6, 2, v2")
        k("v_and_b32 v7, 3, v2")
        k(f"v_mul_u32_u24 v6, {FH*2}, v6")
        k("v_lshl_add_u32 v6, v7, 7, v6")
        k("s_and_b32 s42, s11, 7")
        k("s_mul_i32 s42, s42, 13")
        k("s_lshr_b32 s42, s42, 2")
        k("s_min_u32 s42, s42, 22")
        k(f"s_add_u32 s42, s42, {P5N}")
        k("s_lshl_b32 s42, s42, 7")
        k(f"s_mul_i32 s43, s76, {FH*2}")
        k("s_add_u32 s42, s42, s43")
    for b in range(5):
        if WARM3 and b == WARM3 - 1:
            for j in range(5):
                if j == 4: k("s_mov_b64 exec, 0xffffffff")
                k(f"buffer_load_dword v{20+j}, v6, s[36:39], s42 offen")
                k(f"s_add_u32 s42, s42, {16*FH*2}")
            k("s_mov_b64 exec, -1")
        if b < 4: R.bar()
    if not WFLAG:
        k(f"s_lshl_b32 s42, s11, {11 if REPL else 7}")
        k("s_lshl_b32 s43, s10, 2")
        k("s_add_u32 s42, s42, s43")
        k(f"s_add_u32 s42, s42, {HO_ZGF}")
        k(f"s_mov_b64 exec, {0xffff if REPL else 1}")
        R.bar()
        k(f"buffer_store_dword v16, v5, s[84:87], s42 offen {SC}")
    if WARMP:
        k("s_mov_b64 exec, -1")
        k.srd(36, 6, D*FH*2, WS_WOUTT)
        k("v_lshrrev_b32 v6, 3, v2")
        k("v_and_b32 v7, 7, v2")
        k("v_min_u32 v7, 5, v7")
        k(f"v_mul_u32_u24 v6, {FH*2}, v6")
        k("v_lshl_add_u32 v6, v7, 7, v6")
        k("s_and_b32 s42, s11, 7")
        k("s_mul_i32 s42, s42, 576")
        k("s_and_b32 s42, s42, 0xffffff80")
        k(f"s_mul_i32 s43, s76, {FH*2}")
        k("s_add_u32 s42, s42, s43")
        for j in range(9):
            k(f"buffer_load_dword v{20+j}, v6, s[36:39], s42 offen")
            k(f"s_add_u32 s42, s42, {8*FH*2}")
    k("s_endpgm")
    nbs['X'] = R.nb
    assert nbs['c0'] == nbs['c1'] == nbs['P'] == nbs['Q'] == nbs['X'] + 18, nbs
    k(f"{done}:")
    k("s_endpgm")
    return k, LDS
```

```python
import sys, math
sys.path.insert(0, 'work')
from gcore import *
import gen_v0 as v0
from gen_a import cexp, INV2PI, CP, UB, UP, YP
from gen_ka import strip_transpose
rbf = v0.rbf
def cmul(k, dr, di, ar, ai, br, bi):
    assert di == dr+1 and ai == ar+1 and bi == br+1 and dr % 2 == 0 and ar % 2 == 0 and br % 2 == 0
    k(f"v_pk_mul_f32 v[{dr}:{di}], v[{ar}:{ai}], v[{br}:{bi}] op_sel:[0,0] op_sel_hi:[0,1]")
    k(f"v_pk_fma_f32 v[{dr}:{di}], v[{ar}:{ai}], v[{br}:{bi}], v[{dr}:{di}] op_sel:[1,1,0] op_sel_hi:[1,0,1] neg_lo:[0,1,0]")
WS_UX = 64*MB
UXP = 8448
WS_HT2 = 72*MB
WS_KR = 80*MB
KR_PITCH = 4224
KPERM = False
KPF = False
CPF = 0
WT = ''
WT1 = ''
WTH = ''
CONVWW = False
CONVPF = False
CPRIO = False
WWLATE = 0
QSPLIT = False
WSPLIT = False
TRI = False
REORD = False
CPF_BYTES = 98304

def emit_R(k, idreg):
    RP = 1184
    k("s_setprio 3")
    k(f"s_and_b32 s13, s{idreg}, 7")
    k("s_lshl_b32 s13, s13, 4")
    k(f"s_lshr_b32 s3, s{idreg}, 3")
    k("s_add_u32 s13, s13, s3")
    k("s_lshl_b32 s3, s13, 4")
    k("v_lshrrev_b32 v1, 4, v0")
    k("v_add_u32 v5, s3, v1")
    k("v_and_b32 v2, 15, v0")
    k(f"v_mul_u32_u24 v3, {D*2}, v5")
    k("v_lshl_add_u32 v3, v2, 3, v3")
    k("s_waitcnt lgkmcnt(0)")
    k.lines.append("    ;@ST")
    k.srd(32, 16, L*D*2)
    for q in range(9):
        k(f"buffer_load_dwordx2 v[{8+2*q}:{9+2*q}], v3, s[32:35], 0 offen offset:{128*q}")
    k.srd(36, 6, 128*D*64, WS_UX)
    k(f"v_mul_u32_u24 v66, {RP}, v1")
    k("v_lshl_add_u32 v66, v2, 3, v66")
    X = 30
    k("v_mov_b32 v4, 0")
    k("v_mov_b32 v7, 0")
    for q in range(9):
        k(f"s_waitcnt vmcnt({8-q})")
        k(f"ds_write_b64 v66, v[{8+2*q}:{9+2*q}] offset:{16*RP + 128*q}")
        for j in range(2):
            r = 8 + 2*q + j
            k(f"v_lshlrev_b32 v{X+4*q+2*j}, 16, v{r}")
            k(f"v_and_b32 v{X+4*q+2*j+1}, 0xffff0000, v{r}")
            k(f"v_add_f32 v4, v4, v{X+4*q+2*j}")
            k(f"v_add_f32 v7, v7, v{X+4*q+2*j+1}")
    k("v_add_f32 v4, v4, v7")
    k.lines.append("    ;@ST")
    def red16(v):
        for ctl in ["quad_perm:[1,0,3,2]", "quad_perm:[2,3,0,1]", "row_half_mirror", "row_mirror"]:
            k.nop(2)
            k(f"v_add_f32_dpp v{v}, v{v}, v{v} {ctl} row_mask:0xf bank_mask:0xf")
    red16(4)
    k(f"v_mul_f32 v4, {fhex(1.0/D)}, v4")
    k("v_mov_b32 v6, 0")
    k("v_mov_b32 v7, 0")
    for i in range(36):
        k(f"v_sub_f32 v{68+(i&3)}, v{X+i}, v4")
        k(f"v_fmac_f32 v{6 + (i&1)}, v{68+(i&3)}, v{68+(i&3)}")
    k("v_add_f32 v6, v6, v7")
    red16(6)
    k(f"v_mul_f32 v6, {fhex(1.0/D)}, v6")
    rbf(k, 4, 4); rbf(k, 6, 6)
    k(f"v_add_f32 v6, {fhex(1e-5)}, v6")
    rbf(k, 6, 6)
    k("v_sqrt_f32 v6, v6")
    k.nop(1)
    rbf(k, 6, 6)
    k("v_rcp_f32 v5, v6")
    k.lines.append("    ;@ST")
    for i in range(36): k(f"v_sub_f32 v{X+i}, v{X+i}, v4")
    for j in range(18): k(f"v_cvt_pk_bf16_f32 v{8+j}, v{X+2*j}, v{X+2*j+1}")
    for j in range(18):
        k(f"v_lshlrev_b32 v{X+2*j}, 16, v{8+j}")
        k(f"v_and_b32 v{X+2*j+1}, 0xffff0000, v{8+j}")
    for i in range(36): k(f"v_mul_f32 v{X+i}, v{X+i}, v5")
    for j in range(18): k(f"v_cvt_pk_bf16_f32 v{8+j}, v{X+2*j}, v{X+2*j+1}")
    for q in range(9):
        k(f"ds_write_b64 v66, v[{8+2*q}:{9+2*q}] offset:{128*q}")
    k("v_and_b32 v2, 63, v0")
    k("v_lshrrev_b32 v1, 6, v0")
    k("v_and_b32 v3, 15, v2")
    k("v_lshrrev_b32 v4, 4, v2")
    k("v_lshrrev_b32 v5, 2, v3")
    k("v_lshl_add_u32 v5, v4, 3, v5")
    k(f"v_mul_u32_u24 v5, {RP}, v5")
    k("v_and_b32 v6, 3, v3")
    k("v_lshl_add_u32 v5, v6, 3, v5")
    k(f"v_mul_u32_u24 v6, {9*32}, v1")
    k("v_add_u32 v5, v5, v6")
    k(f"v_mul_u32_u24 v6, {9*16}, v1")
    k("v_add_u32 v6, v6, v3")
    k("v_lshlrev_b32 v6, 6, v6")
    k("v_lshl_add_u32 v6, v4, 4, v6")
    k(f"s_mul_i32 s3, s13, {D*64}")
    k("s_waitcnt lgkmcnt(0)")
    k.lines.append("    ;@ST")
    k("s_barrier")
    k.lines.append("    ;@ST")
    for g in range(9):
        for x in range(2):
            k(f"ds_read_b64_tr_b16 v[{8+4*g+2*x}:{9+4*g+2*x}], v5 offset:{32*g + 4*x*RP}")
    for g in range(9):
        k(f"s_waitcnt lgkmcnt({min(16-2*g, 15)})")
        k(f"buffer_store_dwordx4 v[{8+4*g}:{11+4*g}], v6, s[36:39], s3 offen {WT}")
        k(f"s_add_u32 s3, s3, 1024")
    k("s_endpgm")
    k.lines.append("    ;@ST0")

def emit_kgen(k, done):
    lX = k.label('xw'); lJ = k.label('join'); lPC = k.label('pc')
    XP = 528
    XA, YB = 0, 21*XP
    TB = YB + 32*XP
    k("v_and_b32 v1, 127, v0")
    k("v_lshlrev_b32 v2, 1, v1")
    k("s_lshl_b32 s3, s14, 8")
    k("v_add_u32 v2, s3, v2")
    k("s_lshl_b32 s3, s14, 1")
    k("v_mov_b32 v3, s3")
    k("v_lshrrev_b32 v4, 6, v0")
    k("s_waitcnt lgkmcnt(0)")
    k.lines.append("    ;@ST")
    k("v_readfirstlane_b32 s15, v4")
    k.srd(56, 30, D*2)
    k("buffer_load_ushort v16, v3, s[56:59], 0 offen")
    for i in range(6):
        k.srd(32+4*i, 18+2*i, D*N*2)
        k(f"buffer_load_ushort v{10+i}, v2, s[{32+4*i}:{35+4*i}], 0 offen")
    G = 56
    k("s_getpc_b64 s[60:61]")
    k(f"{lPC}:")
    k(f"s_add_u32 s60, s60, gtab_{k.name}-{lPC}")
    k("s_addc_u32 s61, s61, 0")
    k("s_mov_b32 s62, 4096")
    k("s_mov_b32 s63, 0x00020000")
    k("v_lshlrev_b32 v5, 4, v0")
    k(f"buffer_load_dwordx4 v[{G}:{G+3}], v5, s[60:63], 0 offen")
    k("v_and_b32 v64, 15, v0")
    k("v_bfe_u32 v65, v0, 4, 2")
    k(f"v_mul_u32_u24 v4, {XP}, v64")
    k("v_lshl_add_u32 v4, v65, 4, v4")
    k("s_lshr_b32 s3, s15, 1")
    k(f"s_mul_i32 s3, s3, {16*XP}")
    k("v_add_u32 v66, s3, v4")
    k("s_and_b32 s10, s15, 1")
    k(f"s_mul_i32 s11, s10, {16*XP}")
    k(f"s_add_u32 s11, s11, {YB}")
    k("v_add_u32 v67, s11, v4")
    k("s_lshr_b32 s3, s15, 1")
    k("s_lshl_b32 s3, s3, 4")
    k("v_add_u32 v7, s3, v64")
    k("v_mov_b32 v68, v7")
    for sh, sub in ((1, 8), (2, 32), (3, 96)):
        k(f"v_lshlrev_b32 v8, {sh}, v7")
        k(f"v_subrev_u32 v8, {sub}, v8")
        k("v_max_i32 v68, v68, v8")
    k("v_min_i32 v68, 71, v68")
    k("v_lshlrev_b32 v68, 6, v68")
    k("v_lshl_add_u32 v68, v65, 3, v68")
    k("s_lshl_b32 s10, s10, 5")
    k("v_add_u32 v68, s10, v68")
    k("v_lshlrev_b32 v9, 2, v1")
    Lhi = struct.unpack('<f', struct.pack('<f', LOG2E))[0]
    Llo = LOG2E - Lhi
    k(f"s_mov_b32 s8, {fhex(Lhi)}")
    k(f"s_mov_b32 s9, {fhex(Llo)}")
    k("s_waitcnt vmcnt(5)")
    k.lines.append("    ;@ST")
    for r in (16, 10, 11): k(f"v_lshlrev_b32 v{r}, 16, v{r}")
    k("v_mul_f32 v17, s8, v16")
    k("v_fma_f32 v18, v16, s8, -v17")
    k("v_fma_f32 v18, v16, s9, v18")
    k("v_exp_f32 v17, v17")
    k(f"v_mul_f32 v18, {fhex(math.log(2.0))}, v18")
    k("v_fma_f32 v17, v17, v18, v17")
    rbf(k, 17, 17)
    k("v_mul_f32 v20, v17, v10")
    k("v_mul_f32 v21, v17, v11")
    k(f"v_mul_f32 v20, {fhex(LOG2E)}, v20")
    k(f"v_mul_f32 v21, {fhex(INV2PI)}, v21")
    if KPF:
        lpf = k.label('pf'); lp2 = k.label('pf2')
        k("s_waitcnt vmcnt(0) lgkmcnt(0)")
        k("v_lshlrev_b32 v6, 7, v0")
        k("s_cmp_ge_u32 s14, 256")
        k(f"s_cbranch_scc1 {lp2}")
        k.srd(32, 66, L*L*2)
        k("s_lshl_b32 s3, s14, 15")
        k("buffer_load_dword v70, v6, s[32:35], s3 offen")
        k(f"s_branch {lpf}")
        k(f"{lp2}:")
        k.srd(32, 70, FH*D*2)
        k("s_sub_u32 s3, s14, 256")
        k("s_lshl_b32 s3, s3, 15")
        k("buffer_load_dword v70, v6, s[32:35], s3 offen")
        k(f"{lpf}:")
    k("s_cmp_ge_u32 s15, 2")
    k(f"s_cbranch_scc1 {lX}")
    cexp(k, 22, 23, 20, 21, 8, 24)
    k("v_mov_b32 v30, 0x00003f80")
    k(f"ds_write_b32 v9, v30 offset:{YB}")
    k("v_cvt_pk_bf16_f32 v31, v22, v23")
    k(f"ds_write_b32 v9, v31 offset:{YB+XP}")
    cmul(k, 24, 25, 22, 23, 22, 23)
    k("v_cvt_pk_bf16_f32 v30, v24, v25")
    k(f"ds_write_b32 v9, v30 offset:{YB+2*XP}")
    cur = {1: (22, 23), 0: (24, 25)}
    free = [(26, 27), (28, 29), (32, 33), (34, 35)]
    fi = 0
    for b in range(3, 32):
        a = cur[b & 1]; d_ = free[fi % 4]; fi += 1
        cmul(k, d_[0], d_[1], a[0], a[1], 24, 25)
        k(f"v_cvt_pk_bf16_f32 v{30 + (b&1)}, v{d_[0]}, v{d_[1]}")
        k(f"ds_write_b32 v9, v{30 + (b&1)} offset:{YB+b*XP}")
        cur[b & 1] = d_
    k(f"s_branch {lJ}")
    k(f"{lX}:")
    cexp(k, 22, 23, 20, 21, 1, 40)
    cexp(k, 42, 43, 20, 21, 256, 40)
    cexp(k, 44, 45, 20, 21, 512, 40)
    cexp(k, 46, 47, 20, 21, 1024, 40)
    if not KPF: k("s_waitcnt vmcnt(0)")
    for r in (12, 13, 14, 15): k(f"v_lshlrev_b32 v{r}, 16, v{r}")
    k("v_mul_f32 v12, v17, v12")
    k("v_mul_f32 v13, v17, v13")
    X0 = 24
    cmul(k, X0, X0+1, 14, 15, 12, 13)
    def putX(row, r, i_):
        k(f"v_cvt_pk_bf16_f32 v{40 + (row&1)}, v{r}, -v{i_}")
        k(f"ds_write_b32 v9, v{40 + (row&1)} offset:{XA+row*XP}")
    putX(0, X0, X0+1)
    for h in range(1, 8):
        cmul(k, X0+2*h, X0+2*h+1, X0+2*h-2, X0+2*h-1, 22, 23)
        putX(h, X0+2*h, X0+2*h+1)
    for i, h in enumerate((0, 2, 4, 6)):
        cmul(k, 48, 49, X0+2*h, X0+2*h+1, 42, 43); putX(8+i, 48, 49)
    for i, h in enumerate((0, 4)):
        cmul(k, 48, 49, X0+2*h, X0+2*h+1, 44, 45); putX(12+i, 48, 49)
        cmul(k, 50, 51, 48, 49, 42, 43); putX(14+i, 50, 51)
    cmul(k, 48, 49, X0, X0+1, 46, 47); putX(16, 48, 49)
    cmul(k, 50, 51, 48, 49, 42, 43); putX(17, 50, 51)
    cmul(k, 50, 51, 48, 49, 44, 45); putX(18, 50, 51)
    cmul(k, 52, 53, 50, 51, 42, 43); putX(19, 52, 53)
    cmul(k, 52, 53, 48, 49, 46, 47); putX(20, 52, 53)
    k(f"{lJ}:")
    k("s_waitcnt lgkmcnt(0)" if KPF else "s_waitcnt vmcnt(0) lgkmcnt(0)")
    k.lines.append("    ;@ST")
    k("s_barrier")
    k.lines.append("    ;@ST")
    for ks in range(4):
        k(f"ds_read_b128 v[{8+8*ks}:{11+8*ks}], v67 offset:{64*ks}")
        k(f"ds_read_b128 v[{12+8*ks}:{15+8*ks}], v66 offset:{64*ks}")
    for ks in range(8):
        r = 8 + 8*(ks % 4)
        k(f"s_waitcnt lgkmcnt({6 if ks < 5 else (7-ks)*2})")
        c = "0" if ks == 0 else "v[40:43]"
        k(f"v_mfma_f32_16x16x32_bf16 v[40:43], v[{r}:{r+3}], v[{r+4}:{r+7}], {c}")
        if ks < 4:
            k(f"ds_read_b128 v[{r}:{r+3}], v67 offset:{64*(ks+4)}")
            k(f"ds_read_b128 v[{r+4}:{r+7}], v66 offset:{64*(ks+4)}")
    k.srd(32, 6, D*KR_PITCH, WS_KR)
    k(f"s_mul_i32 s3, s14, {KR_PITCH}")
    for j in range(4):
        k(f"v_and_b32 v{48+2*j}, 0xffff, v{G+j}")
        k(f"v_lshrrev_b32 v{49+2*j}, 16, v{G+j}")
    for r in range(20, 24): k(f"v_mov_b32 v{r}, 0")
    k("v_cvt_pk_bf16_f32 v46, v40, v41")
    k("v_cvt_pk_bf16_f32 v47, v42, v43")
    k(f"ds_write_b64 v68, v[46:47] offset:{TB}")
    k("s_waitcnt lgkmcnt(0)")
    k("s_barrier")
    k.lines.append("    ;@ST")
    for e in range(8): k(f"ds_read_u16 v{8+e}, v{48+e} offset:{TB}")
    k("s_waitcnt lgkmcnt(0)")
    for j in range(4): k(f"v_lshl_or_b32 v{16+j}, v{9+2*j}, 16, v{8+2*j}")
    k(f"buffer_store_dwordx4 v[16:19], v5, s[32:35], s3 offen {WT}")
    k("v_cmp_gt_u32 vcc, 8, v0")
    k("s_and_saveexec_b64 s[4:5], vcc")
    k(f"s_cbranch_execz {done}")
    k("s_add_u32 s3, s3, 4096")
    k("buffer_store_dwordx4 v[20:23], v5, s[32:35], s3 offen")
    k("s_endpgm")
    k.lines.append("    ;@ST0")
    return TB + 72*64

def code_prefetch(k, sym, endsym, nbytes, vtmp, vdst, S=72, lanes=64):
    lp = k.label('cp')
    k(f"s_getpc_b64 s[{S}:{S+1}]")
    k(f"{lp}:")
    k(f"s_add_u32 s{S}, s{S}, {sym}-{lp}")
    k(f"s_addc_u32 s{S+1}, s{S+1}, {'-1' if sym == k.name else '0'}")
    k(f"s_mov_b32 s{S+2}, {endsym}-{sym}")
    k(f"s_mov_b32 s{S+3}, 0x00020000")
    k(f"v_lshlrev_b32 v{vtmp}, 7, v0")
    per = lanes*128
    for j in range(-(-nbytes//per)):
        k(f"s_mov_b32 s{S+4}, {j*per}")
        k(f"buffer_load_dword v{vdst}, v{vtmp}, s[{S}:{S+3}], s{S+4} offen")

def gather_table(name):
    import numpy as np
    def rb(l):
        u = struct.unpack('<I', struct.pack('<f', float(l)))[0]
        u = (u + 0x7fff + ((u >> 16) & 1)) & 0xffff0000
        return int(struct.unpack('<f', struct.pack('<I', u))[0])
    vals = []
    for x in range(2048):
        v = rb(2047 - x)
        vals.append((((v >> 8)*8 + (v & 7)) << 6) + ((v >> 3) & 31)*2)
    out = [".p2align 6", f".type gtab_{name},@object", f"gtab_{name}:"]
    for i in range(0, 2048, 16):
        out.append("    .short " + ", ".join(str(v) for v in vals[i:i+16]))
    out.append(f".size gtab_{name}, 4096")
    return out

def emit_w1(k, clear, cw_off, half=None, lb=None):
    k("s_waitcnt lgkmcnt(0)")
    if clear:
        k.srd(32, 6, clear[1], clear[0])
        for r in range(20, 24): k(f"v_mov_b32 v{r}, -1")
        k("v_lshlrev_b32 v24, 4, v0")
        if half is None:
            k("s_lshl_b32 s13, s3, 12")
            k("buffer_store_dwordx4 v[20:23], v24, s[32:35], s13 offen")
        else:
            k("s_lshl_b32 s13, s3, 13")
            k("buffer_store_dwordx4 v[20:23], v24, s[32:35], s13 offen")
            k("s_add_u32 s13, s13, 4096")
            k("buffer_store_dwordx4 v[20:23], v24, s[32:35], s13 offen")
    if half == 'idx':
        k("s_cmp_ge_u32 s3, 108")
        k("s_cselect_b32 s12, 0, 36")
        k("s_cselect_b32 s13, 108, 0")
        k("s_sub_u32 s3, s3, s13")
        k("s_cmp_ge_u32 s3, 36")
        k("s_cselect_b32 s13, 36, 0")
        k("s_cmp_ge_u32 s3, 72")
        k("s_cselect_b32 s13, 72, s13")
        k("s_add_u32 s3, s3, s13")
        k("s_add_u32 s3, s3, s12")
    elif half is not None:
        k("s_cmp_ge_u32 s3, 36")
        k("s_cselect_b32 s13, 36, 0")
        k("s_cmp_ge_u32 s3, 72")
        k("s_cselect_b32 s13, 72, s13")
        k("s_add_u32 s3, s3, s13")
        if half: k("s_add_u32 s3, s3, 36")
    strip_transpose(k, 64, D, F, WS_WINT, 3, cw_off=cw_off, st=WT1, tiled=True, lb=lb)

def k1_kernel(name='k1_kernel', clear=None, cw_off=None, w1=True, w2=False):
    k = Kernel(name, vgpr=72, sgpr=80)
    done = k.label('done'); lK = k.label('kg'); lW = k.label('w1'); lN = k.label('nocp')
    NC_ = 32 if CPF else 0
    NR = 128; NW = (((132 if TRI else 108) if WSPLIT else 216) if w1 else 0) + (108 if w2 else 0)
    if CPF:
        k(f"s_cmp_ge_u32 s2, {NC_}")
        k(f"s_cbranch_scc1 {lN}")
        lp = k.label('cp')
        k("s_getpc_b64 s[4:5]")
        k(f"{lp}:")
        k(f"s_add_u32 s4, s4, {name}-{lp}")
        k("s_addc_u32 s5, s5, -1")
        k(f"s_mov_b32 s6, all_code_end-{name}")
        k("s_mov_b32 s7, 0x00020000")
        k("v_lshlrev_b32 v1, 7, v0")
        k("s_lshr_b32 s3, s2, 3")
        k("s_lshl_b32 s3, s3, 15")
        k("buffer_load_dword v2, v1, s[4:7], s3 offen")
        k("s_endpgm")
        k(f"{lN}:")
        k(f"s_sub_u32 s2, s2, {NC_}")
    k(f"s_cmp_ge_u32 s2, {NR+D+NW}")
    k(f"s_cbranch_scc1 {done}")
    k(f"s_load_dwordx2 s[6:7], s[0:1], {KA['ws']}")
    k(f"s_cmp_ge_u32 s2, {NR+D}")
    k(f"s_cbranch_scc1 {lW}")
    k("s_load_dwordx16 s[16:31], s[0:1], 0")
    k(f"s_cmp_ge_u32 s2, {NR}")
    k(f"s_cbranch_scc1 {lK}")
    emit_R(k, 2)
    k(f"{lK}:")
    k(f"s_sub_u32 s14, s2, {NR}")
    lds = emit_kgen(k, done)
    k(f"{lW}:")
    k("s_load_dwordx8 s[64:71], s[0:1], 80")
    k(f"s_sub_u32 s3, s2, {NR+D}")
    if w2:
        lw2 = k.label('w2')
        k("s_cmp_ge_u32 s3, 216")
        k(f"s_cbranch_scc1 {lw2}")
    emit_w1(k, clear, cw_off, half=('idx' if TRI else 1) if WSPLIT else None)
    if w2:
        k(f"{lw2}:")
        k("s_sub_u32 s3, s3, 216")
        k("s_waitcnt lgkmcnt(0)")
        strip_transpose(k, 70, FH, D, WS_WOUTT, 3, kperm=KPERM)
    k(f"{done}:")
    k("s_endpgm")
    k.tail = gather_table(k.name)
    b = NC_
    return k, b+NR+D+NW, max(lds, 32*1184), [["R", b, b+NR], ["kgen", b+NR, b+NR+D]] + ([["w1", b+NR+D, b+NR+D+NW]] if w1 else [])

def emit_conv(k, ht_off):
    if CPRIO: k("s_setprio 3")
    k("s_mov_b32 s16, 4")
    k("s_mov_b32 s17, s2")
    if QSPLIT:
        k("s_sub_u32 s3, s2, 512")
        k("s_lshr_b32 s4, s3, 6")
        k("s_and_b32 s3, s3, 63")
        k("s_add_u32 s3, s3, 512")
        k("s_cmp_ge_u32 s2, 512")
        k("s_cselect_b32 s16, s4, s16")
        k("s_cselect_b32 s17, s3, s17")
    if TRI:
        k("s_lshr_b32 s14, s2, 4")
        k("s_mul_i32 s14, s14, 48")
        k("s_and_b32 s3, s2, 7")
        k("s_mul_i32 s3, s3, 6")
        k("s_add_u32 s14, s14, s3")
        k("s_bfe_u32 s3, s2, 0x10003")
        k("s_mul_i32 s3, s3, 3")
        k("s_add_u32 s14, s14, s3")
        k("s_add_u32 s14, s14, s78")
    else:
        k("s_mov_b32 s79, 0")
        k("s_and_b32 s14, s17, 0xfffffff0")
        k("s_and_b32 s3, s17, 7")
        k("s_lshl_b32 s3, s3, 1")
        k("s_add_u32 s14, s14, s3")
        k("s_bfe_u32 s3, s17, 0x10003")
        k("s_add_u32 s14, s14, s3")
    k("v_lshlrev_b32 v1, 4, v0")
    k("v_add_u32 v22, s79, v1")
    k("v_lshrrev_b32 v3, 6, v0")
    k("v_lshrrev_b32 v20, 1, v0")
    k(f"v_mul_u32_u24 v20, {D*64}, v20")
    k("v_and_b32 v21, 1, v0")
    k("v_lshl_add_u32 v20, v21, 4, v20")
    k("s_lshl_b32 s3, s14, 6")
    k(f"s_mul_i32 s4, s14, {KR_PITCH}")
    k("s_lshl_b32 s5, s14, 1")
    k("v_mov_b32 v4, s5")
    k("v_readfirstlane_b32 s15, v3")
    k("s_waitcnt lgkmcnt(0)")
    k.lines.append("    ;@ST")
    k.srd(28, 6, D*KR_PITCH, WS_KR)
    k("buffer_load_dwordx4 v[8:11], v1, s[28:31], s4 offen")
    k("buffer_load_dwordx4 v[12:15], v1, s[28:31], s4 offen offset:16")
    k.srd(32, 6, 128*D*64, WS_UX)
    k("buffer_load_dwordx4 v[24:27], v20, s[32:35], s3 offen")
    k("buffer_load_dwordx4 v[16:19], v20, s[32:35], s3 offen offset:32")
    k.srd(40, 8, D*2)
    k("buffer_load_ushort v36, v4, s[40:43], 0 offen")
    k.srd(44, 6, D*L*2, ht_off)
    for r in range(40, 44): k(f"v_mov_b32 v{r}, 0")
    k("v_cmp_gt_u32 vcc, 160, v0")
    k("s_and_saveexec_b64 s[10:11], vcc")
    k(f"ds_write_b128 v22, v[40:43] offset:{UB}")
    k("s_mov_b64 exec, s[10:11]")
    k("v_lshrrev_b32 v5, 2, v0")
    k(f"v_mul_u32_u24 v5, {CP}, v5")
    k("v_and_b32 v6, 3, v0")
    k("v_lshl_add_u32 v5, v6, 4, v5")
    k("v_add_u32 v5, s79, v5")
    k("v_cmp_gt_u32 vcc, 32, v0")
    k("s_and_saveexec_b64 s[10:11], vcc")
    k("ds_write_b128 v5, v[40:43] offset:4096")
    k("s_mov_b64 exec, s[10:11]")
    k("v_and_b32 v2, 15, v0")
    k("v_bfe_u32 v3, v0, 4, 2")
    k("v_and_b32 v5, 7, v2")
    k("v_sub_u32 v5, 7, v5")
    k(f"v_mul_u32_u24 v5, {CP}, v5")
    k("v_lshrrev_b32 v6, 3, v2")
    k("v_sub_u32 v6, v3, v6")
    k("v_add_u32 v6, 1, v6")
    k("v_lshl_add_u32 v5, v6, 4, v5")
    k("v_add_u32 v5, s79, v5")
    k(f"v_mul_u32_u24 v6, {UP}, v2")
    k("v_lshl_add_u32 v6, v3, 4, v6")
    k(f"v_add_u32 v6, {UB}, v6")
    k("v_add_u32 v6, s79, v6")
    k("v_lshrrev_b32 v7, 3, v0")
    k(f"v_mul_u32_u24 v7, {UP}, v7")
    k("v_and_b32 v21, 7, v0")
    k("v_lshl_add_u32 v7, v21, 4, v7")
    k("v_add_u32 v7, s79, v7")
    k("s_waitcnt vmcnt(3)")
    k.lines.append("    ;@ST")
    E, O, O2 = 44, 52, 60
    k("ds_write_b128 v22, v[8:11]")
    k(f"ds_write_b128 v22, v[10:13] offset:{4*CP}")
    for j in range(6): k(f"v_mov_b32 v{E+j}, v{9+j}")
    k(f"ds_write_b128 v22, v[{E}:{E+3}] offset:{2*CP}")
    k(f"ds_write_b128 v22, v[{E+2}:{E+5}] offset:{6*CP}")
    for j in range(6): k(f"v_alignbit_b32 v{O+j}, v{9+j}, v{8+j}, 16")
    k(f"ds_write_b128 v22, v[{O}:{O+3}] offset:{1*CP}")
    k(f"ds_write_b128 v22, v[{O+2}:{O+5}] offset:{5*CP}")
    for j in range(6): k(f"v_alignbit_b32 v{O2+j}, v{10+j}, v{9+j}, 16")
    k(f"ds_write_b128 v22, v[{O2}:{O2+3}] offset:{3*CP}")
    k(f"ds_write_b128 v22, v[{O2+2}:{O2+5}] offset:{7*CP}")
    k("s_waitcnt vmcnt(2)")
    k(f"ds_write_b128 v7, v[24:27] offset:{UB + 16*UP}")
    XF, UF, SK = 96, 68, 104
    k("s_waitcnt vmcnt(0)")
    if CONVWW:
        k.srd(48, 6, F*D*2, WS_WINT)
        k("s_lshr_b32 s10, s2, 3")
        if TRI:
            k("s_mul_i32 s10, s10, 3")
            k("s_add_u32 s10, s10, s78")
        if WSPLIT:
            k(f"s_mul_i32 s10, s10, {72*128}")
            k(f"s_add_u32 s10, s10, {FH*D*2}")
        else:
            k("s_cmp_ge_u32 s10, 36")
            k(f"s_cselect_b32 s11, {FH*D*2 - 36*144*128}, 0")
            k(f"s_mul_i32 s10, s10, {144*128}")
            k("s_add_u32 s10, s10, s11")
        k("s_and_b32 s11, s2, 3")
        k(f"s_mul_i32 s11, s11, {576*D*2}")
        k("s_add_u32 s10, s10, s11")
        k("v_lshlrev_b32 v109, 7, v0")
        if not WWLATE:
            k("s_cmp_lt_u32 s2, 576")
            k(f"s_cselect_b32 s11, {72 if WSPLIT else 144}, 0")
            k("v_cmp_gt_u32 vcc, s11, v0")
            k("s_and_saveexec_b64 s[12:13], vcc")
            lnw = k.label('nw')
            k(f"s_cbranch_execz {lnw}")
            k("buffer_load_dword v110, v109, s[48:51], s10 offen")
            k(f"{lnw}:")
            k("s_mov_b64 exec, s[12:13]")
    if CONVPF:
        lnp = k.label('np')
        k("s_cmp_lt_u32 s15, 2")
        k(f"s_cbranch_scc1 {lnp}")
        k("s_cmp_ge_u32 s2, 512")
        k(f"s_cbranch_scc1 {lnp}")
        k.srd(52, 56, L*L*2)
        k("s_lshl_b32 s10, s2, 14")
        k("v_subrev_u32 v21, 128, v0")
        k("v_lshlrev_b32 v21, 7, v21")
        k("buffer_load_dword v111, v21, s[52:55], s10 offen")
        k(f"{lnp}:")
    k("v_lshlrev_b32 v36, 16, v36")
    for j in range(4):
        k(f"v_lshlrev_b32 v{UF+2*j}, 16, v{24+j}")
        k(f"v_and_b32 v{UF+2*j+1}, 0xffff0000, v{24+j}")
    for e in range(8): k(f"v_mul_f32 v{UF+e}, v{UF+e}, v36")
    for j in range(4): k(f"v_cvt_pk_bf16_f32 v{SK+j}, v{UF+2*j}, v{UF+2*j+1}")
    for j in range(4):
        k(f"v_lshlrev_b32 v{XF+2*j}, 16, v{16+j}")
        k(f"v_and_b32 v{XF+2*j+1}, 0xffff0000, v{16+j}")
    k("s_waitcnt lgkmcnt(0)")
    k.lines.append("    ;@ST")
    k("s_barrier")
    k.lines.append("    ;@ST")
    if CPRIO: k("s_setprio 0")
    ACC, AF, BF = 8, 40, 72
    ranges = [(0, 12), (12, 24), (24, 40), (40, 64)]
    labs = [k.label('cw') for _ in range(4)]
    ljoin = k.label('cj')
    qlabs = [k.label('cq') for _ in range(4)]
    if QSPLIT:
        lq = k.label('qd')
        k("s_cmp_lt_u32 s16, 4")
        k(f"s_cbranch_scc1 {lq}")
    for w in range(1, 4):
        k(f"s_cmp_eq_u32 s15, {w}")
        k(f"s_cbranch_scc1 {labs[w]}")
    def ra(phi):
        r = AF + 4*(phi % 8)
        return f"ds_read_b128 v[{r}:{r+3}], v5 offset:{32*(127-phi)}"
    def rb(kap, nt):
        r = BF + 8*(kap % 3) + 4*nt
        off = (16*nt + 16 - (kap >> 1))*UP + (64 if kap % 2 == 0 else 0)
        return f"ds_read_b128 v[{r}:{r+3}], v6 offset:{off}"
    for w in range(4):
        k(f"{labs[w]}:")
        k0, k1_ = ranges[w]
        nts = lambda kap: [0, 1] if kap < 32 else [1]
        def loads(kap):
            if kap >= k1_: return []
            out = [rb(kap, nt) for nt in nts(kap)]
            for mt in (range(4) if kap == k0 else (2, 3)):
                p = 2*kap - 2 + mt
                if p >= 0: out.append(ra(p))
            return out
        inited = set()
        for ins in loads(k0) + loads(k0+1): k(ins)
        for kap in range(k0, k1_):
            if CONVWW and WWLATE and kap == k0 + WWLATE and w < 3:
                if w == 2: k("s_mov_b64 exec, 0xffff")
                k("buffer_load_dword v110, v109, s[48:51], s10 offen")
                if w == 2: k("s_mov_b64 exec, -1")
            k(f"s_waitcnt lgkmcnt({len(loads(kap+1))})")
            nxt = loads(kap+2)
            ms = []
            for mt in range(4):
                phi = 2*kap - 2 + mt
                if phi < 0: continue
                for nt in nts(kap):
                    a = ACC + (mt*2+nt)*4
                    ar = AF + 4*(phi % 8); br = BF + 8*(kap % 3) + 4*nt
                    c = f"v[{a}:{a+3}]" if (mt, nt) in inited else "0"
                    inited.add((mt, nt))
                    ms.append(f"v_mfma_f32_16x16x32_bf16 v[{a}:{a+3}], v[{ar}:{ar+3}], v[{br}:{br+3}], {c}")
            for i_, m in enumerate(ms):
                k(m)
                if i_ < len(nxt): k(nxt[i_])
            for ins in nxt[len(ms):]: k(ins)
        if CPRIO: k("s_setprio 3")
        k(f"v_mul_u32_u24 v7, {YP}, v2")
        k("v_lshl_add_u32 v7, v3, 4, v7")
        k("v_add_u32 v7, s79, v7")
        k("s_barrier")
        k.nop(8)
        for mt in range(4):
            for nt in range(2):
                if (mt, nt) not in inited: continue
                a = ACC + (mt*2+nt)*4
                off = w*32*YP + 16*nt*YP + 64*mt - (16*YP if w == 3 else 0)
                k(f"ds_write_b128 v7, v[{a}:{a+3}] offset:{off}")
        if w < 3 or QSPLIT: k(f"s_branch {ljoin}")
    if QSPLIT:
        k(f"{lq}:")
        k("s_lshl_b32 s3, s16, 5")
        k("v_subrev_u32 v5, s3, v5")
        k("v_add_u32 v5, 96, v5")
        for w in range(1, 4):
            k(f"s_cmp_eq_u32 s15, {w}")
            k(f"s_cbranch_scc1 {qlabs[w]}")
        for w in range(4):
            k(f"{qlabs[w]}:")
            k0, k1_ = ranges[w]
            nts = lambda kap: [0, 1] if kap < 32 else [1]
            def qa(kap):
                r = AF + 4*(kap % 4)
                return f"ds_read_b128 v[{r}:{r+3}], v5 offset:{32*(127-(2*kap-2)) - 96}"
            def qb(kap, nt):
                r = AF + 16 + 8*(kap % 4) + 4*nt
                off = (16*nt + 16 - (kap >> 1))*UP + (64 if kap % 2 == 0 else 0)
                return f"ds_read_b128 v[{r}:{r+3}], v6 offset:{off}"
            def ql(kap): return [] if kap >= k1_ else [qa(kap)] + [qb(kap, nt) for nt in nts(kap)]
            for r in range(8): k(f"v_mov_b32 v{ACC+r}, 0")
            for ins in ql(k0) + ql(k0+1) + ql(k0+2): k(ins)
            for kap in range(k0, k1_):
                k(f"s_waitcnt lgkmcnt({len(ql(kap+1)) + len(ql(kap+2))})")
                sk0 = None
                if kap == 0:
                    sk0 = k.label('q0')
                    k("s_cmp_lt_u32 s16, 2")
                    k(f"s_cbranch_scc1 {sk0}")
                for nt in nts(kap):
                    a = ACC + 4*nt; ar = AF + 4*(kap % 4); br = AF + 16 + 8*(kap % 4) + 4*nt
                    k(f"v_mfma_f32_16x16x32_bf16 v[{a}:{a+3}], v[{ar}:{ar+3}], v[{br}:{br+3}], v[{a}:{a+3}]")
                if sk0: k(f"{sk0}:")
                for ins in ql(kap+3): k(ins)
            k(f"v_mul_u32_u24 v7, {YP}, v2")
            k("v_lshl_add_u32 v7, v3, 4, v7")
            k("s_lshl_b32 s3, s16, 6")
            k("v_add_u32 v7, s3, v7")
            k("s_barrier")
            k.nop(8)
            for nt in ([0, 1] if w < 3 else [1]):
                off = w*32*YP + 16*nt*YP - (16*YP if w == 3 else 0)
                k(f"ds_write_b128 v7, v[{ACC+4*nt}:{ACC+4*nt+3}] offset:{off}")
            if w < 3: k(f"s_branch {ljoin}")
    k(f"{ljoin}:")
    k.lines.append("    ;@ST")
    k("v_lshrrev_b32 v5, 3, v0")
    k(f"v_mul_u32_u24 v5, {YP}, v5")
    k("v_and_b32 v6, 7, v0")
    k("v_lshl_add_u32 v5, v6, 5, v5")
    k("v_add_u32 v5, s79, v5")
    k("s_lshl_b32 s3, s14, 12")
    k("s_waitcnt lgkmcnt(0)")
    k("s_barrier")
    k.lines.append("    ;@ST")
    for w in range(3):
        k(f"ds_read_b128 v[{8+8*w}:{11+8*w}], v5 offset:{w*32*YP}")
        k(f"ds_read_b128 v[{12+8*w}:{15+8*w}], v5 offset:{w*32*YP+16}")
    for r in range(32, 40): k(f"v_mov_b32 v{r}, 0")
    sk = k.label('sk')
    k("s_cmp_lt_u32 s15, 2")
    k(f"s_cbranch_scc1 {sk}")
    k(f"ds_read_b128 v[32:35], v5 offset:{3*32*YP - 16*YP}")
    k(f"ds_read_b128 v[36:39], v5 offset:{3*32*YP - 16*YP + 16}")
    k(f"{sk}:")
    for j in range(4):
        k(f"v_lshlrev_b32 v{40+2*j}, 16, v{SK+j}")
        k(f"v_and_b32 v{41+2*j}, 0xffff0000, v{SK+j}")
    k("s_waitcnt lgkmcnt(0)")
    for e in range(8):
        k(f"v_add_f32 v{8+e}, v{8+e}, v{16+e}")
        k(f"v_add_f32 v{24+e}, v{24+e}, v{32+e}")
    for e in range(8): k(f"v_add_f32 v{8+e}, v{8+e}, v{24+e}")
    for j in range(4): k(f"v_cvt_pk_bf16_f32 v{16+j}, v{8+2*j}, v{9+2*j}")
    for j in range(4):
        k(f"v_lshlrev_b32 v{8+2*j}, 16, v{16+j}")
        k(f"v_and_b32 v{9+2*j}, 0xffff0000, v{16+j}")
    for e in range(8): k(f"v_add_f32 v{8+e}, v{8+e}, v{40+e}")
    for j in range(4): k(f"v_cvt_pk_bf16_f32 v{16+j}, v{8+2*j}, v{9+2*j}")
    for j in range(4):
        k(f"v_lshlrev_b32 v{8+2*j}, 16, v{16+j}")
        k(f"v_and_b32 v{9+2*j}, 0xffff0000, v{16+j}")
    for e in range(8): k(f"v_add_f32 v{8+e}, v{8+e}, v{XF+e}")
    for j in range(4): k(f"v_cvt_pk_bf16_f32 v{16+j}, v{8+2*j}, v{9+2*j}")
    if QSPLIT:
        k("v_bfe_u32 v5, v0, 1, 2")
        k("v_cmp_eq_u32 vcc, s16, v5")
        k("s_cmp_eq_u32 s16, 4")
        k("s_cselect_b64 vcc, -1, vcc")
        k("s_and_b64 exec, exec, vcc")
    k(f"buffer_store_dwordx4 v[16:19], v1, s[44:47], s3 offen {WTH}")
    k("s_endpgm")
    k.lines.append("    ;@ST0")

def emit_cw(k, done, idreg, cw_off):
    k("v_lshrrev_b32 v1, 3, v0")
    k("v_and_b32 v2, 7, v0")
    k(f"v_mul_u32_u24 v3, {F*2}, v1")
    k("v_lshl_add_u32 v3, v2, 4, v3")
    k(f"s_lshl_b32 s8, s{idreg}, 7")
    k("s_waitcnt lgkmcnt(0)")
    k.srd(16, 64, D*F*2)
    k.srd(20, 6, F*4, cw_off)
    for q in range(18):
        k(f"buffer_load_dwordx4 v[{24+4*q}:{27+4*q}], v3, s[16:19], s8 offen")
        k(f"s_add_u32 s8, s8, {32*F*2}")
    for e in range(8): k(f"v_mov_b32 v{8+e}, 0")
    for q in range(18):
        k(f"s_waitcnt vmcnt({17-q})")
        for j in range(4):
            k(f"v_lshlrev_b32 v4, 16, v{24+4*q+j}")
            k(f"v_and_b32 v5, 0xffff0000, v{24+4*q+j}")
            k(f"v_add_f32 v{8+2*j}, v{8+2*j}, v4")
            k(f"v_add_f32 v{9+2*j}, v{9+2*j}, v5")
    k("v_lshlrev_b32 v4, 5, v0")
    k("ds_write_b128 v4, v[8:11]")
    k("ds_write_b128 v4, v[12:15] offset:16")
    k("s_waitcnt lgkmcnt(0)")
    k("s_barrier")
    k("v_cmp_gt_u32 vcc, 64, v0")
    k("s_and_saveexec_b64 s[10:11], vcc")
    k(f"s_cbranch_execz {done}")
    k("v_lshlrev_b32 v4, 2, v0")
    for g in range(32): k(f"ds_read_b32 v{24+g}, v4 offset:{256*g}")
    k("s_waitcnt lgkmcnt(0)")
    for g in range(1, 32): k(f"v_add_f32 v24, v24, v{24+g}")
    k("v_cvt_pk_bf16_f32 v5, v24, v24")
    k("v_lshlrev_b32 v5, 16, v5")
    k("v_sub_f32 v6, v24, v5")
    k("v_cvt_pk_bf16_f32 v5, v24, v6")
    k(f"s_lshl_b32 s8, s{idreg}, 8")
    k("buffer_store_dword v5, v4, s[20:23], s8 offen")
    k("s_endpgm")

def emit_pf(k, idreg):
    k(f"s_lshl_b32 s3, s{idreg}, 16")
    k("v_lshlrev_b32 v1, 4, v0")
    k("s_waitcnt lgkmcnt(0)")
    k.srd(8, 66, L*L*2)
    for j in range(16):
        k(f"buffer_load_dwordx4 v[{8+4*j}:{11+4*j}], v1, s[8:11], s3 offen")
        k("s_add_u32 s3, s3, 4096")
    k("s_waitcnt vmcnt(0)")
    k("s_endpgm")

def k2_kernel(name='k2_kernel', clear=None, cw_off=None, ht_off=WS_HT2, order=('cw', 'w1', 'w2', 'pf')):
    k = Kernel(name, vgpr=112, sgpr=80)
    cnt = dict(cw=72, w1=216, w2=108, pf=128, ww=128, w1b=108)
    done = k.label('done'); lS = k.label('side')
    NCV = 768 if QSPLIT else D
    bounds = [NCV]
    for o in order: bounds.append(bounds[-1] + cnt[o])
    k(f"s_cmp_ge_u32 s2, {bounds[-1]}")
    k(f"s_cbranch_scc1 {done}")
    k(f"s_load_dwordx2 s[6:7], s[0:1], {KA['ws']}")
    if REORD:
        k("s_cmp_ge_u32 s2, 512")
        k("s_cselect_b32 s3, 64, 0")
        k("s_cmp_ge_u32 s2, 704")
        k("s_cselect_b32 s3, -192, s3")
        k("s_cmp_ge_u32 s2, 768")
        k("s_cselect_b32 s3, 0, s3")
        k("s_add_u32 s2, s2, s3")
    k(f"s_cmp_ge_u32 s2, {NCV}")
    k(f"s_cbranch_scc1 {lS}")
    k(f"s_load_dwordx2 s[8:9], s[0:1], {KA['Dskip']}")
    k(f"s_load_dwordx2 s[56:57], s[0:1], {KA['wsp']}")
    emit_conv(k, ht_off)
    k(f"{lS}:")
    if not order: k("s_endpgm")
    k("s_load_dwordx8 s[64:71], s[0:1], 80")
    labs = {o: k.label(o) for o in order}
    for i in range(len(order)-1, 0, -1):
        k(f"s_cmp_ge_u32 s2, {bounds[i]}")
        k(f"s_cbranch_scc1 {labs[order[i]]}")
    roles = [["conv", 0, NCV]]
    for i, o in enumerate(order):
        k(f"{labs[o]}:")
        k(f"s_sub_u32 s3, s2, {bounds[i]}")
        roles.append([o, bounds[i], bounds[i+1]])
        if o == 'w1':
            emit_w1(k, clear, cw_off)
        elif o == 'w1b':
            emit_w1(k, None, cw_off, half=0)
        elif o == 'w2':
            k("s_waitcnt lgkmcnt(0)")
            strip_transpose(k, 70, FH, D, WS_WOUTT, 3, kperm=KPERM)
        elif o == 'cw':
            emit_cw(k, done, 3, cw_off)
        elif o == 'pf':
            emit_pf(k, 3)
        elif o == 'ww':
            k("s_and_b32 s8, s2, 3")
            k(f"s_mul_i32 s8, s8, {576*D*2}")
            k("s_lshr_b32 s9, s3, 3")
            k("s_lshr_b32 s10, s9, 3")
            k(f"s_mul_i32 s10, s10, {FH*D*2}")
            k("s_add_u32 s8, s8, s10")
            k("s_and_b32 s9, s9, 7")
            k("s_mul_i32 s9, s9, 82944")
            k("s_add_u32 s8, s8, s9")
            k("v_lshlrev_b32 v1, 4, v0")
            k("s_waitcnt lgkmcnt(0)")
            k.srd(12, 6, F*D*2, WS_WINT)
            for j in range(21):
                k(f"buffer_load_dwordx4 v[{8+4*j}:{11+4*j}], v1, s[12:15], s8 offen")
                k("s_add_u32 s8, s8, 4096")
            k("s_waitcnt vmcnt(0)")
            k("s_endpgm")
    k(f"{done}:")
    k("s_endpgm")
    return k, bounds[-1], 40960, roles

def k2_tri(name='k2_kernel', cw_off=None, ht_off=WS_HT2):
    k = Kernel(name, vgpr=112, sgpr=80)
    done = k.label('done'); lS = k.label('side'); lW2 = k.label('w2')
    k("s_cmp_ge_u32 s2, 256")
    k(f"s_cbranch_scc1 {done}")
    k(f"s_load_dwordx2 s[6:7], s[0:1], {KA['ws']}")
    k("v_lshrrev_b32 v1, 8, v0")
    k("v_and_b32 v0, 255, v0")
    k("v_readfirstlane_b32 s78, v1")
    k("s_nop 0")
    k("s_mul_i32 s79, s78, 40960")
    k("s_cmp_ge_u32 s2, 192")
    k(f"s_cbranch_scc1 {lS}")
    k(f"s_load_dwordx2 s[8:9], s[0:1], {KA['Dskip']}")
    emit_conv(k, ht_off)
    k(f"{lS}:")
    k("s_load_dwordx8 s[64:71], s[0:1], 80")
    k("s_sub_u32 s3, s2, 192")
    k("s_mul_i32 s3, s3, 3")
    k("s_add_u32 s3, s3, s78")
    k("s_cmp_ge_u32 s3, 84")
    k(f"s_cbranch_scc1 {lW2}")
    k("s_add_u32 s3, s3, 132")
    emit_w1(k, None, cw_off, half='idx', lb=79)
    k(f"{lW2}:")
    k("s_sub_u32 s3, s3, 84")
    k("s_waitcnt lgkmcnt(0)")
    strip_transpose(k, 70, FH, D, WS_WOUTT, 3, kperm=KPERM, lb=79)
    k(f"{done}:")
    k("s_endpgm")
    return k, 256, 122880, [["conv", 0, 192], ["side", 192, 256]]
```

```python
import sys, json
sys.path.insert(0, 'work')
from gcore import *
import gen_p as gp, gen_m5 as gm, tl
gp.KPERM = True
def main(out, CPF=3, WT='', WTH='', CONVWW=False, CONVPF=False, W2K1=False, CPRIO=False, WWLATE=0, QSPLIT=False, MORDER=0, WSPLIT=False, TRI=False, REORD=False, WT1='', timeline=False, pstamp=False, report=None, order=('w2',), **kw):
    gm.WS_HT = gp.WS_HT2
    gp.CPF = CPF; gp.WT = WT; gp.CPRIO = CPRIO; gp.WWLATE = WWLATE; gp.QSPLIT = QSPLIT; gp.WSPLIT = WSPLIT; gp.TRI = TRI; gp.REORD = REORD; import gcore; gcore.MORDER = MORDER; gp.WT1 = WT1; gp.WTH = WTH; gp.CONVWW = CONVWW; gp.CONVPF = CONVPF
    k1, n1, l1, r1 = gp.k1_kernel(clear=(gm.HO_BASE, gm.HO_BYTES), cw_off=gm.WS_CWP, w2=W2K1)
    k2, n2, l2, r2 = gp.k2_kernel(clear=(gm.HO_BASE, gm.HO_BYTES), cw_off=gm.WS_CWP, order=order)
    if TRI: k2, n2, l2, r2 = gp.k2_tri(cw_off=gm.WS_CWP)
    km, lm = gm.mega_kernel(**kw)
    km.tail = ['all_code_end:']
    ks = [k1, k2, km]
    launches = [('k1_kernel', n1, 256, l1), ('k2_kernel', n2, 768 if TRI else 256, l2), ('mega_kernel', 256, 704, lm)]
    if report is not None:
        for i, kk in enumerate(ks): tl.instrument(kk, i)
        ks.append(tl.report_kernel(len(launches), report))
        launches = launches + [('report_kernel', 1, 64, 0)]
    if pstamp:
        import stamp_tool
        stamp_tool.apply(k1, 120 << 20); stamp_tool.apply(k2, 121 << 20)
    if timeline or pstamp or kw.get('stamps'):
        if timeline:
            for i, kk in enumerate(ks): tl.instrument(kk, i)
        ks.append(tl.blocker_kernel()); ks.append(tl.scrub_kernel())
        launches = [('blocker_kernel', 1, 64, 0)] + launches + [('scrub_kernel', 1024, 64, 0)]
    open(out, 'w').write(build_file(ks, launches))
    open('roles.json', 'w').write(json.dumps({'k1_kernel': r1, 'k2_kernel': r2}))
BEST = dict(WARMP=False, ROT3=False, MAP3=False, CONVWW=True, WTH='sc1', GINT=True, WARM3=0, EARLYP=True, GF=15, NA=5, order=('w1b', 'w2'), WT1='sc1',
            QSPLIT=False, CPR=1, WSPLIT=True)
def var(tag, **kw):
    d = dict(BEST); d.update(kw)
    main(f'ab_{tag}.s', timeline=True, **d)
if __name__ == '__main__':
    main('v8.s', **BEST)
    main('v8s.s', stamps=True, **BEST)
    var('base')
    import ast
    for a in sys.argv[1:]:
        tag, kw = a.split(':', 1)
        var(tag, **eval('dict(' + kw + ')'))
```

```python
import re
from asmlib import *
TL_OFF = 120 << 20
def instrument(k, kidx):
    V = (k.vgpr + 1)//2*2
    k.vgpr = V + 4
    k.sgpr = 102
    new = ["    s_memrealtime s[96:97]", f"    s_load_dwordx2 s[98:99], s[0:1], {KA['ws']}", f"    v_lshrrev_b32 v{V+3}, 6, v0",
           "    s_mov_b32 s95, s2"]
    body = k.lines
    out = list(new)
    n = len(body)
    for i, l in enumerate(body):
        if l.strip() == 's_endpgm' and i != n-1:
            out += ["    s_mov_b64 exec, -1",
                    "    s_waitcnt vmcnt(0) lgkmcnt(0)",
                    "    s_memrealtime s[100:101]",
                    f"    s_add_u32 s88, s98, 0x{TL_OFF + kidx*(1<<20):x}",
                    "    s_addc_u32 s89, s99, 0",
                    "    s_mov_b32 s90, 0x100000",
                    "    s_mov_b32 s91, 0x00020000",
                    "    s_waitcnt lgkmcnt(0)",
                    f"    v_mov_b32 v{V}, s96",
                    f"    v_mov_b32 v{V+1}, s100",
                    "    s_lshl_b32 s95, s95, 4",
                    f"    v_add_u32 v{V+2}, s95, v{V+3}",
                    f"    v_lshlrev_b32 v{V+2}, 3, v{V+2}",
                    f"    buffer_store_dwordx2 v[{V}:{V+1}], v{V+2}, s[88:91], 0 offen"]
        out.append(l)
    k.lines = out

def blocker_kernel(us=300):
    k = Kernel('blocker_kernel', vgpr=8, sgpr=16)
    k("s_memrealtime s[4:5]")
    k("s_waitcnt lgkmcnt(0)")
    lp = k.label('lp')
    k(f"{lp}:")
    k("s_sleep 10")
    k("s_memrealtime s[6:7]")
    k("s_waitcnt lgkmcnt(0)")
    k("s_sub_u32 s8, s6, s4")
    k(f"s_cmp_lt_u32 s8, {us*100}")
    k(f"s_cbranch_scc1 {lp}")
    k("s_endpgm")
    return k

def scrub_kernel(n=20000):
    k = Kernel('scrub_kernel', vgpr=8, sgpr=16)
    for i in range(n):
        k.lines.append("    v_add_f32 v1, v1, v2")
    k("s_endpgm")
    return k

def report_kernel(nk, back=0):
    k = Kernel('report_kernel', vgpr=16, sgpr=32)
    done = k.label('done')
    k("s_cmp_ge_u32 s2, 1")
    k(f"s_cbranch_scc1 {done}")
    k("s_memrealtime s[20:21]")
    k(f"s_load_dwordx2 s[6:7], s[0:1], {KA['ws']}")
    k(f"s_load_dwordx2 s[4:5], s[0:1], {KA['dbg']}")
    k("s_waitcnt lgkmcnt(0)")
    k.srd(8, 6, 16 << 20, TL_OFF)
    k(f"s_sub_u32 s12, s4, {back}")
    k("s_subb_u32 s13, s5, 0")
    k("s_mov_b32 s14, 256")
    k("s_mov_b32 s15, 0x00020000")
    k("v_lshrrev_b32 v1, 1, v0")
    k("v_lshlrev_b32 v1, 20, v1")
    k("v_and_b32 v2, 1, v0")
    k("v_lshl_add_u32 v1, v2, 2, v1")
    k("buffer_load_dword v3, v1, s[8:11], 0 offen")
    k("v_mov_b32 v4, s20")
    k(f"v_cmp_eq_u32 vcc, {2*nk}, v0")
    k("s_waitcnt vmcnt(0)")
    k("v_cndmask_b32 v3, v3, v4, vcc")
    k("v_lshlrev_b32 v2, 2, v0")
    k(f"v_cmp_ge_u32 vcc, {2*nk}, v0")
    k("s_and_saveexec_b64 s[16:17], vcc")
    k("buffer_store_dword v3, v2, s[12:15], 0 offen")
    k(f"{done}:")
    k("s_endpgm")
    return k

def delay_kernel(sel, mult=4):
    k = Kernel('delay_kernel', vgpr=16, sgpr=32)
    done = k.label('done')
    k("s_cmp_ge_u32 s2, 1")
    k(f"s_cbranch_scc1 {done}")
    k("s_memrealtime s[20:21]")
    k(f"s_load_dwordx2 s[6:7], s[0:1], {KA['ws']}")
    k("s_waitcnt lgkmcnt(0)")
    if sel is not None:
        i, j = sel
        k.srd(8, 6, 16 << 20, TL_OFF)
        k(f"v_mov_b32 v1, {i << 20}")
        k(f"v_mov_b32 v2, {min(j,2) << 20}")
        k("buffer_load_dword v3, v1, s[8:11], 0 offen")
        k("buffer_load_dword v4, v2, s[8:11], 0 offen")
        k("s_waitcnt vmcnt(0)")
        k("v_readfirstlane_b32 s12, v3")
        k("v_readfirstlane_b32 s13, v4")
        k("s_nop 4")
        if j == 3: k("s_mov_b32 s13, s20")
        k("s_sub_u32 s12, s13, s12")
        k("s_min_u32 s12, s12, 20000")
        k(f"s_mul_i32 s12, s12, {mult}")
        lp = k.label('lp'); k(f"{lp}:")
        k("s_memrealtime s[14:15]")
        k("s_waitcnt lgkmcnt(0)")
        k("s_sub_u32 s16, s14, s20")
        k("s_cmp_lt_u32 s16, s12")
        k(f"s_cbranch_scc1 {lp}")
    k(f"{done}:")
    k("s_endpgm")
    return k
```

```python
import sys, json
sys.path.insert(0, 'work')
from gcore import *
import gen_p as gp, gen_m5 as gm, tl
gp.KPERM = True
def main(out, CPF=3, WT='', WTH='', CONVWW=False, CONVPF=False, W2K1=False, CPRIO=False, WWLATE=0, QSPLIT=False, MORDER=0, WSPLIT=False, TRI=False, REORD=False, WT1='', timeline=False, pstamp=False, report=None, delay='no', order=('w2',), **kw):
    gm.WS_HT = gp.WS_HT2
    gp.CPF = CPF; gp.WT = WT; gp.CPRIO = CPRIO; gp.WWLATE = WWLATE; gp.QSPLIT = QSPLIT; gp.WSPLIT = WSPLIT; gp.TRI = TRI; gp.REORD = REORD; import gcore; gcore.MORDER = MORDER; gp.WT1 = WT1; gp.WTH = WTH; gp.CONVWW = CONVWW; gp.CONVPF = CONVPF
    k1, n1, l1, r1 = gp.k1_kernel(clear=(gm.HO_BASE, gm.HO_BYTES), cw_off=gm.WS_CWP, w2=W2K1)
    k2, n2, l2, r2 = gp.k2_kernel(clear=(gm.HO_BASE, gm.HO_BYTES), cw_off=gm.WS_CWP, order=order)
    if TRI: k2, n2, l2, r2 = gp.k2_tri(cw_off=gm.WS_CWP)
    km, lm = gm.mega_kernel(**kw)
    km.tail = ['all_code_end:']
    ks = [k1, k2, km]
    launches = [('k1_kernel', n1, 256, l1), ('k2_kernel', n2, 768 if TRI else 256, l2), ('mega_kernel', 256, 704, lm)]
    if report is not None:
        for i, kk in enumerate(ks): tl.instrument(kk, i)
        ks.append(tl.report_kernel(len(launches), report))
        launches = launches + [('report_kernel', 1, 64, 0)]
    if delay != 'no':
        for i, kk in enumerate(ks): tl.instrument(kk, i)
        ks.append(tl.delay_kernel(delay))
        launches = launches + [('delay_kernel', 1, 64, 0)]
    if pstamp:
        import stamp_tool
        stamp_tool.apply(k1, 120 << 20); stamp_tool.apply(k2, 121 << 20)
    if timeline or pstamp or kw.get('stamps'):
        if timeline:
            for i, kk in enumerate(ks): tl.instrument(kk, i)
        ks.append(tl.blocker_kernel()); ks.append(tl.scrub_kernel())
        launches = [('blocker_kernel', 1, 64, 0)] + launches + [('scrub_kernel', 1024, 64, 0)]
    open(out, 'w').write(build_file(ks, launches))
    open('roles.json', 'w').write(json.dumps({'k1_kernel': r1, 'k2_kernel': r2}))
BEST = dict(WARMP=False, ROT3=False, MAP3=False, CONVWW=True, WTH='sc1', GINT=True, WARM3=0, EARLYP=True, GF=15, NA=5, order=('w1b', 'w2'), WT1='sc1',
            QSPLIT=False, CPR=1, WSPLIT=True)
def var(tag, **kw):
    d = dict(BEST); d.update(kw)
    main(f'ab_{tag}.s', timeline=True, **d)
if __name__ == '__main__':
    main('v8.s', **BEST)
    main('v8s.s', stamps=True, **BEST)
    var('base')
    import ast
    for a in sys.argv[1:]:
        tag, kw = a.split(':', 1)
        var(tag, **eval('dict(' + kw + ')'))
    def hv(tag, **kw):
        d = dict(BEST); d.update(kw)
        main(f'h_{tag}.s', **d)
    hv('nopf', PF=False)
    hv('nocpf', CPF=0)
    hv('noww', CONVWW=False)
    hv('nows', WSPLIT=False, order=('w2',))
```

```python
import sys, math
sys.path.insert(0, 'work')
from gcore import *
import gen_v0 as v0
from gen1 import PAIR9, PLAIN, PAIR5, groups_of, decode_16x16
rbf = v0.rbf

HO_BASE = WS_STAT
HO_ST3 = 0
HO_LN2 = 256*1024
HO_Z2F = HO_LN2 + 9*16*1024
HO_ZGF = HO_Z2F + 256*128
HO_BYTES = HO_ZGF + 256*128
WS_CWP = 32*MB
WS_HTM = 72*MB
SC = "sc1"
SPIN = 0x100000

class Role:
    def __init__(self, k, name):
        self.k, self.name, self.nb = k, name, 0
    def bar(self, n=1):
        for _ in range(n):
            self.k("s_barrier"); self.nb += 1

def pk(op, d, a, b, c=None, mods=''):
    def r(x): return x if isinstance(x, str) else f"v[{x}:{x+1}]"
    s = f"v_pk_{op}_f32 {r(d)}, {r(a)}, {r(b)}"
    if c is not None: s += f", {r(c)}"
    return s + (' ' + mods if mods else '')

def mega_kernel(name='mega_kernel', NA=4, stamps=False, PF=True, DET=False, GF=16, RINGS=(10, 8), ROT3=True, WARMP=True, LSC=SC, MAP3=True, WARM2=False, PSPREAD=15, FAKEQ=False, FAKEP=False, ZEXP=0, HWARM=False, P1DET=False, GINT=False, WARM3=0, CPFW=False, HFIRST=True, WFLAG=False, REPL=True, PB=1, CPR=None, PFAT=8, GN=12, PPRE=4, EARLYP=False, SW2=False):
    cA = Cfg([0,1,2,3,4], [5,6,7,8], 2, 144, 4, PAIR9, PLAIN, swap=False)
    P5S, Q5S = 9216, 8192
    P5N, Q5N = RINGS
    Q5B = P5S*P5N
    PSL = [4,5,6,7,0,1,8,2,3,9] if EARLYP else list(range(P5N))
    XB = 4*P5S if EARLYP else 0
    SCR = cA.LDS
    SC_RS2 = SCR
    SC_NM2 = SC_RS2 + 512
    SC_P3 = SC_NM2 + 512
    SC_RS3 = SC_P3 + 2048
    SC_MR3 = SC_RS3 + 512
    SC_CW1 = SC_MR3 + 512
    SC_CW2 = SC_CW1 + 768
    LDS = max(SC_CW2 + 768, Q5B + Q5S*Q5N)
    k = Kernel(name, vgpr=164, sgpr=96)
    done = k.label('done'); lP = k.label('ldP'); lQ = k.label('ldQ'); lX = k.label('aux'); c1 = k.label('c1')
    k("s_cmp_ge_u32 s2, 256")
    k(f"s_cbranch_scc1 {done}")
    k(f"s_load_dwordx2 s[6:7], s[0:1], {KA['ws']}")
    k(f"s_load_dwordx4 s[72:75], s[0:1], {KA['wsp']}")
    k(f"s_load_dwordx2 s[4:5], s[0:1], {KA['out']}")
    if stamps:
        k("s_memrealtime s[48:49]")
        k.sgpr = 102
    k("v_lshrrev_b32 v1, 6, v0")
    k("v_and_b32 v2, 63, v0")
    decode_16x16(k)
    k("v_readfirstlane_b32 s15, v1")
    if MAP3:
        k("s_lshr_b32 s77, s2, 3")
        k("s_and_b32 s76, s77, 7")
        k("s_mul_i32 s76, s76, 72")
        k("s_lshr_b32 s77, s77, 3")
        k("s_and_b32 s14, s2, 7")
        k("s_lshl_b32 s14, s14, 2")
        k("s_add_u32 s77, s77, s14")
        k("s_lshl_b32 s77, s77, 6")
    else:
        k("s_and_b32 s76, s10, 7")
        k("s_mul_i32 s76, s76, 72")
        k("s_lshr_b32 s77, s10, 3")
        k("s_lshl_b32 s77, s77, 6")
        k("s_add_u32 s77, s77, s13")
    if HFIRST:
        k("s_add_u32 s15, s15, 8")
        k("s_cmp_ge_u32 s15, 11")
        k("s_cselect_b32 s14, 11, 0")
        k("s_sub_u32 s15, s15, s14")
    k("s_cmp_eq_u32 s15, 8")
    k(f"s_cbranch_scc1 {lP}")
    k("s_cmp_eq_u32 s15, 9")
    k(f"s_cbranch_scc1 {lQ}")
    k("s_cmp_eq_u32 s15, 10")
    k(f"s_cbranch_scc1 {lX}")
    nbs = {}
    STR = [48+2*i for i in range(8)] + [84+2*i for i in range(8)]
    class Stamper:
        def __init__(self): self.n = 1
        def __call__(self):
            if stamps:
                r = STR[self.n]; self.n += 1
                k(f"s_memrealtime s[{r}:{r+1}]")
        def dump(self):
            if not stamps: return
            k("s_waitcnt vmcnt(0)")
            self()
            k("s_waitcnt lgkmcnt(0)")
            k.srd(24, 6, 1 << 20, WS_STAMP)
            k("s_lshl_b32 s42, s2, 4")
            k("s_add_u32 s42, s42, s15")
            k("s_lshl_b32 s42, s42, 6")
            k("v_mov_b32 v10, 0")
            for i in range(16): k(f"v_mov_b32 v{16+i}, s{STR[i] if i < self.n else STR[0]}")
            for i in range(4): k(f"buffer_store_dwordx4 v[{16+4*i}:{19+4*i}], v10, s[24:27], s42 offen offset:{16*i}")
    masks = {3: 64, 2: 66, 1: 68, 0: 70}
    def make_masks():
        for b, sr in masks.items():
            k(f"v_and_b32 v12, {1 << b}, v3")
            k(f"v_cmp_ne_u32 s[{sr}:{sr+1}], 0, v12")
    def reduce_scatter(V, W):
        cnt = 16
        for b, ctl in [(3, "row_ror:8"), (2, "row_half_mirror"), (1, "quad_perm:[2,3,0,1]"), (0, "quad_perm:[1,0,3,2]")]:
            half = cnt//2; sr = masks[b]
            for j in range(half):
                k(f"v_cndmask_b32 v{W+j}, v{V+j+half}, v{V+j}, s[{sr}:{sr+1}]")
                k(f"v_cndmask_b32 v{V+j}, v{V+j}, v{V+j+half}, s[{sr}:{sr+1}]")
            k.nop(2)
            for j in range(half):
                k(f"v_add_f32_dpp v{V+j}, v{W+j}, v{V+j} {ctl} row_mask:0xf bank_mask:0xf")
            cnt = half

    comp_addrs(k, cA)
    k("v_lshrrev_b32 v12, 2, v3")
    k("v_and_b32 v13, 3, v3")
    k("v_and_b32 v14, 1, v4")
    k("v_lshl_or_b32 v14, v14, 2, v12")
    k("v_lshlrev_b32 v14, 1, v14")
    k("v_lshrrev_b32 v15, 1, v13")
    k("s_lshl_b32 s42, s40, 2")
    k("v_add_u32 v15, s42, v15")
    k("v_xor_b32 v15, v15, v14")
    k("v_lshlrev_b32 v15, 4, v15")
    k("v_and_b32 v13, 1, v13")
    k("v_lshl_add_u32 v15, v13, 3, v15")
    k("v_lshl_add_u32 v12, v4, 3, v12")
    k("v_lshl_add_u32 v10, v12, 8, v15")
    k(f"v_add_u32 v10, {cA.Q_BASE}, v10")
    k("v_xor_b32 v11, 32, v10")
    make_masks()
    k(f"s_mov_b32 s78, {fhex(-GC2 if ZEXP else GC2)}")
    k(f"s_mov_b32 s79, {fhex(-GC1 if ZEXP else GC1)}")
    k("s_waitcnt lgkmcnt(0)")
    k.srd(20, 6, D*L*2, WS_HTM)
    if HWARM:
        k("v_lshrrev_b32 v12, 1, v0")
        k("v_lshlrev_b32 v12, 12, v12")
        k("v_and_b32 v13, 1, v0")
        k("v_lshl_add_u32 v12, v13, 7, v12")
        k("s_and_b32 s42, s10, 3")
        k(f"s_mul_i32 s42, s42, {144*4096}")
        k("s_lshl_b32 s43, s13, 1")
        k("s_add_u32 s42, s42, s43")
        k("v_cmp_gt_u32 vcc, 288, v0")
        k("s_and_saveexec_b64 s[44:45], vcc")
        lnw = k.label('nw')
        k(f"s_cbranch_execz {lnw}")
        k("buffer_load_dword v160, v12, s[20:23], s42 offen")
        k(f"{lnw}:")
        k("s_mov_b64 exec, s[44:45]")
    k.srd(24, 6, FH*L*2, WS_Z2T)
    k.srd(28, 6, L*FH*2, WS_ZG)
    k.srd(32, 74, L*2)
    k.srd(80, 4, L*D*2)
    if CPFW:
        k.srd(36, 72, L*L*2)
        k("v_lshlrev_b32 v15, 7, v2")
        k("s_lshl_b32 s46, s2, 3")
        k("s_add_u32 s46, s46, s15")
        k("s_lshl_b32 s46, s46, 12")
    k("s_cmp_eq_u32 s41, 1")
    k(f"s_cbranch_scc1 {c1}")

    def compute(ci):
        R = Role(k, f'c{ci}')
        ST = Stamper()
        A1 = 16; A2 = 56; S0 = 96; S1 = 124; T = 152
        nm = len(cA.cls[ci])
        class CompM(Comp):
            tr = False
            def reads(self, si, slot, ks):
                if not self.tr: return Comp.reads(self, si, slot, ks)
                c = self.cfg; S = self.S[si]; out = []
                for n in range(2):
                    for x in range(2):
                        out.append(f"ds_read_b64_tr_b16 v[{S+4*n+2*x}:{S+4*n+2*x+1}], v{10+n} offset:{slot*c.Q_SLOT + (32*ks+4*x)*256}")
                for m in range(self.nm):
                    r = S + 8 + 4*m
                    out.append(f"ds_read_b128 v[{r}:{r+3}], v{self.va+ks} offset:{slot*c.P_SLOT + m*2048}")
                return out
            def st(self, slot, ACC, zero=False, last=False, swap=False, pre_bar=None, extra=None, per=(1, 2)):
                self.cfg.swap = swap
                self.interleave(self.mfmas(0, ACC, zero), self.reads(1, slot, 1), extra, per[0])
                k("s_waitcnt lgkmcnt(0)")
                if pre_bar:
                    if DET: ST()
                    k(pre_bar)
                    if DET: ST()
                R.bar()
                self.interleave(self.mfmas(1, ACC), [] if last else self.reads(0, (slot+1) % self.cfg.NS, 0), extra, per[1])
                if not last: k("s_waitcnt lgkmcnt(0)")
                self.cfg.swap = False
        def loop(n, body):
            k(f"s_mov_b32 s43, {n}")
            lp = k.label('lp'); k(f"{lp}:")
            nb0 = R.nb
            body()
            R.nb += (n-1)*(R.nb - nb0)
            k("s_sub_u32 s43, s43, 1")
            k("s_cmp_lg_u32 s43, 0")
            k(f"s_cbranch_scc1 {lp}")
        C = CompM(k, cA, ci, S0, S1)
        C.tr = True
        if CPR is not None and ci == CPR: k("s_setprio 1")
        R.bar()
        ST()
        for r in C.reads(0, 0, 0): k(r)
        k("s_waitcnt lgkmcnt(0)")
        C.st(0, A2, zero=True, swap=True)
        if P1DET:
            for g in range(1, 9):
                ST(); C.st(g % 4, A2, swap=True)
            ST()
            _st = ST
            class _N:
                def __call__(self): pass
                def dump(self): _st.dump()
            ST = _N()
        else:
            def p1body():
                for i in range(4):
                    if CPFW:
                        sk = k.label('pfs')
                        k(f"s_cmp_lg_u32 s40, {i}")
                        k(f"s_cbranch_scc1 {sk}")
                        k("s_mov_b64 exec, 0xffff")
                        k("buffer_load_dword v1, v15, s[36:39], s46 offen")
                        k("s_mov_b64 exec, -1")
                        k("s_add_u32 s46, s46, 2048")
                        k(f"{sk}:")
                    C.st((1+i) % 4, A2, swap=True)
            loop(2, p1body)
            ST()
        def ext_step(ACC, swap):
            QX = S1; PX = S1 + 4
            k("v_lshlrev_b32 v12, 2, v3")
            k("s_lshl_b32 s42, s40, 7")
            k(f"s_add_u32 s42, s42, {SC_NM2}")
            k("v_add_u32 v13, s42, v12")
            k(f"ds_read_b32 v{QX}, v13")
            k(f"ds_read_b32 v{QX+2}, v13 offset:64")
            k(f"v_add_u32 v12, {SC_CW2 if swap else SC_CW1}, v12")
            if not swap:
                k("v_lshrrev_b32 v13, 2, v3")
                k("v_lshlrev_b32 v13, 4, v13")
                k("v_add_u32 v13, v13, v12")
            for m in range(nm):
                if swap:
                    k(f"ds_read_b32 v{PX+2*m}, v12 offset:{cA.cls[ci][m]*64}")
                else:
                    base, e = PAIR9[cA.cls[ci][m]]
                    if e is None: k(f"ds_read_b32 v{PX+2*m}, v12 offset:{base*4}")
                    else:         k(f"ds_read_b32 v{PX+2*m}, v13 offset:{(base+4*e)*4}")
                k(f"v_mov_b32 v{PX+2*m+1}, 0")
            k(f"v_mov_b32 v{QX+1}, 0"); k(f"v_mov_b32 v{QX+3}, 0")
            k("v_cmp_eq_u32 vcc, 0, v4")
            k("s_nop 0")
            k("s_waitcnt lgkmcnt(0)")
            k(f"v_cndmask_b32 v{QX}, 0, v{QX}, vcc")
            k(f"v_cndmask_b32 v{QX+2}, 0, v{QX+2}, vcc")
            k.nop(2)
            for m in range(nm):
                for n in range(2):
                    a = ACC + (m*2+n)*4
                    p = PX + 2*m; q = QX + 2*n
                    x, y = (q, p) if swap else (p, q)
                    k(f"v_mfma_f32_16x16x16_bf16 v[{a}:{a+3}], v[{x}:{x+1}], v[{y}:{y+1}], v[{a}:{a+3}]")
        RS = S1 + 16
        k("v_lshlrev_b32 v14, 4, v4")
        k("s_lshl_b32 s42, s40, 7")
        k("v_add_u32 v14, s42, v14")
        k(f"v_add_u32 v15, {SC_RS2}, v14")
        k(f"ds_read_b128 v[{RS}:{RS+3}], v15")
        k(f"ds_read_b128 v[{RS+4}:{RS+7}], v15 offset:64")
        ext_step(A2, True)
        Vv = S1; Ww = S1 + 16
        k("v_bfe_u32 v12, v3, 2, 1")
        k("v_lshlrev_b32 v12, 4, v12")
        k("v_lshl_add_u32 v12, v4, 2, v12")
        k("v_and_b32 v13, 3, v3")
        k("v_add_u32 v12, v12, v13")
        k("v_lshrrev_b32 v13, 3, v3")
        k("v_lshl_add_u32 v12, v12, 1, v13")
        k("v_lshlrev_b32 v12, 2, v12")
        k("s_lshl_b32 s42, s40, 8")
        k(f"s_add_u32 s42, s42, {SC_P3 + ci*1024}")
        k("v_add_u32 v12, s42, v12")
        for m in range(nm):
            xs = [A2 + m*8 + 2*j for j in range(4)]
            ts = [T + 2*j for j in range(4)]
            for j, x in enumerate(xs): k(pk('mul', x, x, RS + 2*j))
            for x, t in zip(xs, ts): k(pk('mul', t, x, x))
            for x, t in zip(xs, ts): k(pk('fma', t, t, "s[78:79]", "s[78:79]", "op_sel:[0,0,1] op_sel_hi:[1,0,1]"))
            for x, t in zip(xs, ts): k(pk('mul', t, t, x))
            for t in ts: k(f"v_exp_f32 v{t}, v{t}"); k(f"v_exp_f32 v{t+1}, v{t+1}")
            for t in ts: k(pk('add', t, t, "1.0", None, "op_sel_hi:[1,0]"))
            for t in ts: k(f"v_rcp_f32 v{t}, v{t}"); k(f"v_rcp_f32 v{t+1}, v{t+1}")
            for x, t in zip(xs, ts):
                k(pk('fma', x, x, t, x, "neg_lo:[1,0,0] neg_hi:[1,0,0]") if ZEXP else pk('mul', x, x, t))
            for j, x in enumerate(xs):
                if m == 0:
                    k(f"v_pk_mov_b32 v[{Vv+2*j}:{Vv+2*j+1}], v[{x}:{x+1}], v[{x}:{x+1}] op_sel:[0,1]")
                    k(pk('mul', Vv+8+2*j, x, x))
                else:
                    k(pk('add', Vv+2*j, Vv+2*j, x))
                    k(pk('fma', Vv+8+2*j, x, x, Vv+8+2*j))
        reduce_scatter(Vv, Ww)
        k(f"ds_write_b32 v12, v{Vv}")
        k("s_waitcnt lgkmcnt(0)")
        R.bar()
        ST()
        for g in range(9, 9+NA):
            C.st(g % 4, A1, zero=(g == 9))
        ST()
        CR = S1; CM = S1 + 8
        k(f"v_add_u32 v15, {SC_RS3}, v14")
        for n in range(2):
            k(f"ds_read_b128 v[{CR+4*n}:{CR+4*n+3}], v15 offset:{64*n}")
            k(f"ds_read_b128 v[{CM+4*n}:{CM+4*n+3}], v15 offset:{512 + 64*n}")
        k("v_lshlrev_b32 v13, 6, v3")
        k("v_lshl_add_u32 v13, v4, 4, v13")
        k("s_lshl_b32 s42, s10, 6")
        k("s_lshl_b32 s44, s11, 2")
        k("s_add_u32 s42, s42, s44")
        k("s_add_u32 s42, s42, s40")
        k("s_mul_i32 s42, s42, 9216")
        k("v_add_u32 v13, s42, v13")
        k("s_waitcnt lgkmcnt(0)")
        for m in range(nm):
            a = A2 + m*8
            for j in range(4):
                k(pk('mul', a+2*j, a+2*j, CR+2*j) if ZEXP == 2 else pk('fma', a+2*j, a+2*j, CR+2*j, CM+2*j, "neg_lo:[0,0,1] neg_hi:[0,0,1]"))
            for j in range(4):
                k(f"v_cvt_pk_bf16_f32 v{a+j}, v{a+2*j}, v{a+2*j+1}")
            k(f"s_mov_b32 s44, {cA.cls[ci][m]*1024}")
            k("s_nop 0")
            k(f"v_permlane32_swap_b32 v{a}, v{a+2}")
            k(f"v_permlane32_swap_b32 v{a+1}, v{a+3}")
            k("s_nop 0")
            k(f"v_permlane16_swap_b32 v{a}, v{a+2}")
            k(f"v_permlane16_swap_b32 v{a+1}, v{a+3}")
            k(f"buffer_store_dwordx4 v[{a}:{a+3}], v13, s[24:27], s44 offen {SC}")
        ST()
        for g in range(9+NA, 18):
            C.st(g % 4, A1, last=(g == 17), pre_bar="s_waitcnt vmcnt(0)" if g == GF else None)
        ST()
        KC = S1 + 16
        k("v_lshlrev_b32 v12, 2, v3")
        k("s_lshl_b32 s42, s40, 7")
        k(f"s_add_u32 s42, s42, {SC_RS2}")
        k("v_add_u32 v12, s42, v12")
        k(f"ds_read_b32 v{KC+2}, v12")
        k(f"ds_read_b32 v{KC+6}, v12 offset:64")
        k("s_lshl_b32 s42, s40, 5")
        k("s_add_u32 s42, s42, s13")
        k("v_add_u32 v14, s42, v3")
        k("v_lshlrev_b32 v15, 1, v14")
        k(f"buffer_load_ushort v{T+8}, v15, s[32:35], 0 offen")
        k(f"buffer_load_ushort v{T+10}, v15, s[32:35], 0 offen offset:32")
        ext_step(A1, False)
        for n in range(2):
            b = KC + 4*n
            k(f"v_mul_f32 v{b+1}, {fhex(GC1)}, v{b+2}")
            k(f"v_mul_f32 v{b}, v{b+2}, v{b+2}")
            k(f"v_mul_f32 v{b}, v{b}, v{b+2}")
            k(f"v_mul_f32 v{b}, {fhex(GC2)}, v{b}")
            k(f"v_rcp_f32 v{b+2}, v{b+2}")
        k.nop(2)
        if not GINT:
            for m in range(nm):
                xs = [A1 + m*8 + 2*j for j in range(4)]
                ts = [T + 2*j for j in range(4)]
                bs = [KC + 4*(j >> 1) for j in range(4)]
                for x, t in zip(xs, ts): k(pk('mul', t, x, x))
                for t, b in zip(ts, bs): k(pk('fma', t, t, b, b, "op_sel:[0,0,1] op_sel_hi:[1,0,1]"))
                for x, t in zip(xs, ts): k(pk('mul', t, t, x))
                for t in ts: k(f"v_exp_f32 v{t}, v{t}"); k(f"v_exp_f32 v{t+1}, v{t+1}")
                for t, b in zip(ts, bs): k(pk('fma', t, t, b+2, b+2, "op_sel_hi:[1,0,0]"))
                for t in ts: k(f"v_rcp_f32 v{t}, v{t}"); k(f"v_rcp_f32 v{t+1}, v{t+1}")
                for x, t in zip(xs, ts): k(pk('mul', x, x, t))
            ex = []
        else:
            CN = [(T+4, T+5, T+6), (T+7, T+9, T+11)]
            for n in range(2):
                for j in range(3): k(f"v_mov_b32 v{CN[n][j]}, v{KC+4*n+j}")
            ex = []
            for m in range(nm):
                for n in range(2):
                    k2, k1, sd = CN[n]
                    xs = [A1 + (m*2+n)*4 + r for r in range(4)]
                    for step in range(7):
                        for r, x in enumerate(xs):
                            t = T + r
                            ex.append([f"v_mul_f32 v{t}, v{x}, v{x}", f"v_fma_f32 v{t}, v{t}, v{k2}, v{k1}", f"v_mul_f32 v{t}, v{t}, v{x}",
                                       f"v_exp_f32 v{t}, v{t}", f"v_fma_f32 v{t}, v{t}, v{sd}, v{sd}", f"v_rcp_f32 v{t}, v{t}",
                                       f"v_mul_f32 v{x}, v{x}, v{t}"][step])
        C.tr = False
        ST()
        R.bar()
        ST()
        for r in C.reads(0, 2, 0): k(r)
        k("s_waitcnt lgkmcnt(0)")
        if GINT:
            for i in range(GN): C.st((2+i) % 4, A2, zero=(i == 0), extra=ex, per={12: (1, 1) if i % 2 else (1, 2), 16: (1, 1), 8: (2, 2)}[GN], swap=SW2)
            assert not ex, len(ex)
            loop((32-GN)//4, lambda: [C.st((2+i) % 4, A2, swap=SW2) for i in range(4)])
        else:
            C.st(2, A2, zero=True)
            for i in range(3): C.st((3+i) % 4, A2)
            loop(7, lambda: [C.st((2+i) % 4, A2) for i in range(4)])
        ST()
        k("s_lshl_b32 s42, s11, 3")
        k("s_lshl_b32 s44, s40, 1")
        k("s_add_u32 s42, s42, s44")
        k("s_lshl_b32 s42, s42, 4")
        k("s_add_u32 s42, s42, s10")
        k("s_mul_i32 s42, s42, 4608")
        k("v_lshlrev_b32 v14, 6, v3")
        k("v_lshl_add_u32 v14, v4, 4, v14")
        k("v_add_u32 v14, s42, v14")
        k("v_lshlrev_b32 v15, 5, v3")
        k("v_lshl_add_u32 v15, v4, 3, v15")
        k("v_add_u32 v15, s42, v15")
        k("v_add_u32 v15, 4096, v15")
        k("s_waitcnt vmcnt(0)")
        k(f"v_lshlrev_b32 v{T+8}, 16, v{T+8}")
        k(f"v_lshlrev_b32 v{T+10}, 16, v{T+10}")
        k(f"s_mov_b32 s44, {16*4608}")
        k.nop(2)
        O = S0
        PB = {0: 0, 32: 1024, 80: 2048, 112: 3072}
        for gi, (ms, base) in enumerate(groups_of(cA.cls[ci], PAIR9)):
            for n in range(2):
                for mi, m in enumerate(ms):
                    a = (m*2+n)*4
                    for j in range(2): k(pk('add', A2+a+2*j, A2+a+2*j, T+8+2*n, None, "op_sel_hi:[1,0]"))
                    for j in range(2): k(pk('mul', A2+a+2*j, A2+a+2*j, A1+a+2*j))
                    for j in range(2): k(f"v_cvt_pk_bf16_f32 v{O+mi*2+j}, v{A2+a+2*j}, v{A2+a+2*j+1}")
                so = "s44" if n else "0"
                if len(ms) == 2: k(f"buffer_store_dwordx4 v[{O}:{O+3}], v14, s[28:31], {so} offen offset:{PB[base]} {SC}")
                else:            k(f"buffer_store_dwordx2 v[{O}:{O+1}], v15, s[28:31], {so} offen {SC}")
                O += 4
        if not DET: ST()
        if WFLAG:
            k.srd(24, 6, HO_BYTES, HO_BASE)
            k("s_lshl_b32 s42, s11, 4")
            k("s_add_u32 s42, s42, s10")
            k("s_lshl_b32 s42, s42, 3")
            k("s_add_u32 s42, s42, s15")
            k("s_lshl_b32 s42, s42, 2")
            k(f"s_add_u32 s42, s42, {HO_ZGF}")
            k("v_mov_b32 v12, 0")
            k("s_mov_b64 exec, 1")
            k("s_waitcnt vmcnt(0)")
            k(f"buffer_store_dword v12, v12, s[24:27], s42 offen {SC}")
            k("s_mov_b64 exec, -1")
        else:
            k("s_waitcnt vmcnt(0)")
            R.bar()
        if not DET: ST()
        tiles5 = [[0, 1], [2, 3, 4]][ci]
        n5 = len(tiles5)
        ACC = 16; ACX = 28
        BANKS = [[48, 68], [88, 108]]
        grp = groups_of(tiles5, PAIR5)
        k("s_lshl_b32 s42, s40, 4")
        k("s_add_u32 s42, s42, s77")
        k("v_add_u32 v10, s42, v3")
        k("v_lshlrev_b32 v12, 1, v10")
        k("v_lshl_add_u32 v13, v4, 14, v12")
        k("v_lshl_add_u32 v12, v4, 15, v12")
        for gi, (ms, base) in enumerate(grp):
            for e in range(4*len(ms)):
                k(f"s_add_u32 s42, s76, {base+e}")
                k("s_lshl_b32 s42, s42, 12")
                k(f"buffer_load_ushort v{ACC+4*ms[0]+e}, v{12 if len(ms)==2 else 13}, s[20:23], s42 offen")
        k("s_and_b32 s42, s40, 1")
        k("s_lshl_b32 s42, s42, 6")
        k("v_xor_b32 v14, s42, v5")
        k(f"v_add_u32 v6, {tiles5[0]*2048}, v14")
        k(f"v_add_u32 v7, {6*P5S}, v6")
        k("s_lshl_b32 s42, s40, 11")
        k(f"s_add_u32 s42, s42, {Q5B}")
        k("v_add_u32 v8, s42, v14")
        k("s_xor_b32 s42, s40, 1")
        k("s_lshl_b32 s42, s42, 11")
        k(f"s_add_u32 s42, s42, {Q5B}")
        k("v_add_u32 v9, s42, v14")
        k(f"v_mul_u32_u24 v10, {D*2}, v10")
        k("s_lshl_b32 s42, s76, 1")
        k("v_add_u32 v10, s42, v10")
        k("v_lshl_add_u32 v11, v4, 3, v10")
        k("v_lshl_add_u32 v10, v4, 4, v10")
        k("v_mov_b32 v12, 0x7ffffff0")
        k("v_cmp_gt_u32 vcc, 2, v4")
        k("v_lshlrev_b32 v13, 4, v2")
        k("s_mul_i32 s42, s15, 3072")
        k("v_cndmask_b32 v11, v12, v11, vcc")
        k("v_add_u32 v12, s42, v13")
        k("s_xor_b32 s42, s15, 1")
        k("s_mul_i32 s42, s42, 3072")
        k("v_add_u32 v13, s42, v13")
        for r in range(n5*4): k(f"v_mov_b32 v{ACX+r}, 0")
        k("s_waitcnt vmcnt(0)")
        for r in range(n5*4): k(f"v_lshlrev_b32 v{ACC+r}, 16, v{ACC+r}")
        assert Q5N <= 8
        def rd5(b, mu):
            out = []
            for q in range(2):
                st = 2*mu + q
                S = BANKS[b][q]; ps = PSL[st % P5N]; qs = st % Q5N
                out.append(f"ds_read_b128 v[{S}:{S+3}], v8 offset:{qs*Q5S}")
                out.append(f"ds_read_b128 v[{S+4}:{S+7}], v9 offset:{qs*Q5S}")
                for m in range(n5):
                    out.append(f"ds_read_b128 v[{S+8+4*m}:{S+11+4*m}], v{6 if ps < 6 else 7} offset:{(ps % 6)*P5S + m*2048}")
            return out
        def mf5(b):
            out = []
            for q in range(2):
                S = BANKS[b][q]
                for m in range(n5):
                    for x, A in enumerate((ACC, ACX)):
                        out.append(f"v_mfma_f32_16x16x32_bf16 v[{A+4*m}:{A+4*m+3}], v[{S+8+4*m}:{S+11+4*m}], v[{S+4*x}:{S+4*x+3}], v[{A+4*m}:{A+4*m+3}]")
            return out
        def mst(i):
            rs = rd5((i+1) & 1, i+1) if i < 17 else []; ms_ = mf5(i & 1)
            j = 0
            for m in ms_:
                k(m)
                for _ in range(2):
                    if j < len(rs): k(rs[j]); j += 1
            assert j == len(rs)
            if i < 16:
                k("s_waitcnt lgkmcnt(0)")
                R.bar()
            elif i == 16:
                k("s_waitcnt lgkmcnt(0)")
        R.bar()
        ST()
        for r in rd5(0, 0): k(r)
        k("s_waitcnt lgkmcnt(0)")
        R.bar()
        for i in range(18): mst(i)
        ST()
        k.nop(8)
        for m in range(n5): k(f"ds_write_b128 v12, v[{ACX+4*m}:{ACX+4*m+3}] offset:{XB + 1024*m}")
        k("s_waitcnt lgkmcnt(0)")
        k("s_barrier")
        for m in range(n5): k(f"ds_read_b128 v[{ACX+4*m}:{ACX+4*m+3}], v13 offset:{XB + 1024*m}")
        k("s_waitcnt lgkmcnt(0)")
        TT = 48
        for gi, (ms, base) in enumerate(grp):
            for mi, m in enumerate(ms):
                for pr in range(2):
                    a = ACC + 4*m + 2*pr
                    k(pk('add', a, a, ACX + 4*m + 2*pr))
                    k(f"v_cvt_pk_bf16_f32 v{TT+4*gi+2*mi+pr}, v{a}, v{a+1}")
            o = TT + 4*gi
            if len(ms) == 2: k(f"buffer_store_dwordx4 v[{o}:{o+3}], v10, s[80:83], 0 offen offset:{base*2}")
            else:            k(f"buffer_store_dwordx2 v[{o}:{o+1}], v11, s[80:83], 0 offen offset:{base*2}")
        ST.dump()
        k("s_endpgm")
        nbs[R.name] = R.nb
    compute(0)
    k(f"{c1}:")
    compute(1)

    def poll_flags(setup):
        k.srd(84, 6, HO_BYTES, HO_BASE)
        setup()
        k("v_and_b32 v12, 15, v2")
        k("v_lshlrev_b32 v12, 2, v12")
        k(f"s_mov_b32 s47, {SPIN}")
        pl = k.label('poll'); pd = k.label('pd')
        k(f"{pl}:")
        k(f"buffer_load_dword v13, v12, s[84:87], s45 offen {SC}")
        k("s_waitcnt vmcnt(0)")
        k("v_and_b32 v13, 1, v13")
        k("v_cmp_ne_u32 vcc, 0, v13")
        k("s_sub_u32 s47, s47, 1")
        k("s_cmp_eq_u32 s47, 0")
        k(f"s_cbranch_scc1 {pd}")
        k("s_nop 3")
        k(f"s_cbranch_vccz {pd}")
        k("s_sleep 1")
        k(f"s_branch {pl}")
        k(f"{pd}:")

    class Ld:
        def __init__(self, R, n, base, slotb, NS, V=16, step=128, flags='', rot=False):
            self.R, self.n, self.base, self.slotb, self.NS, self.V, self.step, self.flags, self.rot = R, n, base, slotb, NS, V, step, flags, rot
        def issue(self, slot):
            for j in range(self.n):
                k(f"s_mov_b32 m0, {self.base + slot*self.slotb + j*1024}")
                k("s_nop 0")
                k(f"buffer_load_dwordx4 v{self.V+j}, s[16:19], s44 offen {self.flags} lds")
            if getattr(self, 'mod9', False):
                k("s_add_u32 s46, s46, 1")
                k("s_cmp_eq_u32 s46, 9")
                k("s_cselect_b32 s46, 0, s46")
                k(f"s_mul_i32 s44, s46, {self.step}")
                k("s_add_u32 s44, s44, s45")
            elif getattr(self, 'tiled', False):
                k("s_add_u32 s46, s46, 1")
                k("s_and_b32 s46, s46, 31")
                k(f"s_mul_i32 s44, s46, {2*9216}")
                k("s_add_u32 s44, s44, s45")
            elif self.rot:
                k("s_add_u32 s46, s46, 128")
                k("s_and_b32 s46, s46, 4095")
                k("s_add_u32 s44, s45, s46")
            else:
                k(f"s_add_u32 s44, s44, {self.step}")
        def wait(self, stages):
            k(f"s_waitcnt vmcnt({min(stages*self.n, 63 - self.n)})")
        def prologue(self, slot0):
            NS = self.NS
            infl = min(NS-1, 63//self.n)
            for s in range(infl): self.issue((slot0+s) % NS)
            for s in range(infl, NS):
                self.wait(infl-1)
                self.issue((slot0+s) % NS)
        def steady(self, slot0, count):
            NS = self.NS
            nl = count//NS
            if nl >= 2:
                k(f"s_mov_b32 s43, {nl}")
                lp = k.label('lpl'); k(f"{lp}:")
                for s in range(NS):
                    self.wait(NS-2); self.R.bar(); self.issue((slot0+s) % NS)
                self.R.nb += (nl-1)*NS
                k("s_sub_u32 s43, s43, 1")
                k("s_cmp_lg_u32 s43, 0")
                k(f"s_cbranch_scc1 {lp}")
                rest = count - nl*NS
            else:
                rest = count
            for s in range(rest):
                self.wait(NS-2); self.R.bar(); self.issue((slot0+s) % NS)
        def tail(self):
            for r in range(self.NS):
                self.wait(max(self.NS-2-r, 0)); self.R.bar()

    k(f"{lP}:")
    k("s_setprio 3")
    R = Role(k, 'P')
    ld = Ld(R, 18, cA.P_BASE, cA.P_SLOT, 4, step=2048)
    k(f"s_add_u32 s45, s12, {FH}")
    k(f"s_mul_i32 s45, s45, {D*2}")
    k("s_lshr_b32 s46, s10, 1")
    k("s_lshl_b32 s44, s46, 11")
    k("s_add_u32 s44, s44, s45")
    ld.mod9 = True
    STP = Stamper()
    STP()
    loader_voffs(k, 16, 18, PLAIN, 64, chunkmap=1024, tile16=18432)
    k("s_waitcnt lgkmcnt(0)")
    STP()
    k.srd(16, 6, F*D*2, WS_WINT)
    ld.issue(0); STP(); ld.issue(1); STP()
    loader_voffs(k, 48, 18, PAIR9, 64, chunkmap=1024, tile16=18432)
    ld.wait(1); STP()
    R.bar()
    STP()
    ld.issue(2)
    STP()
    for i in range(9):
        ld.wait(1); R.bar()
        if i == 6:
            k(f"s_mul_i32 s45, s12, {D*2}")
            k("s_lshl_b32 s44, s46, 11")
            k("s_add_u32 s44, s44, s45")
            ld.V = 48
        ld.issue((i+3) % 4)
    ld.wait(2); ld.issue(0)
    R.bar()
    ld.steady(1, 5)
    loader_voffs(k, 16, 18, PAIR9, 64, chunkmap=9216)
    ld.V = 16
    ld.tail()
    k.srd(16, 6, FH*L*2, WS_Z2T)
    k(f"s_mul_i32 s45, s10, {64*9216}")
    k("s_lshl_b32 s46, s11, 1")
    k(f"s_mul_i32 s44, s46, {2*9216}")
    k("s_add_u32 s44, s44, s45")
    ld.tiled = True; ld.mod9 = False
    ld.flags = LSC; ld.rot = True
    ld.issue(2); ld.issue(3)
    ld.wait(1)
    R.bar()
    ld.issue(0)
    ld.wait(1); R.bar(); ld.issue(1)
    ld.wait(1); R.bar(); ld.issue(2)
    ld.wait(1); R.bar(); ld.issue(3)
    ld.wait(1); R.bar(); ld.issue(0); ld.issue(1)
    ld.steady(2, 24)
    loader_voffs(k, 48, 9, PAIR5, FH*2)
    if not EARLYP: ld.tail()
    k.srd(16, 6, D*FH*2, WS_WOUTT)
    k(f"s_mul_i32 s44, s76, {FH*2}")
    pis = 0
    def ip(n):
        nonlocal pis
        for _ in range(n):
            if pis >= 36: return
            if pis >= 6: k("s_waitcnt vmcnt(54)")
            for j in range(9):
                k(f"s_mov_b32 m0, {PSL[pis % P5N]*P5S + j*1024}")
                k("s_nop 0")
                k(f"buffer_load_dwordx4 v{48+j}, s[16:19], s44 offen lds")
            if not FAKEP: k("s_add_u32 s44, s44, 128")
            pis += 1
    def wp(last_needed):
        k(f"s_waitcnt vmcnt({min(max(pis-1-last_needed, 0)*9, 63)})")
    if EARLYP:
        assert P5N == 10
        k("s_waitcnt vmcnt(36)"); R.bar(); ip(2)
        k("s_waitcnt vmcnt(36)"); R.bar(); ip(2)
        k("s_waitcnt vmcnt(36)"); R.bar(); ip(3)
        R.bar(); ip(3)
        R.bar()
    else:
        ip(PPRE)
        if not WFLAG: R.bar()
        ip(P5N-PPRE)
    wp(1)
    R.bar()
    for i in range(17):
        wp(2*i+3)
        R.bar()
        rem = 36 - P5N
        target = P5N + min(rem, -(-rem*(i+1)//PSPREAD))
        target = min(target, P5N + 2*(i+1))
        ip(target - pis)
    assert pis == 36
    STP.dump()
    k("s_endpgm")
    nbs['P'] = R.nb

    k(f"{lQ}:")
    k("s_setprio 3")
    R = Role(k, 'Q')
    ld = Ld(R, 16, cA.Q_BASE, cA.Q_SLOT, 4, step=64*4096)
    k("s_lshl_b32 s45, s13, 1")
    k("s_lshr_b32 s46, s10, 1")
    k("s_lshl_b32 s44, s46, 18")
    k("s_add_u32 s44, s44, s45")
    ld.mod9 = True
    k("v_lshrrev_b32 v3, 4, v2")
    k("v_and_b32 v4, 15, v2")
    k("v_lshlrev_b32 v5, 1, v3")
    k("v_xor_b32 v4, v4, v5")
    k("v_lshlrev_b32 v4, 4, v4")
    k("v_lshl_add_u32 v4, v3, 12, v4")
    k("v_xor_b32 v5, 128, v4")
    for j in range(16):
        k(f"v_add_u32 v{16+j}, {4*j*4096}, v{5 if (j>>1)&1 else 4}")
    k("s_waitcnt lgkmcnt(0)")
    k.srd(16, 6, D*L*2, WS_HTM)
    ld.issue(0); ld.issue(1)
    loader_voffs(k, 48, 16, PLAIN, 4096)
    ld.wait(1)
    R.bar()
    ld.issue(2)
    for i in range(9):
        ld.wait(1); R.bar()
        ld.issue((i+3) % 4)
    ld.wait(2); ld.issue(0)
    k("v_lshrrev_b32 v3, 3, v2")
    k("v_and_b32 v4, 7, v2")
    k("v_lshrrev_b32 v5, 4, v2")
    k("v_xor_b32 v4, v4, v5")
    for par in range(2):
        k(f"v_xor_b32 v6, {4*par}, v4")
        k(f"v_add_u32 v7, {8*par}, v3")
        k("v_lshrrev_b32 v8, 2, v6")
        k("v_lshlrev_b32 v8, 10, v8")
        k("v_lshl_add_u32 v8, v7, 6, v8")
        k("v_and_b32 v9, 3, v6")
        k(f"v_lshl_add_u32 v{80+par}, v9, 4, v8")
        k("v_lshrrev_b32 v8, 1, v6")
        k("v_mul_u32_u24 v8, 4608, v8")
        k("v_lshl_add_u32 v8, v7, 5, v8")
        k("v_and_b32 v9, 1, v6")
        k("v_lshl_add_u32 v8, v9, 4, v8")
        k(f"v_add_u32 v{82+par}, 4096, v8")
    R.bar()
    ld.steady(1, 5)
    k.srd(16, 72, L*L*2)
    k("s_lshl_b32 s45, s13, 12")
    k("s_lshl_b32 s46, s11, 8")
    k("s_add_u32 s44, s45, s46")
    ld.V = 48; ld.rot = True; ld.mod9 = False
    ld.steady(2, 3)
    R.bar(); ld.wait(2); ld.issue(1)
    R.bar()
    ld.steady(2, 28)
    ld.tail()
    k("s_lshr_b32 s60, s77, 4")
    k(f"s_mul_i32 s60, s60, {16*4608}")
    for j in range(1, 4): k(f"s_add_u32 s{60+j}, s60, {j*16*4608}")
    for j in range(4):
        k(f"s_add_u32 s{56+j}, s10, {j}" if ROT3 else f"s_mov_b32 s{56+j}, {j}")
        k(f"s_and_b32 s{56+j}, s{56+j}, 3")
        k(f"s_mul_i32 s{56+j}, s{56+j}, {4*4608}")
    if WFLAG:
        k.srd(84, 6, HO_BYTES, HO_BASE)
        k("s_lshr_b32 s45, s77, 7")
        k("s_lshl_b32 s45, s45, 9")
        k(f"s_add_u32 s45, s45, {HO_ZGF}")
        k("v_lshlrev_b32 v12, 3, v2")
        k(f"s_mov_b32 s47, {SPIN}")
        pl = k.label('poll'); pd = k.label('pd')
        k("s_sleep 16")
        k(f"{pl}:")
        k(f"buffer_load_dwordx2 v[14:15], v12, s[84:87], s45 offen {SC}")
        k("s_waitcnt vmcnt(0)")
        k("v_or_b32 v13, v14, v15")
        k("v_and_b32 v13, 1, v13")
        k("v_cmp_ne_u32 vcc, 0, v13")
        k("s_sub_u32 s47, s47, 1")
        k("s_cmp_eq_u32 s47, 0")
        k(f"s_cbranch_scc1 {pd}")
        k("s_nop 3")
        k(f"s_cbranch_vccz {pd}")
        k("s_sleep 1")
        k(f"s_branch {pl}")
        k(f"{pd}:")
    else:
        R.bar()
        if REPL:
            assert not MAP3
            poll_flags(lambda: (k("s_lshl_b32 s45, s11, 4"), k("s_add_u32 s45, s45, s10"), k("s_lshl_b32 s45, s45, 7"), k(f"s_add_u32 s45, s45, {HO_ZGF}")))
        else:
            poll_flags(lambda: (k("s_and_b32 s45, s77, 0xffffff80"), k(f"s_add_u32 s45, s45, {HO_ZGF}")))
    k.srd(16, 6, L*FH*2, WS_ZG)
    def iq(mu):
        for hf in range(2):
            st = 2*mu + hf
            ph = st % 9
            cst = ((2*ph) >> 2)*4608 + ((2*ph) & 3)*1024 if ph < 8 else 0
            k(f"s_add_u32 s43, s{56 + st//9}, {cst}" if not FAKEQ else f"s_mov_b32 s43, {(st%2)*2048}")
            for j in range(8):
                if j % 2 == 0: k(f"s_add_u32 s44, s{60 + (j>>1)}, s43")
                k(f"s_mov_b32 m0, {Q5B + (st % Q5N)*Q5S + j*1024}")
                k("s_nop 0")
                k(f"buffer_load_dwordx4 v{(80 if ph < 8 else 82) + (j&1)}, s[16:19], s44 offen {LSC} lds")
    NQ = Q5N//2
    iq(0); iq(1)
    k("s_waitcnt vmcnt(16)")
    R.bar()
    issued = 2
    def top_up(limit):
        nonlocal issued
        while issued < min(limit, 18):
            k("s_waitcnt vmcnt(47)")
            iq(issued); issued += 1
    top_up(min(NQ, 4))
    for i in range(17):
        k(f"s_waitcnt vmcnt({min((issued-1-(i+1))*16, 63)})")
        R.bar()
        top_up(min(i+1+NQ, issued+2))
    k("s_endpgm")
    nbs['Q'] = R.nb

    k(f"{lX}:")
    k("s_setprio 3")
    R = Role(k, 'X')
    k("v_and_b32 v3, 15, v2")
    k("v_lshrrev_b32 v4, 4, v2")
    k("v_add_u32 v5, s12, v2")
    k("v_lshlrev_b32 v5, 2, v5")
    k("v_lshrrev_b32 v12, 2, v3")
    k("v_and_b32 v13, 3, v3")
    k("v_and_b32 v14, 1, v4")
    k("v_lshl_or_b32 v14, v14, 2, v12")
    k("v_lshlrev_b32 v14, 1, v14")
    k("v_lshrrev_b32 v15, 1, v13")
    k("s_and_b32 s43, s10, 1")
    k("s_lshl_b32 s43, s43, 3")
    k("v_add_u32 v15, s43, v15")
    k("v_xor_b32 v15, v15, v14")
    k("v_lshlrev_b32 v15, 4, v15")
    k("v_and_b32 v13, 1, v13")
    k("v_lshl_add_u32 v15, v13, 3, v15")
    k("v_lshl_add_u32 v14, v4, 3, v12")
    k("v_lshl_add_u32 v8, v14, 8, v15")
    k(f"v_add_u32 v8, {cA.Q_BASE}, v8")
    for st in range(1, 4): k(f"v_xor_b32 v{8+st}, {32*st}, v8")
    k("v_cmp_eq_u32 s[62:63], v12, v4")
    make_masks()
    for r in range(4): k(f"v_mov_b32 v{36+r}, 0x3f803f80")
    k("v_lshlrev_b32 v14, 3, v3")
    k("s_waitcnt lgkmcnt(0)")
    k.srd(36, 6, 3*F*4, WS_CWP)
    k.srd(84, 6, HO_BYTES, HO_BASE)
    HX = 40; HY = 104; GA = 72
    def rd_half(H, slot):
        for st in range(4):
            for ks in range(2):
                for x in range(2):
                    r = H + 8*st + 4*ks + 2*x
                    k(f"ds_read_b64_tr_b16 v[{r}:{r+1}], v{8+st} offset:{slot*cA.Q_SLOT + (32*ks+4*x)*256}")
    def stat_half(H, plane_setup):
        for ks in range(2):
            for st in range(4):
                f_ = H + 8*st + 4*ks; a = GA + 8*st
                c0 = "0" if ks == 0 else f"v[{a}:{a+3}]"
                c1 = "0" if ks == 0 else f"v[{a+4}:{a+7}]"
                k(f"v_mfma_f32_16x16x32_bf16 v[{a}:{a+3}], v[36:39], v[{f_}:{f_+3}], {c0}")
                k(f"v_mfma_f32_16x16x32_bf16 v[{a+4}:{a+7}], v[{f_}:{f_+3}], v[{f_}:{f_+3}], {c1}")
        plane_setup()
        k("s_lshl_b32 s42, s42, 14")
        k("s_and_b32 s43, s10, 1")
        k("s_lshl_b32 s43, s43, 6")
        k("s_add_u32 s43, s43, s13")
        k("s_lshl_b32 s43, s43, 3")
        k("s_add_u32 s42, s42, s43")
        k(f"s_add_u32 s42, s42, {HO_LN2}")
        k.nop(2)
        m0, m1 = masks[0], masks[1]
        for st in range(4):
            a = GA + 8*st
            k(f"v_cndmask_b32 v{a+4}, v{a+4}, v{a+5}, s[{m0}:{m0+1}]")
            k(f"v_cndmask_b32 v{a+6}, v{a+6}, v{a+7}, s[{m0}:{m0+1}]")
            k(f"v_cndmask_b32 v{a+1}, v{a+4}, v{a+6}, s[{m1}:{m1+1}]")
            k(f"v_and_b32 v{a}, 0xfffffffe, v{a}")
            k(f"v_and_b32 v{a+1}, 0xfffffffe, v{a+1}")
        k("s_mov_b64 exec, s[62:63]")
        for st in range(4):
            a = GA + 8*st
            k(f"buffer_store_dwordx2 v[{a}:{a+1}], v14, s[84:87], s42 offen offset:{128*st} {SC}")
        k("s_mov_b64 exec, -1")
    R.bar()
    rd_half(HX, 0)
    for a in range(2):
        for p in range(3):
            k(f"s_mov_b32 s42, {(p*F + a*FH)*4}")
            for q in range(3):
                k(f"buffer_load_dword v{16+(a*3+p)*3+q}, v5, s[36:39], s42 offen offset:{256*q}")
    k("v_lshlrev_b32 v6, 2, v2")
    k(f"v_add_u32 v6, {SC_CW1}, v6")
    k("s_waitcnt lgkmcnt(0)")
    R.bar()
    sk1 = k.label('sk'); sk2 = k.label('sk')
    k("s_cmp_lt_u32 s10, 14")
    k(f"s_cbranch_scc1 {sk1}")
    rd_half(HY, 1)
    k(f"{sk1}:")
    stat_half(HX, lambda: k("s_lshr_b32 s42, s10, 1"))
    k("s_waitcnt lgkmcnt(0)")
    R.bar()
    k("s_cmp_lt_u32 s10, 14")
    k(f"s_cbranch_scc1 {sk2}")
    stat_half(HY, lambda: k("s_mov_b32 s42, 8"))
    k(f"{sk2}:")
    R.bar(2)
    def ln_finish(S, Q, n, mrs):
        k(f"v_mul_f32 v{S}, {fhex(1.0/n)}, v{S}")
        k(f"v_mul_f32 v{Q}, {fhex(1.0/n)}, v{Q}")
        k(f"v_fma_f32 v{Q}, -v{S}, v{S}, v{Q}")
        k(f"v_max_f32 v{Q}, 0, v{Q}")
        rbf(k, S, S); rbf(k, Q, Q)
        k(f"v_add_f32 v{Q}, {fhex(1e-5)}, v{Q}")
        rbf(k, Q, Q)
        k(f"v_sqrt_f32 v{Q}, v{Q}")
        k.nop(1)
        rbf(k, Q, Q)
        k(f"v_rcp_f32 v{Q}, v{Q}")
        k.nop(1)
        if mrs: k(f"v_mul_f32 v{S}, v{S}, v{Q}")
    R.bar()
    k("s_waitcnt vmcnt(0)")
    for a in range(2):
        for q in range(3):
            r = 16 + a*9 + q
            k(f"v_add_f32 v{r}, v{r}, v{r+3}")
            k(f"v_add_f32 v{r}, v{r}, v{r+6}")
            k(f"v_cvt_pk_bf16_f32 v7, v{r}, v{r}")
            k("v_lshlrev_b32 v7, 16, v7")
            k(f"v_sub_f32 v7, v{r}, v7")
            k(f"v_cvt_pk_bf16_f32 v{r}, v{r}, v7")
            k(f"ds_write_b32 v6, v{r} offset:{a*768 + 256*q}")
    def poll_sum(nbar, issue, base, nplanes, dst):
        k(f"s_mov_b32 s47, {SPIN}")
        pl = k.label('poll'); pd = k.label('pd'); pc = k.label('pc')
        issue()
        R.bar(nbar)
        k(f"s_branch {pc}")
        k(f"{pl}:")
        k("s_sleep 1")
        issue()
        k(f"{pc}:")
        k("s_waitcnt vmcnt(0)")
        for j in range(4): k(f"v_add_f32 v{dst+j}, v{base+j}, v{base+4+j}")
        for p in range(2, nplanes):
            for j in range(4): k(f"v_add_f32 v{dst+j}, v{dst+j}, v{base+4*p+j}")
        k(f"v_add_f32 v12, v{dst}, v{dst+1}")
        k(f"v_add_f32 v13, v{dst+2}, v{dst+3}")
        k("v_cmp_u_f32 vcc, v12, v13")
        k("s_nop 4")
        k(f"s_cbranch_vccz {pd}")
        regs = list(range(base, base+4*nplanes))
        k(f"v_or_b32 v13, v{regs[0]}, v{regs[1]}")
        rest = regs[2:]
        while rest:
            k(f"v_or3_b32 v13, v13, v{rest[0]}, v{rest[1]}"); rest = rest[2:]
        k("v_and_b32 v13, 1, v13")
        k("v_cmp_ne_u32 vcc, 0, v13")
        k("s_sub_u32 s47, s47, 1")
        k("s_cmp_eq_u32 s47, 0")
        k(f"s_cbranch_scc1 {pd}")
        k("s_nop 3")
        k(f"s_cbranch_vccnz {pl}")
        k(f"{pd}:")
    R.bar(1)
    k("v_lshlrev_b32 v5, 4, v2")
    k("s_lshl_b32 s42, s13, 3")
    k(f"s_add_u32 s42, s42, {HO_LN2}")
    def iss2():
        for p in range(9):
            k(f"s_add_u32 s43, s42, {p << 14}")
            k(f"buffer_load_dwordx4 v[{40+4*p}:{43+4*p}], v5, s[84:87], s43 offen {SC}")
    poll_sum(1, iss2, 40, 9, 24)
    def pf_issue(a=0, b=32):
        if not PF: return
        if a == 0:
            k.srd(36, 72, L*L*2)
            k("s_lshl_b32 s46, s2, 15")
        for j in range(a, b):
            r = 96 + 4*(j % 16)
            k(f"buffer_load_dwordx4 v[{r}:{r+3}], v5, s[36:39], s46 offen")
            k("s_add_u32 s46, s46, 1024")
    R.bar()
    ln_finish(24, 25, D, False)
    ln_finish(26, 27, D, False)
    k("v_cvt_pk_bf16_f32 v20, -v24, -v24")
    k("v_cvt_pk_bf16_f32 v21, -v26, -v26")
    k("v_mov_b32 v22, v25")
    k("v_mov_b32 v23, v27")
    k("v_lshlrev_b32 v6, 3, v2")
    k(f"v_add_u32 v6, {SC_RS2}, v6")
    k("ds_write_b64 v6, v[22:23]")
    k("ds_write_b64 v6, v[20:21] offset:512")
    k("s_waitcnt lgkmcnt(0)")
    if PFAT == 7: pf_issue(0, 12)
    R.bar()
    if PFAT == 7: pf_issue(12, 32)
    if PFAT == 8: pf_issue()
    k(f"v_add_u32 v7, {SC_P3}, v5")
    k("s_lshl_b32 s42, s13, 3")
    k("s_lshl_b32 s43, s10, 14")
    k("s_add_u32 s43, s43, s42")
    R.bar()
    k("ds_read_b128 v[16:19], v7")
    k("ds_read_b128 v[20:23], v7 offset:1024")
    k("s_waitcnt lgkmcnt(0)")
    for j in range(4):
        k(f"v_add_f32 v{16+j}, v{16+j}, v{20+j}")
        k(f"v_and_b32 v{16+j}, 0xfffffffe, v{16+j}")
    k(f"buffer_store_dwordx4 v[16:19], v5, s[84:87], s43 offen {SC}")
    R.bar(NA-1-PB)
    def iss():
        for p in range(16):
            k(f"s_add_u32 s43, s42, {p << 14}")
            k(f"buffer_load_dwordx4 v[{32+4*p}:{35+4*p}], v5, s[84:87], s43 offen {SC}")
    poll_sum(PB, iss, 32, 16, 24)
    ln_finish(24, 25, FH, True)
    ln_finish(26, 27, FH, True)
    k("v_mov_b32 v16, v25"); k("v_mov_b32 v17, v27"); k("v_mov_b32 v18, v24"); k("v_mov_b32 v19, v26")
    k("v_lshlrev_b32 v6, 3, v2")
    k(f"v_add_u32 v6, {SC_RS3}, v6")
    k("ds_write_b64 v6, v[16:17]")
    k("ds_write_b64 v6, v[18:19] offset:512")
    k("s_waitcnt lgkmcnt(0)")
    k("v_mov_b32 v16, 0")
    if REPL: k("v_lshlrev_b32 v5, 7, v2")
    else: k("v_mov_b32 v5, 0")
    k(f"s_lshl_b32 s42, s10, {11 if REPL else 7}")
    k("s_lshl_b32 s43, s11, 2")
    k("s_add_u32 s42, s42, s43")
    k(f"s_add_u32 s42, s42, {HO_Z2F}")
    R.bar(GF + 1 - (8+NA))
    k(f"s_mov_b64 exec, {0xffff if REPL else 1}")
    k(f"buffer_store_dword v16, v5, s[84:87], s42 offen {SC}")
    k("s_mov_b64 exec, -1")
    R.bar(17 - GF)
    if REPL:
        poll_flags(lambda: (k("s_lshl_b32 s45, s10, 4"), k("s_add_u32 s45, s45, s11"), k("s_lshl_b32 s45, s45, 7"), k(f"s_add_u32 s45, s45, {HO_Z2F}")))
    else:
        poll_flags(lambda: (k("s_lshl_b32 s45, s10, 7"), k(f"s_add_u32 s45, s45, {HO_Z2F}")))
    R.bar()
    k("s_mov_b32 s43, 7")
    lp = k.label('lp'); k(f"{lp}:")
    R.bar(4); R.nb += 24
    k("s_sub_u32 s43, s43, 1")
    k("s_cmp_lg_u32 s43, 0")
    k(f"s_cbranch_scc1 {lp}")
    if WARM2:
        k.srd(36, 6, D*FH*2, WS_WOUTT)
        k("v_lshlrev_b32 v6, 7, v2")
        k("s_lshr_b32 s42, s2, 3")
        k("s_mul_i32 s42, s42, 82944")
    if WARM3:
        k.srd(36, 6, D*FH*2, WS_WOUTT)
        k("v_lshrrev_b32 v6, 2, v2")
        k("v_and_b32 v7, 3, v2")
        k(f"v_mul_u32_u24 v6, {FH*2}, v6")
        k("v_lshl_add_u32 v6, v7, 7, v6")
        k("s_and_b32 s42, s11, 7")
        k("s_mul_i32 s42, s42, 13")
        k("s_lshr_b32 s42, s42, 2")
        k("s_min_u32 s42, s42, 22")
        k(f"s_add_u32 s42, s42, {P5N}")
        k("s_lshl_b32 s42, s42, 7")
        k(f"s_mul_i32 s43, s76, {FH*2}")
        k("s_add_u32 s42, s42, s43")
    for b in range(5):
        if WARM3 and b == WARM3 - 1:
            for j in range(5):
                if j == 4: k("s_mov_b64 exec, 0xffffffff")
                k(f"buffer_load_dword v{20+j}, v6, s[36:39], s42 offen")
                k(f"s_add_u32 s42, s42, {16*FH*2}")
            k("s_mov_b64 exec, -1")
        if b < 4: R.bar()
    if not WFLAG:
        k(f"s_lshl_b32 s42, s11, {11 if REPL else 7}")
        k("s_lshl_b32 s43, s10, 2")
        k("s_add_u32 s42, s42, s43")
        k(f"s_add_u32 s42, s42, {HO_ZGF}")
        k(f"s_mov_b64 exec, {0xffff if REPL else 1}")
        R.bar()
        k(f"buffer_store_dword v16, v5, s[84:87], s42 offen {SC}")
    if WARMP:
        k("s_mov_b64 exec, -1")
        k.srd(36, 6, D*FH*2, WS_WOUTT)
        k("v_lshrrev_b32 v6, 3, v2")
        k("v_and_b32 v7, 7, v2")
        k("v_min_u32 v7, 5, v7")
        k(f"v_mul_u32_u24 v6, {FH*2}, v6")
        k("v_lshl_add_u32 v6, v7, 7, v6")
        k("s_and_b32 s42, s11, 7")
        k("s_mul_i32 s42, s42, 576")
        k("s_and_b32 s42, s42, 0xffffff80")
        k(f"s_mul_i32 s43, s76, {FH*2}")
        k("s_add_u32 s42, s42, s43")
        for j in range(9):
            k(f"buffer_load_dword v{20+j}, v6, s[36:39], s42 offen")
            k(f"s_add_u32 s42, s42, {8*FH*2}")
    k("s_endpgm")
    nbs['X'] = R.nb
    assert nbs['c0'] == nbs['c1'] == nbs['P'] == nbs['Q'] == nbs['X'] + 18, nbs
    k(f"{done}:")
    k("s_endpgm")
    return k, LDS
```
